```python
import torch

def _softmax(x, axis=-1):
    return torch.softmax(x, dim=axis)

def _gelu(x):
    return torch.nn.functional.gelu(x, approximate='tanh')

def _silu(x):
    return torch.nn.functional.silu(x)

def _sigmoid(x):
    return torch.sigmoid(x)

def _layernorm(x, axis=-1, eps=1e-05):
    m = x.mean(dim=axis, keepdim=True)
    v = x.var(dim=axis, keepdim=True, unbiased=False)
    return (x - m) / torch.sqrt(v + eps)

def _scatter_add(tgt, idx, src, axis=0):
    return tgt.clone().index_add_(axis, idx, src)

def _segment_sum(src, seg, n):
    out = torch.zeros((n,) + src.shape[1:], dtype=src.dtype)
    return out.index_add_(0, seg, src)

def _pad(x, pw):
    flat = tuple((v for pair in reversed(pw) for v in pair))
    return torch.nn.functional.pad(x, flat)
kernel_name = 'gated_mix__memory_aug_recurrent_mem_tr__dense_activation_relu__prompt'

def setup_inputs():

    _w = lambda a: (lambda t: t.to(torch.bfloat16) if t.is_floating_point() else t)(torch.as_tensor(a))

    def _A_setup():
        B, S, Dm = (1, 2048, 512)
        H, Dh = (32, 128)
        M, seg = (8, 32)
        seg = min(seg, S)
        S = S // seg * seg
        return {'x': _w((lambda *s: torch.randn(*s, dtype=torch.bfloat16) * 0.05)(B, S, Dm)), 'mem0': _w((lambda *s: torch.randn(*s, dtype=torch.bfloat16) * 1.6)(B, M, Dm)), 'Wq': _w((lambda *s: torch.randn(*s, dtype=torch.bfloat16) * 0.8)(Dm, H, Dh) * Dm ** (-0.5)), 'Wk': _w((lambda *s: torch.randn(*s, dtype=torch.bfloat16) * 0.8)(Dm, H, Dh) * Dm ** (-0.5)), 'Wv': _w((lambda *s: torch.randn(*s, dtype=torch.bfloat16) * 1.6)(Dm, H, Dh) * Dm ** (-0.5)), 'Wo': _w((lambda *s: torch.randn(*s, dtype=torch.bfloat16) * 1.6)(H, Dh, Dm) * (H * Dh) ** (-0.5)), 'seg_len': seg}
    _A_in = _A_setup()

    def _B_setup():
        B, S, D, Dff = (1, 2048, 512, 1792)
        return {'x': _w((lambda *s: torch.randn(*s, dtype=torch.bfloat16) * 0.05)(B, S, D)), 'w1': _w((lambda *s: torch.randn(*s, dtype=torch.bfloat16) * 0.1)(D, Dff)), 'w2': _w((lambda *s: torch.randn(*s, dtype=torch.bfloat16) * 0.1)(Dff, D))}
    _B_in = _B_setup()
    return {'A_x': _A_in['x'], 'A_mem0': _A_in['mem0'], 'A_Wq': _A_in['Wq'], 'A_Wk': _A_in['Wk'], 'A_Wv': _A_in['Wv'], 'A_Wo': _A_in['Wo'], 'A_seg_len': _A_in['seg_len'], 'B_x': _B_in['x'], 'B_w1': _B_in['w1'], 'B_w2': _B_in['w2'], 'gate_w': _w((lambda *s: torch.randn(*s, dtype=torch.bfloat16) * 0.05)(512) * 16.0)}

def reference(A_x, A_mem0, A_Wq, A_Wk, A_Wv, A_Wo, A_seg_len, B_x, B_w1, B_w2, gate_w):

    def _A_ref(x, mem0, Wq, Wk, Wv, Wo, seg_len):
        B, S, Dm = x.shape
        H, Dh = (Wq.shape[1], Wq.shape[2])
        M = mem0.shape[1]
        scale = Dh ** (-0.5)
        n_seg = S // seg_len
        L = M + seg_len
        idx = torch.arange(L)
        mask = (idx[:, None] < M) | (idx[:, None] >= idx[None, :])
        mem = mem0
        outs = []
        for s in range(n_seg):
            xs = x[:, s * seg_len:(s + 1) * seg_len, :].clone()
            h = torch.concatenate([mem, xs], axis=1)
            q = torch.einsum('btd,dhe->bhte', h, Wq)
            k = torch.einsum('btd,dhe->bhte', h, Wk)
            v = torch.einsum('btd,dhe->bhte', h, Wv)
            scores = torch.einsum('bhqe,bhke->bhqk', q, k) * scale
            scores = torch.where(mask[None, None], scores, -1000000000.0)
            p = _softmax(scores, axis=-1)
            o = torch.einsum('bhqk,bhke->bhqe', p, v)
            o = torch.einsum('bhte,hed->btd', o, Wo)
            mem = o[:, :M, :].clone()
            outs.append(o[:, M:, :])
        return torch.concatenate(outs, axis=1)

    def _B_ref(x, w1, w2):
        h = torch.einsum('bsd,df->bsf', x, w1)
        zero = torch.zeros_like(h)
        h = torch.maximum(h, zero)
        return torch.einsum('bsf,fd->bsd', h, w2)
    x = A_x
    g = _sigmoid((x * gate_w).sum(-1, keepdims=True))
    a = _A_ref(x, A_mem0, A_Wq, A_Wk, A_Wv, A_Wo, A_seg_len)
    b = _B_ref(x, B_w1, B_w2)
    return g * a + (1 - g) * b
```

```python
import re

TRANS = ('v_exp_f32','v_log_f32','v_rcp_f32','v_rsq_f32','v_sqrt_f32','v_sin_f32','v_cos_f32')

def regs_of(op):
    op = op.strip()
    m = re.fullmatch(r'(-|abs\()?([vas])\[(\d+):(\d+)\]\)?', op)
    if m: return [(m.group(2), i) for i in range(int(m.group(3)), int(m.group(4))+1)]
    m = re.fullmatch(r'(-|abs\()?([vas])(\d+)\)?', op)
    if m: return [(m.group(2), int(m.group(3)))]
    if op in ('vcc','vcc_lo','vcc_hi'): return [('s','vcc')]
    if op in ('exec','exec_lo','exec_hi'): return [('s','exec')]
    if op == 'm0': return [('s','m0')]
    return []

def split_ops(s):
    out=[];depth=0;cur=''
    for ch in s:
        if ch=='[' or ch=='(': depth+=1
        if ch==']' or ch==')': depth-=1
        if ch==',' and depth==0: out.append(cur.strip()); cur=''
        else: cur+=ch
    if cur.strip(): out.append(cur.strip())
    return out

class Ins:
    __slots__=('text','mn','kind','w','r','srcC','passes','states','dpp','isstore','storedata')

def classify(text):
    t = text.split(';')[0].strip()
    parts = t.split(None,1)
    mn = parts[0]
    rest = parts[1] if len(parts)>1 else ''
    ops = split_ops(rest)
    mods=''
    if ops:
        last = ops[-1].split()
        ops[-1]=last[0] if last else ''
        mods=' '.join(last[1:])
    I=Ins(); I.text=text; I.mn=mn; I.w=[]; I.r=[]; I.srcC=[]; I.passes=0; I.states=1; I.dpp=False; I.isstore=False; I.storedata=[]
    R=lambda k: regs_of(ops[k]) if k<len(ops) else []
    if mn=='s_nop':
        I.kind='nop'; I.states=int(ops[0],0)+1; return I
    if mn.startswith('v_mfma') or mn.startswith('v_smfmac'):
        I.kind='mfma'
        I.passes = 8 if '32x32' in mn else 4
        I.w=R(0)
        if mn.startswith('v_smfmac'):
            I.r=R(1)+R(2)+R(3); I.srcC=R(0)
        else:
            I.r=R(1)+R(2); I.srcC=R(3)
        return I
    if mn.startswith('ds_'):
        I.kind='ds'
        if mn.startswith('ds_read') or mn.startswith('ds_bpermute') or mn.startswith('ds_swizzle'):
            I.w=R(0); I.r=sum((R(k) for k in range(1,len(ops))),[])
        else:
            I.r=sum((R(k) for k in range(len(ops))),[])
        return I
    if mn.startswith('global_') or mn.startswith('buffer_'):
        I.kind='vmem'
        if 'load_lds' in mn or ' lds' in (' '+mods+' '):
            I.r=sum((R(k) for k in range(len(ops))),[])+[('s','m0')]
        elif '_load' in mn:
            I.w=R(0); I.r=sum((R(k) for k in range(1,len(ops))),[])
        elif 'atomic' in mn:
            if 'sc0' in mods and mn.startswith('global'):
                I.w=R(0); I.r=sum((R(k) for k in range(1,len(ops))),[])
            else:
                I.r=sum((R(k) for k in range(len(ops))),[])
                if 'sc0' in mods: I.w=R(0)
        else:
            I.r=sum((R(k) for k in range(len(ops))),[])
            I.isstore = ('x3' in mn or 'x4' in mn)
            I.storedata = R(1) if mn.startswith('global') else R(0)
        return I
    if mn.startswith('v_'):
        I.kind='valu'
        I.dpp = ('_dpp' in mn) or ('row_' in mods) or ('quad_perm' in mods)
        if mn.startswith('v_cmp'):
            I.w=R(0); I.r=sum((R(k) for k in range(1,len(ops))),[])
            if mn.startswith('v_cmpx'): I.w.append(('s','exec'))
        elif mn.startswith('v_permlane') and 'swap' in mn:
            I.w=R(0)+R(1); I.r=R(0)+R(1); I.kind='permlane'
        elif mn.startswith('v_readfirstlane') or mn.startswith('v_readlane'):
            I.w=R(0); I.r=sum((R(k) for k in range(1,len(ops))),[]); I.kind='readlane'
        elif mn.startswith(('v_add_co','v_addc_co','v_sub_co','v_subb_co')):
            I.w=R(0)+R(1); I.r=sum((R(k) for k in range(2,len(ops))),[])
        else:
            I.w=R(0); I.r=sum((R(k) for k in range(1,len(ops))),[])
            if mn.startswith(('v_fmac','v_pk_fmac','v_dot2c')): I.r+=R(0)
            if mn.startswith('v_cndmask') and len(ops)==3: I.r.append(('s','vcc'))
            if I.dpp: I.r+=R(0)
        if any(mn.startswith(x) for x in TRANS): I.kind='trans'
        return I
    if mn.startswith('s_'):
        I.kind='salu'
        if mn.startswith(('s_cmp','s_cbranch','s_branch','s_barrier','s_waitcnt','s_endpgm','s_sleep','s_setprio','s_bitcmp')):
            I.r=sum((R(k) for k in range(len(ops))),[])
        elif mn.startswith('s_load') or mn.startswith('s_memtime') or mn.startswith('s_memrealtime') or mn.startswith('s_buffer_load'):
            I.kind='smem'; I.w=R(0); I.r=sum((R(k) for k in range(1,len(ops))),[])
        else:
            I.w=R(0); I.r=sum((R(k) for k in range(1,len(ops))),[])
            if 'saveexec' in mn: I.w.append(('s','exec'))
        return I
    raise ValueError('unknown instr '+text)

VALUK=('valu','trans','permlane','readlane')
class Asm:
    def __init__(self, physical_mfma=True):
        self.lines=[]; self.hist=[]; self.nnops=0; self.physical=physical_mfma; self.count=0
    def raw(self, s):
        self.lines.append(s)
    def label(self, name):
        self.lines.append(name+':')
    def comment(self, s): self.lines.append('  ; '+s)
    def fence(self, states=None):
        need=self._pending_max()
        if need>0: self._nop(need)
        self.hist=[]
    def _pending_max(self):
        d=0; need=0
        for I in reversed(self.hist):
            if I.kind=='mfma': need=max(need,(8 if I.passes==4 else 12)-d)
            elif I.kind in VALUK: need=max(need,5-d if any(r[0]=='s' for r in I.w) else 2-d)
            d+=self._st(I)
            if d>=12: break
        return need
    def _st(self,I):
        return I.states
    def _nop(self,n):
        while n>0:
            k=min(n,16); I=classify('s_nop %d'%(k-1)); self.lines.append('  s_nop %d'%(k-1)); self.hist.append(I); n-=k; self.nnops+=k
    def _need(self,C):
        need=0; d=0
        cr=set(C.r); cw=set(C.w); cc=set(C.srcC)
        H=self.hist
        for k in range(len(H)-1,-1,-1):
            P=H[k]
            pw=set(P.w)
            req=0
            if P.kind=='mfma':
                big = P.passes==8
                if C.kind=='mfma':
                    if pw&cr: req=max(req,12 if big else 8)
                    if pw&cc:
                        if P.w==C.srcC and P.mn==C.mn: pass
                        else: req=max(req,10 if big else 6)
                    if (pw&cw) and not (pw&cc): req=max(req,10 if big else 6)
                elif C.kind in VALUK or C.kind in ('ds','vmem'):
                    if pw&(cr|cw): req=max(req,12 if big else 8)
                    if C.kind in VALUK and (set(P.srcC)&cw): req=max(req,7 if big else 3)
            elif P.kind in VALUK:
                vw={x for x in pw if x[0] in 'va'}; sw={x for x in pw if x[0]=='s'}
                if C.kind=='mfma':
                    if vw&(cr|cc): req=max(req,2)
                    if ('s','exec') in sw: req=max(req,4)
                if C.kind=='permlane' and vw&cr: req=max(req,2)
                if C.kind in VALUK and C.dpp and vw&cr: req=max(req,2)
                if C.kind=='readlane' and vw&cr: req=max(req,1)
                if P.kind=='trans' and C.kind in VALUK and C.kind!='trans' and vw&cr: req=max(req,1)
                if P.kind=='trans' and C.kind=='trans' and vw&cr: req=max(req,1)
                if C.kind in VALUK and sw&cr: req=max(req,2)
                if C.kind=='vmem' and sw&cr: req=max(req,5)
                if C.kind=='readlane' and (sw&cr): req=max(req,4)
                if C.kind=='salu' and (sw&cr) and not C.mn.startswith('s_cbranch'): req=max(req,1)
            elif P.kind=='vmem' and P.isstore:
                if set(P.storedata)&cw: req=max(req,2)
            elif P.kind=='salu':
                if ('s','m0') in pw and C.kind=='vmem' and ('s','m0') in cr: req=max(req,1)
                if ('s','exec') in pw and C.kind=='mfma': req=max(req,0)
            if req>d: need=max(need,req-d)
            st=P.states
            if self.physical and P.kind=='mfma' and k>0:
                prev=[x for x in H[max(0,k-2):k] if x.kind=='mfma']
                if prev: st=P.passes if P.passes==4 else 8
                if prev: st=min(p.passes for p in prev)
                if prev and len(H[max(0,k-2):k])==2 and H[k-1].kind!='mfma': st=max(1,st-2)
            d+=st
            if d>=20: break
        return need
    def e(self, text):
        for ln in text.split('\n'):
            ln=ln.strip()
            if not ln or ln.startswith(';'):
                if ln: self.lines.append('  '+ln)
                continue
            if ln.endswith(':'):
                self.label(ln[:-1]); continue
            I=classify(ln)
            n=self._need(I)
            if n>0: self._nop(n)
            self.lines.append('  '+ln); self.hist.append(I); self.count+=1
            if len(self.hist)>64: self.hist=self.hist[-40:]
    def text(self): return '\n'.join(self.lines)+'\n'
```

```python
from asmgen import Asm
from layout import *
from chain import v, ag, Q, f2u
import math

QF=32; KF=64; KM=96; VX=112; RAW=144; VMR=152; S=160; PX=184; PM=188; T=192; LL=200; B1=204; B2=206; ONES=208; TMP=212
def role_attn(a, sc='', sync=True, label='a'):
    e=a.e
    c=(128**-0.5)*math.log2(math.e)
    L=lambda x:'L_%s_%s'%(label,x)
    e('''
v_and_b32 v1, 63, v0
v_and_b32 v2, 15, v1            ; n / j
v_lshrrev_b32 v3, 4, v1         ; g
v_lshlrev_b32 v4, 4, v1         ; lane*16   (Q,K frags)
v_lshlrev_b32 v5, 7, v2
v_lshl_add_u32 v5, v3, 4, v5    ; V: j*128 + g*16   (+w*2048, T2 +64)
v_lshlrev_b32 v6, 3, v1         ; lane*8    (km, vm)
v_lshlrev_b32 v7, 9, v3
v_lshl_add_u32 v7, v2, 4, v7    ; O: g*512 + n*16
v_add_u32 v8, 0x1000, v7
v_add_u32 v9, 0x1000, v4
v_add_u32 v10, 0x1000, v5
; one-hot B1/B2 (K=16): t=n&7 ; hot = ((t>>2)==(g&1))
v_and_b32 v11, 7, v2
v_lshrrev_b32 v12, 2, v11
v_and_b32 v13, 1, v3
v_cmp_eq_u32 vcc, v12, v13
v_and_b32 v11, 3, v11           ; t&3
v_mov_b32 v14, 0x3f80
v_mov_b32 v15, 0x3f800000
v_mov_b32 v16, 0
v_mov_b32 v17, 0
v_cmp_eq_u32 s[60:61], 0, v11
v_cndmask_b32 v16, v16, v14, s[60:61]
v_cmp_eq_u32 s[60:61], 1, v11
v_cndmask_b32 v16, v16, v15, s[60:61]
v_cmp_eq_u32 s[60:61], 2, v11
v_cndmask_b32 v17, v17, v14, s[60:61]
v_cmp_eq_u32 s[60:61], 3, v11
v_cndmask_b32 v17, v17, v15, s[60:61]
v_cndmask_b32 v16, 0, v16, vcc
v_cndmask_b32 v17, 0, v17, vcc
s_mov_b32 s34, -1
s_mov_b32 s35, 0
s_mov_b32 s36, 0
s_mov_b32 s37, -1
v_cndmask_b32 v{B1}, 0, v16, s[34:35]
v_cndmask_b32 v{B1b}, 0, v17, s[34:35]
v_cndmask_b32 v{B2}, 0, v16, s[36:37]
v_cndmask_b32 v{B2b}, 0, v17, s[36:37]
v_mov_b32 v{O0}, 0x3f803f80
v_mov_b32 v{O1}, 0x3f803f80
v_mov_b32 v{O2}, 0x3f803f80
v_mov_b32 v{O3}, 0x3f803f80
; causal masks: thr = n - 8g (+16 qt) ; keep if c <= thr
v_lshlrev_b32 v11, 3, v3
v_sub_u32 v11, v2, v11          ; n-8g
v_add_u32 v12, 16, v11
s_mov_b32 s32, {c}
s_mov_b32 s33, {c}
v_mov_b32 v18, 0xf149f2ca       ; -1e30
'''.format(B1=B1,B1b=B1+1,B2=B2,B2b=B2+1,O0=ONES,O1=ONES+1,O2=ONES+2,O3=ONES+3,c=f2u(c)))
    for qt in range(2):
        for cc in range(8):
            sr=64+2*(qt*8+cc)
            e('v_cmp_le_i32 s[%d:%d], %d, v%d'%(sr,sr+1,cc,11+qt))
    e('s_mov_b32 s53, s51          ; segment')
    a.label(L('item'))
    if sync:
        e('''
s_lshl_b32 s54, s50, 7
s_add_u32 s54, s54, {prog}
s_lshr_b32 s55, s53, 2
s_lshl_b32 s55, s55, 7
s_add_u32 s56, s55, {fq}
s_add_u32 s55, s55, {fkv}
v_mov_b32 v20, s54
v_mov_b32 v21, s55
v_mov_b32 v22, s56
s_mov_b32 s57, 0
{Lw}:
global_load_dword v23, v20, s[8:9] sc1
global_load_dword v24, v21, s[8:9] sc1
global_load_dword v25, v22, s[8:9] sc1
s_waitcnt vmcnt(0)
v_readfirstlane_b32 s58, v23
v_readfirstlane_b32 s59, v24
v_readfirstlane_b32 s62, v25
s_cmp_gt_u32 s58, s53
s_cselect_b32 s58, 1, 0
s_cmp_ge_u32 s59, 128
s_cselect_b32 s59, s58, 0
s_cmp_ge_u32 s62, 64
s_cselect_b32 s59, s59, 0
s_cmp_eq_u32 s59, 1
s_cbranch_scc1 {Lg}
s_add_u32 s57, s57, 1
s_cmp_gt_u32 s57, 300000
s_cbranch_scc1 {Lexit}
s_sleep 8
s_branch {Lw}
{Lg}:
'''.format(prog=FL_PROG,fq=FL_P+2048,fkv=FL_P,Lw=L('wait'),Lg=L('go'),Lexit=L('exit')))
    e('''
s_lshl_b32 s54, s53, 5
s_add_u32 s54, s54, s50         ; s*32+h
s_lshl_b32 s55, s54, 13
s_add_u32 s40, s8, s55
s_addc_u32 s41, s9, 0
s_add_u32 s42, s40, {qx}
s_addc_u32 s43, s41, 0
s_add_u32 s44, s40, {vx}
s_addc_u32 s45, s41, 0
s_add_u32 s40, s40, {kx}
s_addc_u32 s41, s41, 0
s_lshl_b32 s55, s54, 11
s_add_u32 s46, s8, s55
s_addc_u32 s47, s9, 0
s_add_u32 s48, s46, {vm}
s_addc_u32 s49, s47, 0
s_add_u32 s46, s46, {km}
s_addc_u32 s47, s47, 0
'''.format(qx=WS_QX,vx=WS_VX,kx=WS_KX,km=WS_KM,vm=WS_VM))
    ld=' sc1' if sync else ''
    for w in range(4): e('global_load_dwordx2 %s, v6, s[46:47] offset:%d%s'%(v(RAW+2*w,2),w*512,ld))
    for f in range(8): e('global_load_dwordx4 %s, v%d, s[42:43] offset:%d%s'%(v(QF+4*f,4),4 if f<4 else 9,(f&3)*1024,ld))
    for f in range(8): e('global_load_dwordx4 %s, v%d, s[40:41] offset:%d%s'%(v(KF+4*f,4),4 if f<4 else 9,(f&3)*1024,ld))
    for w in range(4):
        for t in range(2):
            e('global_load_dwordx4 %s, v%d, s[44:45] offset:%d%s'%(v(VX+8*w+4*t,4),5 if w<2 else 10,(w&1)*2048+t*64,ld))
    for w in range(4): e('global_load_dwordx2 %s, v6, s[48:49] offset:%d%s'%(v(VMR+2*w,2),w*512,ld))
    e('s_waitcnt vmcnt(28)')
    for w in range(4):
        e('v_mfma_f32_16x16x16_bf16 %s, %s, %s, 0'%(v(T,4),v(RAW+2*w,2),v(B1,2)))
        e('v_mfma_f32_16x16x16_bf16 %s, %s, %s, 0'%(v(T+4,4),v(RAW+2*w,2),v(B2,2)))
        for r in range(4): e('v_cvt_pk_bf16_f32 v%d, v%d, v%d'%(KM+4*w+r,T+r,T+4+r))
    e('s_waitcnt vmcnt(12)')
    for qt in range(2):
        for ti,kb in enumerate((KF,KF+16,KM)):
            acc=S+12*qt+4*ti
            for ks in range(4):
                e('v_mfma_f32_16x16x32_bf16 %s, %s, %s, %s'%(v(acc,4),v(kb+4*ks,4),v(QF+16*qt+4*ks,4),'0' if ks==0 else v(acc,4)))
    e('s_waitcnt vmcnt(0)')
    ob=lambda w:(7 if w<2 else 8)
    e('''
s_lshl_b32 s55, s53, 18
s_lshl_b32 s56, s50, 13
s_add_u32 s55, s55, s56
s_add_u32 s55, s55, {o}
s_add_u32 s40, s8, s55
s_addc_u32 s41, s9, 0
'''.format(o=WS_O))
    for qt in range(2):
        s0=S+12*qt
        for tau in range(2):
            for r in range(4):
                sr=64+2*(qt*8+4*tau+r)
                e('v_cndmask_b32 v%d, v18, v%d, s[%d:%d]'%(s0+4*tau+r,s0+4*tau+r,sr,sr+1))
        M_=TMP; T_=TMP+1; NMC=TMP+2
        e('v_max3_f32 v%d, v%d, v%d, v%d'%(T_,s0+8,s0+9,s0+10))
        e('v_max3_f32 v%d, v%d, v%d, v%d'%(M_,s0,s0+1,s0+2))
        e('v_max3_f32 v%d, v%d, v%d, v%d'%(T_,T_,s0+11,s0+3))
        e('v_max3_f32 v%d, v%d, v%d, v%d'%(M_,M_,s0+4,s0+5))
        e('v_max3_f32 v%d, v%d, v%d, v%d'%(T_,T_,s0+6,s0+7))
        e('v_max_f32 v%d, v%d, v%d'%(M_,M_,T_))
        e('v_mov_b32 v%d, v%d'%(T_,M_))
        e('v_permlane32_swap_b32 v%d, v%d'%(M_,T_))
        e('v_max_f32 v%d, v%d, v%d'%(M_,M_,T_))
        e('v_mov_b32 v%d, v%d'%(T_,M_))
        e('v_permlane16_swap_b32 v%d, v%d'%(M_,T_))
        e('v_max_f32 v%d, v%d, v%d'%(M_,M_,T_))
        e('v_mul_f32 v%d, s32, v%d'%(NMC,M_))
        for r in range(s0,s0+12,2):
            e('v_pk_fma_f32 v[%d:%d], v[%d:%d], s[32:33], v[%d:%d] op_sel_hi:[1,1,0] neg_lo:[0,0,1] neg_hi:[0,0,1]'%(r,r+1,r,r+1,NMC,NMC+1))
        for r in range(s0,s0+12): e('v_exp_f32 v%d, v%d'%(r,r))
        for i in range(4): e('v_cvt_pk_bf16_f32 v%d, v%d, v%d'%(PX+i,s0+2*i,s0+2*i+1))
        PM1=PM; PM2=PM+2
        e('v_cvt_pk_bf16_f32 v%d, v%d, v%d'%(PM2,s0+8,s0+9))
        e('v_cvt_pk_bf16_f32 v%d, v%d, v%d'%(PM2+1,s0+10,s0+11))
        e('v_cndmask_b32 v%d, 0, v%d, s[34:35]'%(PM1,PM2))
        e('v_cndmask_b32 v%d, 0, v%d, s[34:35]'%(PM1+1,PM2+1))
        e('v_cndmask_b32 v%d, 0, v%d, s[36:37]'%(PM2,PM2))
        e('v_cndmask_b32 v%d, 0, v%d, s[36:37]'%(PM2+1,PM2+1))
        e('v_mfma_f32_16x16x32_bf16 %s, %s, %s, 0'%(v(LL,4),v(ONES,4),v(PX,4)))
        e('v_mfma_f32_16x16x16_bf16 %s, %s, %s, %s'%(v(LL,4),v(ONES,2),v(PM1,2),v(LL,4)))
        TS=[T, 216]
        def pv(w):
            t0=TS[w&1]
            e('v_mfma_f32_16x16x32_bf16 %s, %s, %s, 0'%(v(t0,4),v(VX+8*w,4),v(PX,4)))
            e('v_mfma_f32_16x16x32_bf16 %s, %s, %s, 0'%(v(t0+4,4),v(VX+8*w+4,4),v(PX,4)))
            e('v_mfma_f32_16x16x16_bf16 %s, %s, %s, %s'%(v(t0,4),v(VMR+2*w,2),v(PM1,2),v(t0,4)))
            e('v_mfma_f32_16x16x16_bf16 %s, %s, %s, %s'%(v(t0+4,4),v(VMR+2*w,2),v(PM2,2),v(t0+4,4)))
        def fin(w):
            t0=TS[w&1]; o=224+4*(w&1)
            for r in (t0,t0+2,t0+4,t0+6):
                e('v_pk_mul_f32 v[%d:%d], v[%d:%d], v[%d:%d] op_sel_hi:[1,0]'%(r,r+1,r,r+1,LL,LL+1))
            for r in range(4): e('v_cvt_pk_bf16_f32 v%d, v%d, v%d'%(o+r,t0+r,t0+4+r))
            e('global_store_dwordx4 v%d, %s, s[40:41] offset:%d%s'%(ob(w),v(o,4),(w&1)*2048+qt*256,sc))
        pv(0)
        e('v_rcp_f32 v%d, v%d'%(LL,LL))
        pv(1); fin(0); pv(2); fin(1); pv(3); fin(2); fin(3)
    if sync:
        e('''
s_waitcnt vmcnt(0)
s_lshl_b32 s55, s53, 7
s_add_u32 s55, s55, {at}
v_mov_b32 v20, s55
v_mov_b32 v21, 1
s_mov_b64 exec, 1
global_atomic_add v20, v21, s[8:9] sc1
s_mov_b64 exec, -1
'''.format(at=FL_AT))
    e('s_add_u32 s53, s53, s52\ns_cmp_lt_u32 s53, 64')
    a.fence()
    e('s_cbranch_scc1 %s'%L('item'))
    a.label(L('exit'))
```

```python
from asmgen import Asm
from layout import *
import struct, math

L_M=0; L_K0=8192; L_K1=16384; L_Q=24576; L_KT=L_Q+2176; L_O=28928; L_TMP=30976; L_WO=32768

class Q:
    def __init__(s, asm, name, maxv): s.a=asm; s.name=name; s.q=[]; s.maxv=maxv
    def issue(s, tag): s.q.append(tag)
    def wait(s, tag):
        if tag not in s.q: return
        i=s.q.index(tag); n=len(s.q)-1-i
        n=min(n,s.maxv)
        s.a.e('s_waitcnt %s(%d)'%(s.name,n)); s.q=s.q[len(s.q)-n:] if n>0 else []
    def waitall(s):
        s.a.e('s_waitcnt %s(0)'%s.name); s.q=[]
    def reset(s): s.q=[]

def f2u(x): return struct.unpack('<I',struct.pack('<f',x))[0]

def rowconst(kb,m):
    rho=2*kb+(m>>2); u=rho&3
    return 128*(rho>>3)+64*((rho>>2)&1)+32*(m&1)+16*(u&1)+(u>>1)+2*((m&3)>>1)
for kb in range(16):
    for m in range(8):
        for gb in range(4):
            assert pi_pos(32*kb+16*(m>>2)+4*gb+(m&3))==rowconst(kb,m)+4*gb

def v(a,n=1): return 'v%d'%a if n==1 else 'v[%d:%d]'%(a,a+n-1)
def ag(a,n=1): return 'a%d'%a if n==1 else 'a[%d:%d]'%(a,a+n-1)

IDX=2; aM=3; aWo=4; aQw=5; aQr=6; aOw=7; aKr=8; aO1=0; aO2=1; aO3=9
gA0=10; gA1=11; gAr=12; gBw=13; gB0=14; gB1=15; gK=16; gV=17; gKM=18; gVM=19
ONES=20; BSEL=24; TAGB=30; MASKB=31
VX1=32; AF=36; ACCQ=52; ACCK=56; ACCV=60; QF=64; KF=80; KXR=96; SX0=112; SX1=116; SM=120; VX2=124
WQ=lambda kb: ag(8*kb,8)
WK=lambda kb: ag(128+8*kb,8)
WV=lambda kb: v(128+8*kb,8)

def chain_setup(a, st, lay=0, swz=0, sync=False):
    e=a.e
    e('''
v_and_b32 v1, 63, v0
v_and_b32 v32, 15, v1          ; j / n / i
v_lshrrev_b32 v33, 4, v1       ; g
v_bfe_u32 v34, v1, 4, 1        ; rh
v_lshrrev_b32 v35, 5, v1       ; half
''')
    e('''
v_lshlrev_b32 v36, 4, v0       ; tid*16
s_lshl_b32 s40, s5, 13
v_add_u32 v37, s40, v36
v_mov_b32 v40, -1
v_mov_b32 v41, -1
v_mov_b32 v42, -1
v_mov_b32 v43, -1
v_add_u32 v38, 0x1000, v37
v_add_u32 v39, 0x40000, v37
v_add_u32 v44, 0x41000, v37
global_store_dwordx4 v37, v[40:43], s[8:9]{st}
global_store_dwordx4 v38, v[40:43], s[8:9]{st}
global_store_dwordx4 v39, v[40:43], s[8:9]{st}
global_store_dwordx4 v44, v[40:43], s[8:9]{st}
s_lshl_b32 s40, s5, 8
s_add_u32 s40, s40, {hb}
v_lshlrev_b32 v45, 2, v1
v_add_u32 v45, s40, v45
v_add_u32 v46, 0x2000, v45
global_store_dword v45, v40, s[8:9]{st}
global_store_dword v46, v40, s[8:9]{st}
; zero the flags area: 1 KB per chain WG (256 threads x 4 B)
s_lshl_b32 s40, s5, 10
s_add_u32 s40, s40, {fl}
v_lshlrev_b32 v45, 2, v0
v_add_u32 v45, s40, v45
v_mov_b32 v46, 0
global_store_dword v45, v46, s[8:9] sc1
s_waitcnt vmcnt(0)
s_barrier
'''.format(st=st,hb=WS_HOPB,fl=WS_FLAGS))
    e('''
s_cmp_eq_u32 s4, 0
s_cbranch_scc0 L_c_noready
v_mov_b32 v36, %d
v_mov_b32 v37, 1
s_mov_b64 exec, 1
global_atomic_add v36, v37, s[10:11] sc1
s_mov_b64 exec, -1
L_c_noready:
''' % DBG_READY)
    e('''
s_lshl_b32 s40, s5, 8          ; h*256
s_lshl_b32 s41, s4, 6          ; 64*w
s_add_u32 s40, s40, s41
v_lshlrev_b32 v36, 2, v32      ; 4j
v_lshlrev_b32 v37, 15, v33     ; gb*32768
v_add3_u32 v36, v36, v37, s40  ; voffset
''')
    for mat,(ka,dst) in enumerate(((KA_WQ,lambda r:'a%d'%r),(KA_WK,lambda r:'a%d'%(128+r)),(KA_WV,lambda r:'v%d'%(128+r)))):
        e('s_load_dwordx2 s[12:13], s[0:1], %d'%ka)
        e('s_waitcnt lgkmcnt(0)')
        e('s_mov_b32 s14, 0x400000\ns_mov_b32 s15, 0x00020000')
        for kb in range(16):
            for m in range(8):
                e('s_mov_b32 s41, %d'%(rowconst(kb,m)*8192))
                e('buffer_load_dword %s, v36, s[12:15], s41 offen'%dst(8*kb+m))
    e('s_load_dwordx2 s[12:13], s[0:1], %d'%KA_WO)
    e('''
s_lshl_b32 s40, s5, 17         ; h*131072
s_lshl_b32 s41, s4, 8          ; 128*w*2
s_add_u32 s40, s40, s41
v_lshlrev_b32 v37, 2, v32      ; 4j
v_lshlrev_b32 v38, 12, v33     ; gb*4*1024
v_add3_u32 v37, v37, v38, s40
v_lshlrev_b32 {aWo}, 4, v1
s_lshl_b32 s41, s4, 15
s_add_u32 s41, s41, {lwo}
v_add_u32 {aWo}, s41, {aWo}
s_waitcnt lgkmcnt(0)
s_mov_b32 s14, 0x400000
'''.format(aWo=v(aWo),lwo=L_WO))
    for b in range(4):
        e('s_add_u32 s41, s4, %d\ns_and_b32 s41, s41, 3\ns_lshl_b32 s%d, s41, 15'%(b,44+b))
    for t in range(4):
        base=64+32*(t&1)
        for b in range(4):
            for hh in range(2):
                for mm in range(4):
                    e('s_add_u32 s41, s%d, %d'%(44+b,(16*hh+mm)*1024+t*64))
                    e('buffer_load_dword v%d, v37, s[12:15], s41 offen'%(base+(b*2+hh)*4+mm))
        if t>=1:
            e('s_waitcnt vmcnt(32)')
            pb=64+32*((t-1)&1)
            for b in range(4):
                for hh in range(2):
                    e('ds_write_b128 %s, %s offset:%d'%(v(aWo),v(pb+(b*2+hh)*4,4),((t-1)*4+b)*2048+hh*1024))
            e('s_waitcnt lgkmcnt(0)')
    e('s_waitcnt vmcnt(0)')
    pb=64+32
    for b in range(4):
        for hh in range(2):
            e('ds_write_b128 %s, %s offset:%d'%(v(aWo),v(pb+(b*2+hh)*4,4),(3*4+b)*2048+hh*1024))
    e('s_load_dwordx2 s[12:13], s[0:1], %d'%KA_MEM0)
    e('''
v_and_b32 v64, 7, v0           ; row
v_lshrrev_b32 v65, 3, v0       ; q8 (0..31)
v_and_b32 v66, 1, v65          ; oct
v_lshrrev_b32 v67, 1, v65      ; rho (0..15)
v_lshrrev_b32 v68, 3, v67      ; rho>>3
v_lshlrev_b32 v68, 7, v68      ; 128*
v_bfe_u32 v69, v67, 2, 1
v_lshlrev_b32 v69, 6, v69      ; 64*
v_add_u32 v68, v68, v69
v_and_b32 v69, 1, v67
v_lshlrev_b32 v69, 4, v69      ; 16*(u&1)
v_add_u32 v68, v68, v69
v_lshlrev_b32 v69, 3, v66      ; 8*oct
v_add_u32 v68, v68, v69
v_bfe_u32 v69, v67, 1, 1       ; u>>1
v_add_u32 v68, v68, v69        ; D0
v_lshlrev_b32 v68, 1, v68      ; bytes
v_lshlrev_b32 v64, 10, v64     ; row*1024
v_add_u32 v68, v68, v64
s_waitcnt lgkmcnt(0)
s_mov_b32 s14, 8192
''')
    for hlf in range(2):
        for n in range(8):
            e('buffer_load_ushort v%d, v68, s[12:15], 0 offen offset:%d'%(72+8*hlf+n, hlf*512+(32*(n&1)+2*(n>>1))*2))
    e('s_waitcnt vmcnt(0)')
    for hlf in range(2):
        for d in range(4):
            e('v_lshl_or_b32 v%d, v%d, 16, v%d'%(96+4*hlf+d, 72+8*hlf+2*d+1, 72+8*hlf+2*d))
    e('''
v_lshlrev_b32 {gB0}, 4, v0
v_add_u32 {gB1}, 0x1000, {gB0}
ds_write_b128 {gB0}, v[96:99]
ds_write_b128 {gB1}, v[100:103]
; idx
v_mov_b32 {IDX}, 0x8888
v_mov_b32 v64, 0xdddd
v_cmp_le_u32 vcc, 8, v32
v_cndmask_b32 {IDX}, {IDX}, v64, vcc
; aM = g*128 + (i&7)*16
v_and_b32 v64, 7, v32
v_lshlrev_b32 v64, 4, v64
v_lshlrev_b32 v65, 7, v33
v_add_u32 {aM}, v64, v65
; aQw = L_Q + w*544 + half*272 + rh*128 + j*8
s_mul_i32 s40, s4, 544
s_add_u32 s40, s40, {lq}
v_mul_u32_u24 v64, 272, v35
v_lshlrev_b32 v65, 7, v34
v_lshlrev_b32 v66, 3, v32
v_add3_u32 v64, v64, v65, v66
v_add_u32 {aQw}, s40, v64
; aQr = L_Q + (m&1)*272 + (c&1)*128 + (4g + (m>>1))*8 ; m=(l>>2)&3, c=l&3
v_bfe_u32 v64, v1, 2, 1
v_mul_u32_u24 v64, 272, v64
v_and_b32 v65, 1, v1
v_lshlrev_b32 v65, 7, v65
v_bfe_u32 v66, v1, 3, 1        ; m>>1
v_lshl_add_u32 v66, v33, 2, v66
v_lshlrev_b32 v66, 3, v66
v_add3_u32 v64, v64, v65, v66
v_add_u32 {aQr}, {lq}, v64
; aOw = L_O + w*512 + aM
s_lshl_b32 s40, s4, 9
s_add_u32 s40, s40, {lo}
v_add_u32 {aOw}, s40, {aM}
; aKr = L_K0 + lane*16
v_lshlrev_b32 v64, 4, v1
v_add_u32 {aKr}, {lk0}, v64
; global offsets
; gA0 = (8w + 2*half + (j>>3))*8192 + (2rh+oct)*2048 + h*64 + (j&3)*16
v_lshrrev_b32 v64, 3, v32
v_lshl_add_u32 v64, v35, 1, v64
s_lshl_b32 s40, s4, 3
v_add_u32 v64, s40, v64
v_lshlrev_b32 v64, 13, v64
v_bfe_u32 v65, v32, 2, 1
v_lshl_add_u32 v65, v34, 1, v65
v_lshlrev_b32 v65, {wsh}, v65
v_and_b32 v66, 3, v32
v_lshlrev_b32 v66, 4, v66
v_add3_u32 v64, v64, v65, v66
s_lshl_b32 s40, s5, {hsh}
v_add_u32 {gA0}, s40, v64
v_add_u32 {gA1}, 0x8000, {gA0}
; gAr = h*8192 + w*2048 + g*256 + (i&3)*64 + (i>>2)*16
v_lshlrev_b32 v64, {gsh}, v33
v_and_b32 v65, 3, v32
v_lshlrev_b32 v65, {ssh}, v65
v_lshrrev_b32 v66, 2, v32
v_lshlrev_b32 v66, 4, v66
v_add3_u32 v64, v64, v65, v66
s_lshl_b32 s40, s5, 13
s_lshl_b32 s41, s4, {wsh}
s_add_u32 s40, s40, s41
v_add_u32 {gAr}, s40, v64
; gBw = h*256 + (w&1)*128 + (w>>1)*64 + n*16 + g*4
s_lshl_b32 s40, s5, 8
s_and_b32 s41, s4, 1
s_lshl_b32 s41, s41, 7
s_add_u32 s40, s40, s41
s_lshr_b32 s41, s4, 1
s_lshl_b32 s41, s41, 6
s_add_u32 s40, s40, s41
v_lshlrev_b32 v64, 4, v32
v_lshl_add_u32 v64, v33, 2, v64
v_add_u32 {gBw}, s40, v64
; gK = w*2048 + lane*16
s_lshl_b32 s40, s4, 11
v_lshlrev_b32 v64, 4, v1
v_add_u32 {gK}, s40, v64
; gV = w*2048 + j*128 + g*16
v_lshlrev_b32 v64, 7, v32
v_lshl_add_u32 v64, v33, 4, v64
v_add_u32 {gV}, s40, v64
s_lshl_b32 s40, s4, 9
; gVM = w*512 + lane*8
v_lshlrev_b32 v64, 3, v1
v_add_u32 {gVM}, s40, v64
; ones
v_mov_b32 v20, 0x3f803f80
v_mov_b32 v21, 0x3f803f80
v_mov_b32 v22, 0x3f803f80
v_mov_b32 v23, 0x3f803f80
; bsel window [Z,Z,X0,X1,Z,Z] at v24..v29
v_mov_b32 v24, 0
v_mov_b32 v25, 0
v_mov_b32 v28, 0
v_mov_b32 v29, 0
v_and_b32 v64, 3, v32
v_mov_b32 v65, 0x3f80
v_mov_b32 v66, 0x3f800000
v_mov_b32 v26, 0
v_mov_b32 v27, 0
v_cmp_eq_u32 vcc, 0, v64
v_cndmask_b32 v26, v26, v65, vcc
v_cmp_eq_u32 vcc, 1, v64
v_cndmask_b32 v26, v26, v66, vcc
v_cmp_eq_u32 vcc, 2, v64
v_cndmask_b32 v27, v27, v65, vcc
v_cmp_eq_u32 vcc, 3, v64
v_cndmask_b32 v27, v27, v66, vcc
; maskB: g==0 ? ~1 : ~0
v_mov_b32 {MASKB}, -1
v_mov_b32 v64, -2
v_cmp_eq_u32 vcc, 0, v33
v_cndmask_b32 {MASKB}, {MASKB}, v64, vcc
; aO1..3 = L_O + ((w+b)&3)*512 + aM   (written last: v0, v1 get overwritten)
s_add_u32 s40, s4, 3
s_and_b32 s40, s40, 3
s_lshl_b32 s40, s40, 9
s_add_u32 s40, s40, {lo}
v_add_u32 {aO3}, s40, {aM}
s_add_u32 s40, s4, 2
s_and_b32 s40, s40, 3
s_lshl_b32 s40, s40, 9
s_add_u32 s40, s40, {lo}
v_add_u32 {aO2}, s40, {aM}
s_add_u32 s40, s4, 1
s_and_b32 s40, s40, 3
s_lshl_b32 s40, s40, 9
s_add_u32 s40, s40, {lo}
v_add_u32 {aO1}, s40, {aM}
'''.format(gB0=v(gB0),gB1=v(gB1),IDX=v(IDX),aM=v(aM),aQw=v(aQw),aQr=v(aQr),aOw=v(aOw),aKr=v(aKr),gA0=v(gA0),gA1=v(gA1),
           gAr=v(gAr),gBw=v(gBw),gK=v(gK),gV=v(gV),gVM=v(gVM),MASKB=v(MASKB),aO1=v(aO1),aO2=v(aO2),aO3=v(aO3),
           lq=L_Q,lo=L_O,lk0=L_K0,
           wsh=(11 if lay==0 else 6),hsh=(6 if lay==0 else 8),gsh=(8 if lay==0 else 10),ssh=(6 if lay==0 else 8)))
    c=(128**-0.5)*math.log2(math.e)
    e('''
s_add_u32 s16, s8, {ha}
s_addc_u32 s17, s9, 0
s_add_u32 s18, s8, {hb}
s_addc_u32 s19, s9, 0
s_lshl_b32 s40, s5, 13
s_add_u32 s20, s8, {kx}
s_addc_u32 s21, s9, 0
s_add_u32 s20, s20, s40
s_addc_u32 s21, s21, 0         ; KX seg0 head h
s_add_u32 s22, s8, {vx}
s_addc_u32 s23, s9, 0
s_add_u32 s22, s22, s40
s_addc_u32 s23, s23, 0
s_lshl_b32 s40, s5, 11
s_add_u32 s24, s8, {km}
s_addc_u32 s25, s9, 0
s_add_u32 s24, s24, s40
s_addc_u32 s25, s25, 0
s_add_u32 s26, s8, {vm}
s_addc_u32 s27, s9, 0
s_add_u32 s26, s26, s40
s_addc_u32 s27, s27, 0
s_mov_b32 s28, 0
s_mov_b32 s29, 0
s_mov_b32 s32, {c}
s_mov_b32 s33, {c}
s_mov_b32 s34, -1
s_mov_b32 s35, 0
s_mov_b32 s36, 0
s_mov_b32 s37, -1
s_mov_b32 s38, 0x000f000f
s_mov_b32 s39, 0x000f000f
s_mov_b32 s30, 0x00ff00ff
s_mov_b32 s31, 0x00ff00ff
s_lshl_b32 s43, s4, 11         ; wave*2048 (K DMA lds offset)
'''.format(ha=WS_HOPA,hb=WS_HOPB,kx=WS_KX,vx=WS_VX,km=WS_KM,vm=WS_VM,c=f2u(c)))
    for r in range(ACCQ,ACCQ+12): e('v_mov_b32 v%d, 0'%r)
    e('''
s_mov_b32 s44, 0
L_c_waitready:
v_mov_b32 v64, {rdy}
global_load_dword v65, v64, s[10:11] sc1
s_waitcnt vmcnt(0)
v_readfirstlane_b32 s40, v65
s_cmp_ge_u32 s40, 32
s_cbranch_scc1 L_c_ready
s_add_u32 s44, s44, 1
s_cmp_gt_u32 s44, 200000
s_cbranch_scc1 L_c_done
s_sleep 4
s_branch L_c_waitready
L_c_ready:
'''.format(rdy=DBG_READY))
    if sync:
        e('''
L_c_waitkv:
v_mov_b32 v64, {f}
global_load_dword v65, v64, s[8:9] sc1
s_waitcnt vmcnt(0)
v_readfirstlane_b32 s40, v65
s_cmp_ge_u32 s40, 128
s_cbranch_scc1 L_c_kvok
s_add_u32 s44, s44, 1
s_cmp_gt_u32 s44, 200000
s_cbranch_scc1 L_c_done
s_sleep 4
s_branch L_c_waitkv
L_c_kvok:
'''.format(f=FL_P))
    e('''
s_add_u32 m0, s43, {k0}
s_nop 0
global_load_lds_dwordx4 {gK}, s[20:21] sc1
global_load_lds_dwordx4 {gK}, s[20:21] offset:1024 sc1
s_add_u32 s20, s20, 0x40000
s_addc_u32 s21, s21, 0
v_mov_b32 v18, 128
s_waitcnt vmcnt(0) lgkmcnt(0)
s_barrier
'''.format(k0=L_K0,gK=v(gK)))

def chain_loop(a, st, nsteps=64, ts=False, dA=0, dB=0, lay=0, stub=0, ackA=False, ackB=False, dA2=0, dB2=0, cnt=False, sync=False):
    e=a.e
    lg=Q(a,'lgkmcnt',15); vm=Q(a,'vmcnt',63)
    tsn=[0]
    def TS(name=None):
        if not ts: return
        i=tsn[0]; tsn[0]+=1
        assert i<22
        e('s_memtime s[%d:%d]'%(50+2*i,51+2*i))
        a.tsnames.append(name)
    a.tsnames=[]
    def delay(n):
        for _ in range(n//4): e('v_mov_b32 v34, v35')
    if ts or cnt: e('s_mov_b32 s48, 0\ns_mov_b32 s49, 0')
    a.fence()
    a.label('L_c_step')
    TS('top')
    if ts: e('s_memrealtime s[96:97]')
    if stub:
        delay(stub)
        e('s_cmp_eq_u32 s28, %d\ns_cbranch_scc1 L_c_done'%(nsteps-1))
        e('s_branch L_c_stub')
    if sync:
        e('v_readfirstlane_b32 s40, v18\ns_cmp_ge_u32 s40, 128\ns_cbranch_scc1 L_c_kvgo')
        a.label('L_c_kvspin')
        e('s_add_u32 s41, s28, 1\ns_lshr_b32 s41, s41, 2\ns_min_u32 s41, s41, 15\ns_lshl_b32 s41, s41, 7\ns_add_u32 s41, s41, %d'%FL_P)
        e('v_mov_b32 v34, s41\nglobal_load_dword v18, v34, s[8:9] sc1\ns_waitcnt vmcnt(0)\nv_readfirstlane_b32 s40, v18')
        e('s_add_u32 s44, s44, 1\ns_cmp_gt_u32 s44, 200000\ns_cbranch_scc1 L_c_done\ns_cmp_ge_u32 s40, 128\ns_cbranch_scc0 L_c_kvspin')
        a.label('L_c_kvgo')
    FRB=[KXR,QF,KF,AF]
    def fr(kb): return FRB[kb>>2]+4*(kb&3)
    def rdF(kb):
        e('ds_read_b128 %s, %s offset:%d'%(v(fr(kb),4),v(aM),L_M+kb*512)); lg.issue(('A',kb))
    for k in range(4): rdF(k)
    e('s_and_b32 s40, s28, 1\ns_lshl_b32 s40, s40, 13\ns_sub_u32 s40, %d, s40\ns_add_u32 m0, s43, s40'%L_K1)
    for kb in range(16):
        lg.wait(('A',kb))
        e('v_smfmac_f32_16x16x64_bf16 %s, %s, %s, %s'%(v(ACCQ,4),v(fr(kb),4),WQ(kb),v(IDX)))
        if kb<6:
            rdF(4+2*kb); rdF(5+2*kb)
        e('v_smfmac_f32_16x16x64_bf16 %s, %s, %s, %s'%(v(ACCK,4),v(fr(kb),4),WK(kb),v(IDX)))
        if kb==6: e('global_load_dwordx4 %s, %s, s[22:23] sc1'%(v(VX1,4),v(gV)))
        if kb==7: e('global_load_dwordx4 %s, %s, s[22:23] offset:64 sc1'%(v(VX2,4),v(gV)))
        if kb==8: e('global_load_lds_dwordx4 %s, s[20:21] sc1'%v(gK))
        if kb==9: e('global_load_lds_dwordx4 %s, s[20:21] offset:1024 sc1'%v(gK))
        if kb==10: e('s_add_u32 s20, s20, 0x40000\ns_addc_u32 s21, s21, 0')
        if sync and kb==12:
            e('s_lshl_b32 s41, s5, 7\ns_add_u32 s41, s41, %d\nv_mov_b32 v113, s41\nv_mov_b32 v114, s28'%FL_PROG)
            e('s_mov_b64 exec, 1\nglobal_store_dword v113, v114, s[8:9] sc1\ns_mov_b64 exec, -1')
        if sync and kb==13:
            e('s_add_u32 s41, s28, 2\ns_lshr_b32 s41, s41, 2\ns_min_u32 s41, s41, 15\ns_lshl_b32 s41, s41, 7\ns_add_u32 s41, s41, %d'%FL_P)
            e('v_mov_b32 v112, s41')
        if sync and kb==14: e('global_load_dword v18, v112, s[8:9] sc1')
        if kb==11: e('s_add_u32 s22, s22, 0x40000\ns_addc_u32 s23, s23, 0')
    TS('QK')
    QP=SX0; KP=SX0+2
    def Vs(kb):
        e('v_smfmac_f32_16x16x64_bf16 %s, %s, %s, %s'%(v(ACCV,4),v(fr(kb),4),WV(kb),v(IDX)))
    def rdQ(base,off,ks,tag):
        for hh in range(2):
            e('ds_read_b64_tr_b16 %s, %s offset:%d'%(v(base+4*ks+2*hh,2),v(aQr),off+ks*544+hh*16)); lg.issue((tag,ks,hh))
    order=[0,4,1,5,2,6,3,7]
    kxslot={f:i%4 for i,f in enumerate(order)}
    def rdK(f):
        e('ds_read_b128 %s, %s offset:%d'%(v(KXR+4*kxslot[f],4),v(aKr),f*1024)); lg.issue(('K',f))
    def Sx(f,first):
        ks=f&3; tau=f>>2
        lg.wait(('K',f)); lg.wait(('q',ks,1))
        acc=SX0 if tau==0 else SX1
        e('v_mfma_f32_16x16x32_bf16 %s, %s, %s, %s'%(v(acc,4),v(KXR+4*kxslot[f],4),v(QF+4*ks,4),'0' if first else v(acc,4)))
    def Sm(ks):
        lg.wait(('k',ks,1))
        e('v_mfma_f32_16x16x32_bf16 %s, %s, %s, %s'%(v(SM,4),v(KF+4*ks,4),v(QF+4*ks,4),'0' if ks==0 else v(SM,4)))
    Vs(0); Vs(1)
    e('v_cvt_pk_bf16_f32 %s, %s, %s'%(v(QP),v(ACCQ),v(ACCQ+1)))
    Vs(2)
    e('v_cvt_pk_bf16_f32 %s, %s, %s'%(v(QP+1),v(ACCQ+2),v(ACCQ+3)))
    e('ds_write_b64 %s, %s'%(v(aQw),v(QP,2))); lg.issue('qw')
    Vs(3)
    e('v_cvt_pk_bf16_f32 %s, %s, %s'%(v(KP),v(ACCK),v(ACCK+1)))
    rdK(0)
    Vs(4)
    e('v_cvt_pk_bf16_f32 %s, %s, %s'%(v(KP+1),v(ACCK+2),v(ACCK+3)))
    e('ds_write_b64 %s, %s offset:2176'%(v(aQw),v(KP,2))); lg.issue('kw')
    rdK(4)
    Vs(5)
    rdK(1); rdK(5)
    e('global_store_dwordx2 %s, %s, s[24:25] sc1'%(v(gVM),v(KP,2)))
    Vs(6); Vs(7)
    lg.wait('kw')
    TS('prebar')
    e('s_barrier')
    rdQ(QF,0,0,'q'); Vs(8); rdQ(QF,0,1,'q'); Vs(9); rdQ(QF,0,2,'q'); Vs(10); rdQ(QF,0,3,'q'); Vs(11)
    rdQ(KF,2176,0,'k'); Vs(12); rdQ(KF,2176,1,'k'); Vs(13)
    TS('preS')
    Sx(0,True); rdQ(KF,2176,2,'k'); Sx(4,True); rdQ(KF,2176,3,'k'); Sx(1,False); rdK(2); Sx(5,False); rdK(6)
    Vs(14); rdK(3); Vs(15); rdK(7)
    for ks in range(4): Sm(ks)
    Sx(2,False); Sx(6,False); Sx(3,False); Sx(7,False)
    TS('VS')
    seq=[(0,0),(1,0),(2,0),(3,0),(0,1),(1,1),(0,2),(1,2),(0,3),(1,3),(2,1),(3,1),(2,2),(3,2),(2,3),(3,3)]
    bslot={}
    def rdB1(i,slot,hh):
        t,b=seq[i]; bslot[i]=slot
        e('ds_read_b128 %s, %s offset:%d'%(v(slot+4*hh,4),v(aWo),(t*4+b)*2048+hh*1024)); lg.issue(('W',i,hh))
    def rdB(i,slot): rdB1(i,slot,0); rdB1(i,slot,1)
    pre=[(0,AF),(1,AF+8),(2,KF),(3,KF+8),(4,KXR),(5,KXR+8),(6,QF),(7,QF+8)]
    pl=[]
    for i,sl in pre: pl+= [(i,sl,0),(i,sl,1)]
    def fill(n=1):
        for _ in range(n):
            if pl: rdB1(*pl.pop(0))
    M_=ACCQ; T_=ACCQ+1; NMC=ACCQ+2
    fill(4)
    e('v_max3_f32 v%d, v%d, v%d, v%d'%(T_,SM,SM+1,SM+2))
    e('v_max3_f32 v%d, v%d, v%d, v%d'%(M_,SX0,SX0+1,SX0+2))
    fill()
    e('v_max3_f32 v%d, v%d, v%d, v%d'%(T_,T_,SM+3,SX0+3))
    e('v_max3_f32 v%d, v%d, v%d, v%d'%(M_,M_,SX1,SX1+1))
    fill()
    e('v_max3_f32 v%d, v%d, v%d, v%d'%(T_,T_,SX1+2,SX1+3))
    e('v_max_f32 v%d, v%d, v%d'%(M_,M_,T_))
    e('v_mov_b32 v%d, v%d'%(T_,M_))
    fill(2)
    e('v_permlane32_swap_b32 v%d, v%d'%(M_,T_))
    e('v_max_f32 v%d, v%d, v%d'%(M_,M_,T_))
    e('v_mov_b32 v%d, v%d'%(T_,M_))
    fill(2)
    e('v_permlane16_swap_b32 v%d, v%d'%(M_,T_))
    e('v_max_f32 v%d, v%d, v%d'%(M_,M_,T_))
    e('v_mul_f32 v%d, s32, v%d'%(NMC,M_))
    TS('max')
    for r in (SX0,SX0+2,SX1,SX1+2,SM,SM+2):
        e('v_pk_fma_f32 v[%d:%d], v[%d:%d], s[32:33], v[%d:%d] op_sel_hi:[1,1,0] neg_lo:[0,0,1] neg_hi:[0,0,1]'%(r,r+1,r,r+1,NMC,NMC+1))
        fill()
    for r in range(SX0,SX0+8): e('v_exp_f32 v%d, v%d'%(r,r))
    PX=ACCK
    e('v_cvt_pk_bf16_f32 v%d, v%d, v%d'%(PX,SX0,SX0+1))
    e('v_cvt_pk_bf16_f32 v%d, v%d, v%d'%(PX+1,SX0+2,SX0+3))
    e('v_cvt_pk_bf16_f32 v%d, v%d, v%d'%(PX+2,SX1,SX1+1))
    e('v_cvt_pk_bf16_f32 v%d, v%d, v%d'%(PX+3,SX1+2,SX1+3))
    TS('expx')
    e('s_waitcnt vmcnt(%d)'%(5 if sync else 3))
    T1=SX0; T2=SX1; L_=VX2
    e('v_exp_f32 v%d, v%d'%(SM,SM))
    e('v_mfma_f32_16x16x32_bf16 %s, %s, %s, 0'%(v(T2,4),v(VX2,4),v(PX,4)))
    e('v_exp_f32 v%d, v%d'%(SM+1,SM+1))
    e('v_mfma_f32_16x16x32_bf16 %s, %s, %s, 0'%(v(T1,4),v(VX1,4),v(PX,4)))
    e('v_exp_f32 v%d, v%d'%(SM+2,SM+2))
    e('v_mfma_f32_16x16x32_bf16 %s, %s, %s, 0'%(v(L_,4),v(ONES,4),v(PX,4)))
    e('v_exp_f32 v%d, v%d'%(SM+3,SM+3))
    VP=ACCV
    e('v_cvt_pk_bf16_f32 v%d, v%d, v%d'%(VP,ACCV,ACCV+1))
    e('v_cvt_pk_bf16_f32 v%d, v%d, v%d'%(VP+1,ACCV+2,ACCV+3))
    PM1=ACCQ; PM2=ACCQ+2
    e('v_cvt_pk_bf16_f32 v%d, v%d, v%d'%(PM2,SM,SM+1))
    e('v_cvt_pk_bf16_f32 v%d, v%d, v%d'%(PM2+1,SM+2,SM+3))
    e('v_cndmask_b32 v%d, 0, v%d, s[34:35]'%(PM1,PM2))
    e('v_cndmask_b32 v%d, 0, v%d, s[34:35]'%(PM1+1,PM2+1))
    e('v_cndmask_b32 v%d, 0, v%d, s[36:37]'%(PM2,PM2))
    e('v_cndmask_b32 v%d, 0, v%d, s[36:37]'%(PM2+1,PM2+1))
    e('v_mfma_f32_16x16x16_bf16 %s, %s, %s, %s'%(v(L_,4),v(ONES,2),v(PM1,2),v(L_,4)))
    e('v_mfma_f32_16x16x16_bf16 %s, %s, %s, %s'%(v(T1,4),v(VP,2),v(PM1,2),v(T1,4)))
    e('v_mfma_f32_16x16x16_bf16 %s, %s, %s, %s'%(v(T2,4),v(VP,2),v(PM2,2),v(T2,4)))
    e('global_store_dwordx2 %s, %s, s[26:27] sc1'%(v(gVM),v(VP,2)))
    TS('pv')
    e('s_cmp_eq_u32 s28, %d\ns_cbranch_scc1 L_c_done'%(nsteps-1))
    WA=[ACCQ,ACCK,ACCV,VX1]
    for t in (1,3,0):
        e('v_mov_b64 v[%d:%d], 0\nv_mov_b64 v[%d:%d], 0'%(WA[t],WA[t]+1,WA[t]+2,WA[t]+3))
    e('v_rcp_f32 v%d, v%d'%(L_,L_))
    e('v_mov_b64 v[%d:%d], 0\nv_mov_b64 v[%d:%d], 0'%(WA[2],WA[2]+1,WA[2]+2,WA[2]+3))
    for r in (T1,T1+2,T2,T2+2):
        e('v_pk_mul_f32 v[%d:%d], v[%d:%d], v[%d:%d] op_sel_hi:[1,0]'%(r,r+1,r,r+1,L_,L_+1))
    O4=SM
    for r in range(4):
        e('v_cvt_pk_bf16_f32 v%d, v%d, v%d'%(O4+r,T1+r,T2+r))
    e('ds_write_b128 %s, %s'%(v(aOw),v(O4,4))); lg.issue('ow')
    TS('SMX')
    def Wm(i,areg):
        t,b=seq[i]
        lg.wait(('W',i,1))
        e('v_smfmac_f32_16x16x64_bf16 %s, %s, %s, %s'%(v(WA[t],4),v(areg,4),v(bslot[i],8),v(IDX)))
    Wm(0,O4); rdB(8,bslot[0]); Wm(1,O4); rdB(9,bslot[1])
    lg.wait('ow')
    TS('ow')
    e('s_barrier')
    OF={1:SX0,2:SX1,3:VX2}
    for b,ad in ((1,aO1),(2,aO2),(3,aO3)):
        e('ds_read_b128 %s, %s'%(v(OF[b],4),v(ad))); lg.issue(('o',b))
    Wm(2,O4); rdB(10,bslot[2]); Wm(3,O4); rdB(11,bslot[3])
    G0=AF
    G1=AF+4
    nxt=12
    for i in range(4,16):
        t,b=seq[i]
        lg.wait(('o',b))
        Wm(i,OF[b])
        if nxt<16:
            rdB(nxt,bslot[i]); nxt+=1
        if i==11:
            e('v_cvt_pk_bf16_f32 v%d, v%d, v%d'%(G0,WA[0],WA[0]+1))
        if i==12:
            e('v_cvt_pk_bf16_f32 v%d, v%d, v%d'%(G0+1,WA[0]+2,WA[0]+3))
        if i==13:
            e('v_cvt_pk_bf16_f32 v%d, v%d, v%d'%(G0+2,WA[1],WA[1]+1))
            e('v_cvt_pk_bf16_f32 v%d, v%d, v%d'%(G0+3,WA[1]+2,WA[1]+3))
        if i==14:
            e('v_and_or_b32 v%d, v%d, -2, s29'%(G0,G0))
            e('global_store_dwordx4 %s, %s, s[16:17]%s'%(v(gA0),v(G0,4),st))
    a.label('L_c_stub')
    if stub:
        e('v_and_or_b32 v%d, v%d, -2, s29'%(G0,G0))
        e('global_store_dwordx4 %s, %s, s[16:17]%s'%(v(gA0),v(G0,4),st))
        delay(64)
    e('v_cvt_pk_bf16_f32 v%d, v%d, v%d'%(G1,WA[2],WA[2]+1))
    e('v_cvt_pk_bf16_f32 v%d, v%d, v%d'%(G1+1,WA[2]+2,WA[2]+3))
    e('v_cvt_pk_bf16_f32 v%d, v%d, v%d'%(G1+2,WA[3],WA[3]+1))
    e('v_cvt_pk_bf16_f32 v%d, v%d, v%d'%(G1+3,WA[3]+2,WA[3]+3))
    e('v_and_or_b32 v%d, v%d, -2, s29'%(G1,G1))
    e('global_store_dwordx4 %s, %s, s[16:17]%s'%(v(gA1),v(G1,4),st))
    TS('WO')
    if ackA:
        e('s_waitcnt vmcnt(0)'); TS('ackA')
    for r in range(ACCQ,ACCQ+12,2): e('v_mov_b64 v[%d:%d], 0'%(r,r+1))
    e('v_not_b32 v%d, v%d'%(TAGB,MASKB))
    e('v_and_b32 v%d, s29, v%d'%(TAGB,TAGB))
    delay(dA)
    R0=KF; R1=KF+4; DA=KF+8; DB=KF+12; S0=QF; S1=QF+4
    def ldA(r0,r1):
        e('global_load_dwordx4 %s, %s, s[16:17] sc1'%(v(r0,4),v(gAr)))
        e('global_load_dwordx4 %s, %s, s[16:17] offset:1024 sc1'%(v(r1,4),v(gAr)))
    def redA(r0,r1,n0,n1,ok,fail):
        e('s_waitcnt vmcnt(%d)'%n0)
        e('v_mfma_f32_16x16x32_bf16 %s, %s, %s, 0'%(v(DA,4),v(r0,4),v(BSEL+2,4)))
        e('v_mfma_f32_16x16x32_bf16 %s, %s, %s, 0'%(v(DB,4),v(r0,4),v(BSEL,4)))
        e('v_xor_b32 v96, s29, v%d'%r0)
        e('s_waitcnt vmcnt(%d)'%n1)
        e('v_mfma_f32_16x16x32_bf16 %s, %s, %s, %s'%(v(DA,4),v(r1,4),v(BSEL+2,4),v(DA,4)))
        e('v_mfma_f32_16x16x32_bf16 %s, %s, %s, %s'%(v(DB,4),v(r1,4),v(BSEL,4),v(DB,4)))
        e('v_bitop3_b32 v96, v96, v%d, s29 bitop3:0xf6'%r1)
        e('v_and_b32 v96, 1, v96')
        e('v_cmp_ne_u32 vcc, 0, v96')
        if ts or cnt: e('s_add_u32 s48, s48, 1')
        e('s_cbranch_vccz %s'%ok)
    if dA2:
        ldA(R0,R1); delay(dA2); ldA(S0,S1)
        redA(R0,R1,3,2,'L_c_okA',None)
        a.fence()
        redA(S0,S1,1,0,'L_c_okA',None)
        a.fence()
    a.label('L_c_pollA')
    ldA(R0,R1)
    redA(R0,R1,1,0,'L_c_okA',None)
    e('s_add_u32 s44, s44, 1\ns_cmp_gt_u32 s44, 200000\ns_cbranch_scc1 L_c_done\ns_branch L_c_pollA')
    a.label('L_c_okA')
    TS('pollA')
    e('s_nop 3')
    e('v_pk_add_f32 v[%d:%d], v[%d:%d], v[%d:%d]'%(DA,DA+1,DA,DA+1,DA+2,DA+3))
    e('v_pk_add_f32 v[%d:%d], v[%d:%d], v[%d:%d]'%(DB,DB+1,DB,DB+1,DB+2,DB+3))
    e('v_add_f32 v%d, v%d, v%d'%(DA,DA,DA+1))
    e('v_add_f32 v%d, v%d, v%d'%(DB,DB,DB+1))
    e('v_cvt_pk_bf16_f32 v%d, v%d, v%d'%(DA,DA,DB))
    e('v_and_or_b32 v%d, v%d, v%d, v%d'%(DA,DA,MASKB,TAGB))
    e('s_mov_b64 exec, s[38:39]')
    e('global_store_dword %s, v%d, s[18:19]%s'%(v(gBw),DA,st))
    e('s_mov_b64 exec, -1')
    TS('HA')
    if ackB:
        e('s_waitcnt vmcnt(0)'); TS('ackB')
    delay(dB)
    B0=KXR; B1=KXR+4; C0=KXR+8; C1=KXR+12
    def ldB(r0,r1):
        e('global_load_dwordx4 %s, %s, s[18:19] sc1'%(v(r0,4),v(gB0)))
        e('global_load_dwordx4 %s, %s, s[18:19] sc1'%(v(r1,4),v(gB1)))
    def chkB(r0,r1,n0,n1,ok):
        e('s_waitcnt vmcnt(%d)'%n0)
        e('v_xor_b32 v36, s29, v%d'%r0)
        e('s_waitcnt vmcnt(%d)'%n1)
        e('v_bitop3_b32 v36, v36, v%d, s29 bitop3:0xf6'%r1)
        e('v_and_b32 v36, 1, v36')
        e('v_cmp_ne_u32 vcc, 0, v36')
        if ts or cnt: e('s_add_u32 s49, s49, 1')
        e('s_cbranch_vccz %s'%ok)
    if dB2:
        ldB(B0,B1); delay(dB2); ldB(C0,C1)
        chkB(B0,B1,3,2,'L_c_okB')
        chkB(C0,C1,1,0,'L_c_okB2')
    a.label('L_c_pollB')
    ldB(B0,B1)
    chkB(B0,B1,1,0,'L_c_okB')
    e('s_add_u32 s44, s44, 1\ns_cmp_gt_u32 s44, 200000\ns_cbranch_scc1 L_c_done\ns_branch L_c_pollB')
    if dB2:
        a.label('L_c_okB2')
        e('ds_write_b128 %s, %s'%(v(gB0),v(C0,4)))
        e('ds_write_b128 %s, %s'%(v(gB1),v(C1,4)))
        e('s_branch L_c_wrB')
    a.label('L_c_okB')
    e('ds_write_b128 %s, %s'%(v(gB0),v(B0,4)))
    e('ds_write_b128 %s, %s'%(v(gB1),v(B1,4)))
    a.label('L_c_wrB')
    TS('pollB')
    e('''s_add_u32 s28, s28, 1
s_and_b32 s40, s28, 1
s_lshl_b32 s41, s40, 18
s_add_u32 s16, s8, s41
s_addc_u32 s17, s9, 0
s_lshl_b32 s41, s40, 13
s_add_u32 s41, s41, %d
s_add_u32 s18, s8, s41
s_addc_u32 s19, s9, 0
s_lshr_b32 s29, s28, 1
s_and_b32 s29, s29, 1
s_add_u32 s24, s24, 0x10000
s_addc_u32 s25, s25, 0
s_add_u32 s26, s26, 0x10000
s_addc_u32 s27, s27, 0
v_xor_b32 %s, 0x6000, %s'''%(WS_HOPB,v(aKr),v(aKr)))
    e('s_waitcnt lgkmcnt(0)\ns_barrier')
    TS('END')
    if ts:
        e('s_waitcnt lgkmcnt(0)')
        e('s_lshl_b32 s40, s5, 6\ns_add_u32 s40, s40, s28\ns_lshl_b32 s40, s40, 2\ns_add_u32 s40, s40, s4\ns_lshl_b32 s40, s40, 7\ns_add_u32 s40, s40, %d'%(WS_O))
        e('v_mov_b32 v64, s40\ns_mov_b64 exec, 1')
        n=tsn[0]
        for i in range(n):
            e('v_mov_b32 v65, s%d'%(50+2*i)); e('global_store_dword v64, v65, s[8:9] offset:%d'%(4*i))
        e('v_mov_b32 v65, s96\nglobal_store_dword v64, v65, s[8:9] offset:116')
        e('v_mov_b32 v65, s48\nglobal_store_dword v64, v65, s[8:9] offset:120\nv_mov_b32 v65, s49\nglobal_store_dword v64, v65, s[8:9] offset:124')
        e('s_mov_b64 exec, -1\ns_waitcnt vmcnt(0)')
    a.fence()
    e('s_branch L_c_step')
    a.label('L_c_done')
    e('s_waitcnt vmcnt(0)')
    if sync:
        e('s_barrier')
        e('s_lshl_b32 s41, s5, 7\ns_add_u32 s41, s41, %d\nv_mov_b32 v34, s41\nv_mov_b32 v35, 64'%FL_PROG)
        e('s_mov_b64 exec, 1\nglobal_store_dword v34, v35, s[8:9] sc1\ns_mov_b64 exec, -1\ns_waitcnt vmcnt(0)')
    if cnt:
        e('s_lshl_b32 s40, s5, 2\ns_add_u32 s40, s40, s4\ns_lshl_b32 s40, s40, 3\ns_add_u32 s40, s40, %d'%(WS_G))
        e('v_mov_b32 v64, s40\nv_mov_b32 v66, s48\nv_mov_b32 v67, s49\ns_mov_b64 exec, 1\nglobal_store_dwordx2 v64, v[66:67], s[8:9]\ns_mov_b64 exec, -1\ns_waitcnt vmcnt(0)')
```

```python
import sys; sys.path.insert(0,'gen')
from asmgen import Asm
from layout import *
def header(a, name, launch=None):
    if launch: a.raw(launch)
    a.raw('''.amdgcn_target "amdgcn-amd-amdhsa--gfx950"
.text''')
def begin(a, name):
    a.raw('''.globl %s
.p2align 8
.type %s,@function
%s:''' % (name,name,name))
    a.hist=[]
def descriptor(a, names, vg=512, sg=102, acc=256):
    a.raw('.section .rodata,"a"')
    for name in names:
        a.raw('''.p2align 6
.amdhsa_kernel %s
  .amdhsa_next_free_vgpr %d
  .amdhsa_next_free_sgpr %d
  .amdhsa_accum_offset %d
  .amdhsa_group_segment_fixed_size 0
  .amdhsa_kernarg_size 112
  .amdhsa_user_sgpr_count 2
  .amdhsa_user_sgpr_kernarg_segment_ptr 1
  .amdhsa_system_sgpr_workgroup_id_x 1
.end_amdhsa_kernel''' % (name,vg,sg,acc))
def prologue(a):
    a.e('''
s_load_dwordx2 s[8:9], s[0:1], %d
s_load_dwordx2 s[10:11], s[0:1], %d
v_lshrrev_b32 v2, 6, v0
s_nop 1
v_readfirstlane_b32 s4, v2
s_waitcnt lgkmcnt(0)
''' % (KA_WS,KA_DBG))

def ticket(a, ltmp):
    a.e('''
s_getreg_b32 s6, hwreg(HW_REG_XCC_ID, 0, 4)
s_and_b32 s6, s6, 7
s_cmp_eq_u32 s4, 0
s_cbranch_scc0 L_t_notw0
s_lshl_b32 s14, s6, 5
v_mov_b32 v3, s14
v_mov_b32 v4, 1
s_mov_b64 exec, 1
global_atomic_add v5, v3, v4, s[10:11] sc0 sc1
s_waitcnt vmcnt(0)
v_mov_b32 v6, %d
ds_write_b32 v6, v5
s_waitcnt lgkmcnt(0)
s_mov_b64 exec, -1
L_t_notw0:
s_barrier
v_mov_b32 v6, %d
ds_read_b32 v5, v6
s_waitcnt lgkmcnt(0)
v_readfirstlane_b32 s7, v5
s_barrier
''' % (ltmp,ltmp))
```

```python
WS_HOPA = 0x0
WS_HOPB = 0x80000
WS_FLAGS= 0x90000
WS_KX   = 0x100000
WS_VX   = WS_KX + (16<<20)
WS_QX   = WS_VX + (16<<20)
WS_KM   = WS_QX + (16<<20)
WS_VM   = WS_KM + (4<<20)
WS_H    = WS_VM + (4<<20)
WS_O    = WS_H + (8<<20)
WS_B    = WS_O + (16<<20)
WS_G    = WS_B + (4<<20)
WS_END  = WS_G + (1<<20)

KA_X=0; KA_MEM0=8; KA_WQ=16; KA_WK=24; KA_WV=32; KA_WO=40; KA_SEG=48; KA_BX=56; KA_W1=64; KA_W2=72; KA_GATE=80; KA_OUT=88; KA_DBG=96; KA_WS=104

def pi_pos(p):
    rho=p>>4; oct_=(p>>3)&1; gp=(p>>1)&3; cp=p&1
    wsrc=rho>>3; s=(rho>>2)&1; u=rho&3
    j=8*(u&1)+4*oct_+gp; half=u>>1
    return 128*wsrc+64*s+32*cp+2*j+half
assert sorted(pi_pos(p) for p in range(512))==list(range(512))
DBG_XCC=0
DBG_READY=4
DBG_PCNT=72

FL_P   = WS_FLAGS
FL_PROG= WS_FLAGS+0x2000
FL_AT  = WS_FLAGS+0x4000
FL_END = WS_FLAGS+0x8000
FL_G   = WS_FLAGS+0x1c00
```

```python
from asmgen import Asm
from layout import *
from chain import v, ag, Q, f2u
import math

def role_gate(a, sc='', sync=True):
    e=a.e
    e('''
v_and_b32 v1, 63, v0
v_and_b32 v2, 31, v1
v_lshrrev_b32 v3, 5, v1
s_load_dwordx2 s[12:13], s[0:1], %d
s_load_dwordx2 s[14:15], s[0:1], %d
v_lshlrev_b32 v4, 4, v3          ; g*16
v_lshl_add_u32 v5, v2, 10, v4    ; token*1024 + g*16
s_lshl_b32 s16, s5, 2
s_add_u32 s16, s16, s4
s_lshl_b32 s16, s16, 2           ; first segment
s_waitcnt lgkmcnt(0)
''' % (KA_GATE,KA_X))
    for ks in range(32): e('global_load_dwordx4 %s, v4, s[12:13] offset:%d'%(v(128+4*ks,4),ks*32))
    e('s_mov_b32 s17, 0')
    a.label('L_g_it')
    e('s_add_u32 s18, s16, s17\ns_lshl_b32 s19, s18, 15\ns_add_u32 s20, s14, s19\ns_addc_u32 s21, s15, 0')
    for ks in range(32): e('global_load_dwordx4 %s, v5, s[20:21] offset:%d'%(ag(4*ks,4),ks*32))
    e('s_waitcnt vmcnt(0)')
    for ks in range(32):
        e('v_mfma_f32_32x32x16_bf16 v[64:79], %s, %s, %s'%(v(128+4*ks,4),ag(4*ks,4),'0' if ks==0 else 'v[64:79]'))
    e('v_mul_f32 v64, 0xbfb8aa3b, v64')
    e('v_exp_f32 v64, v64')
    e('v_add_f32 v64, 1.0, v64')
    e('v_rcp_f32 v64, v64')
    e('s_lshl_b32 s19, s18, 7\ns_add_u32 s19, s19, %d'%WS_G)
    e('v_lshl_add_u32 v6, v2, 2, s19')
    e('s_mov_b32 exec_hi, 0')
    e('global_store_dword v6, v64, s[8:9]%s'%sc)
    e('s_mov_b32 exec_hi, -1')
    e('s_add_u32 s17, s17, 1\ns_cmp_lt_u32 s17, 4')
    a.fence()
    e('s_cbranch_scc1 L_g_it')
    e('s_waitcnt vmcnt(0)\ns_barrier')
    if sync:
        e('''
s_mov_b32 s47, 0
L_g_wr:
v_mov_b32 v17, %d
global_load_dword v18, v17, s[10:11] sc1
s_waitcnt vmcnt(0)
v_readfirstlane_b32 s46, v18
s_cmp_ge_u32 s46, 32
s_cbranch_scc1 L_g_wrd
s_add_u32 s47, s47, 1
s_cmp_gt_u32 s47, 200000
s_cbranch_scc1 L_g_wrd
s_sleep 4
s_branch L_g_wr
L_g_wrd:
s_cmp_eq_u32 s4, 0
s_cbranch_scc0 L_g_nosig
v_mov_b32 v17, %d
v_mov_b32 v18, 1
s_mov_b64 exec, 1
global_atomic_add v17, v18, s[8:9] sc1
s_mov_b64 exec, -1
L_g_nosig:
''' % (DBG_READY,FL_G))

def role_out(a, sync=True):
    e=a.e
    ACCA=64; ACCB=80
    W2=lambda kk: v(128+4*kk,4)
    WO=lambda ks: ag(4*ks,4)
    e('''
v_and_b32 v1, 63, v0
s_load_dwordx2 s[12:13], s[0:1], %d
s_load_dwordx2 s[14:15], s[0:1], %d
s_load_dwordx2 s[16:17], s[0:1], %d
; DMA lane offset: row=l>>2 (stride 1024) + chunk (l&3)*16 + ct16*64
v_lshrrev_b32 v2, 2, v1
v_lshlrev_b32 v2, 10, v2
v_and_b32 v3, 3, v1
v_lshl_add_u32 v2, v3, 4, v2
s_lshl_b32 s18, s5, 6
v_add_u32 v2, s18, v2
; tr read lane address: wave*32768 + (8*(G>>1)+m)*64 + (G&1)*32 + c*8
v_lshrrev_b32 v4, 5, v1
v_bfe_u32 v5, v1, 2, 2
v_lshl_add_u32 v4, v4, 3, v5
v_lshlrev_b32 v4, 6, v4
v_bfe_u32 v5, v1, 4, 1
v_lshl_add_u32 v4, v5, 5, v4
v_lshl_add_u32 v4, v3, 3, v4
s_lshl_b32 s19, s4, 15
v_add_u32 v4, s19, v4
s_waitcnt lgkmcnt(0)
''' % (KA_WO,KA_W2,KA_OUT))
    def stage(base_lo, rowoff_sreg, nins):
        e('s_add_u32 s20, s%d, %s\ns_addc_u32 s21, s%d, 0'%(base_lo,rowoff_sreg,base_lo+1))
        for j in range(nins):
            e('s_add_u32 m0, s19, %d'%(j*1024))
            e('global_load_lds_dwordx4 v2, s[20:21]')
            e('s_add_u32 s20, s20, 16384\ns_addc_u32 s21, s21, 0')
        e('s_waitcnt vmcnt(0)')
    def trread(dst,nks):
        n=0
        for ks in range(nks):
            for hh in range(2):
                e('ds_read_b64_tr_b16 %s, v4 offset:%d'%(dst(ks,hh),ks*1024+hh*256)); n+=1
                if n%12==0: e('s_waitcnt lgkmcnt(4)')
        e('s_waitcnt lgkmcnt(0)')
    for rnd in range(2):
        e('s_lshl_b32 s22, s4, 20\ns_add_u32 s22, s22, %d'%(rnd*512*1024))
        stage(12,'s22',32)
        trread(lambda ks,hh: ag(4*(32*rnd+ks)+2*hh,2),32)
    e('s_mul_i32 s22, s4, %d'%(448*1024))
    stage(14,'s22',28)
    trread(lambda ks,hh: v(128+4*ks+2*hh,2),28)
    e('''
v_lshlrev_b32 v6, 4, v1
s_lshl_b32 s19, s4, 13
v_add_u32 v6, s19, v6
v_and_b32 v7, 7, v1             ; t8
v_bfe_u32 v8, v1, 3, 2          ; q
v_lshrrev_b32 v9, 5, v1         ; hf
s_lshl_b32 s19, s4, 3
v_add_u32 v10, s19, v7          ; token = 8w+t8
v_lshl_add_u32 v11, v9, 5, v10
v_lshlrev_b32 v11, 4, v11
v_lshl_add_u32 v11, v8, 10, v11 ; + q*1024
v_lshlrev_b32 v12, 10, v10
v_lshl_add_u32 v12, v8, 4, v12
v_lshl_add_u32 v12, v9, 3, v12
s_lshl_b32 s19, s5, 6
v_add_u32 v12, s19, v12
v_lshlrev_b32 v13, 2, v10
v_lshlrev_b32 v14, 4, v1        ; lane*16
s_mov_b32 s24, s6               ; segment
s_barrier
''')
    if sync:
        e('''
s_mov_b32 s57, 0
v_mov_b32 v20, {fg}
L_o_wg:
global_load_dword v23, v20, s[8:9] sc1
s_waitcnt vmcnt(0)
v_readfirstlane_b32 s58, v23
s_cmp_ge_u32 s58, 4
s_cbranch_scc1 L_o_wgd
s_add_u32 s57, s57, 1
s_cmp_gt_u32 s57, 300000
s_cbranch_scc1 L_o_exit
s_sleep 8
s_branch L_o_wg
L_o_wgd:
'''.format(fg=FL_G))
    a.label('L_o_seg')
    if sync:
        e('''
s_lshl_b32 s25, s24, 7
s_add_u32 s25, s25, {at}
s_lshr_b32 s26, s24, 2
s_lshl_b32 s26, s26, 7
s_add_u32 s26, s26, {fh}
v_mov_b32 v20, s25
v_mov_b32 v21, s26
s_mov_b32 s57, 0
L_o_w:
global_load_dword v23, v20, s[8:9] sc1
global_load_dword v24, v21, s[8:9] sc1
s_waitcnt vmcnt(0)
v_readfirstlane_b32 s58, v23
v_readfirstlane_b32 s59, v24
s_cmp_ge_u32 s58, 32
s_cselect_b32 s58, 1, 0
s_cmp_ge_u32 s59, 28
s_cselect_b32 s58, s58, 0
s_cmp_eq_u32 s58, 1
s_cbranch_scc1 L_o_go
s_add_u32 s57, s57, 1
s_cmp_gt_u32 s57, 300000
s_cbranch_scc1 L_o_exit
s_sleep 4
s_branch L_o_w
L_o_go:
'''.format(at=FL_AT,fh=FL_P+4096))
    ld=' sc1' if sync else ''
    e('''
s_lshl_b32 s25, s24, 18
s_lshl_b32 s26, s4, 16
s_add_u32 s25, s25, s26
s_add_u32 s25, s25, {o}
s_add_u32 s28, s8, s25
s_addc_u32 s29, s9, 0
s_mul_i32 s25, s24, {hs}
s_mul_i32 s26, s4, {hw}
s_add_u32 s25, s25, s26
s_add_u32 s25, s25, {h}
s_add_u32 s30, s8, s25
s_addc_u32 s31, s9, 0
s_lshl_b32 s25, s24, 7
s_add_u32 s25, s25, {g}
s_add_u32 s32, s8, s25
s_addc_u32 s33, s9, 0
global_load_dword v15, v13, s[32:33]{ld}
'''.format(o=WS_O,hs=112*1024,hw=28*1024,h=WS_H,g=WS_G,ld=ld))
    slots=[32+4*i for i in range(8)]+[96+4*i for i in range(8)]
    items=[('h',kk) for kk in range(28)]+[('o',ks) for ks in range(64)]
    NR=16
    def issue(i):
        kind,k=items[i]; sl=slots[i%NR]
        base='s[30:31]' if kind=='h' else 's[28:29]'
        e('global_load_dwordx4 %s, v14, %s offset:%d%s'%(v(sl,4),base,(k&3)*1024,ld))
        if (k&3)==3:
            b=30 if kind=='h' else 28
            e('s_add_u32 s%d, s%d, 4096\ns_addc_u32 s%d, s%d, 0'%(b,b,b+1,b+1))
    for i in range(NR): issue(i)
    n=len(items)
    for i in range(n):
        kind,k=items[i]; sl=slots[i%NR]
        outstanding=min(NR,n-i)
        e('s_waitcnt vmcnt(%d)'%(outstanding-1))
        if kind=='h': e('v_mfma_f32_32x32x16_bf16 %s, %s, %s, %s'%(v(ACCB,16),W2(k),v(sl,4),'0' if k==0 else v(ACCB,16)))
        else:         e('v_mfma_f32_32x32x16_bf16 %s, %s, %s, %s'%(v(ACCA,16),WO(k),v(sl,4),'0' if k==0 else v(ACCA,16)))
        if i+NR<n: issue(i+NR)
    a.fence()
    for ac,base in ((0,ACCA),(1,ACCB)):
        for q in range(4):
            e('ds_write_b128 v6, %s offset:%d'%(v(base+4*q,4),ac*4096+q*1024))
    e('s_waitcnt lgkmcnt(0)\ns_barrier')
    for src in range(4):
        for ac in range(2):
            e('ds_read_b128 %s, v11 offset:%d'%(v(32+8*src+4*ac,4),src*8192+ac*4096))
    e('s_waitcnt lgkmcnt(0)\ns_barrier')
    for ac in range(2):
        for r in range(0,4,2):
            x=lambda src: 32+8*src+4*ac+r
            e('v_pk_add_f32 v[%d:%d], v[%d:%d], v[%d:%d]'%(x(0),x(0)+1,x(0),x(0)+1,x(1),x(1)+1))
            e('v_pk_add_f32 v[%d:%d], v[%d:%d], v[%d:%d]'%(x(2),x(2)+1,x(2),x(2)+1,x(3),x(3)+1))
            e('v_pk_add_f32 v[%d:%d], v[%d:%d], v[%d:%d]'%(x(0),x(0)+1,x(0),x(0)+1,x(2),x(2)+1))
    for r in range(4):
        e('v_sub_f32 v%d, v%d, v%d'%(32+r,32+r,36+r))
        e('v_fma_f32 v%d, v15, v%d, v%d'%(32+r,32+r,36+r))
    e('v_cvt_pk_bf16_f32 v40, v32, v33\nv_cvt_pk_bf16_f32 v41, v34, v35')
    e('s_lshl_b32 s25, s24, 15\ns_add_u32 s34, s16, s25\ns_addc_u32 s35, s17, 0')
    e('global_store_dwordx2 v12, v[40:41], s[34:35]')
    e('s_add_u32 s24, s24, s7\ns_cmp_lt_u32 s24, 64')
    a.fence()
    e('s_cbranch_scc1 L_o_seg')
    a.label('L_o_exit')
```

```python
from asmgen import Asm
from layout import *
from chain import v, ag, Q, f2u
import math

ACC=64; XF=96; AD=32
NIT=16
def role_proj(a, sc='', sync=True, ts=False):
    e=a.e
    lg=Q(a,'lgkmcnt',15)
    e('''
v_and_b32 v1, 63, v0
v_and_b32 v2, 31, v1            ; row/token/n
v_lshrrev_b32 v3, 5, v1         ; hf / g
s_and_b32 s7, s4, 1             ; ctp
s_lshr_b32 s12, s4, 1           ; sel
s_lshr_b32 s37, s5, 5           ; type 0 K 1 V 2 Q 3 H
s_load_dwordx2 s[20:21], s[0:1], %d
s_load_dwordx2 s[22:23], s[0:1], %d
s_load_dwordx2 s[24:25], s[0:1], %d
s_load_dwordx2 s[26:27], s[0:1], %d
s_load_dwordx2 s[14:15], s[0:1], %d
s_waitcnt lgkmcnt(0)
; W base + column offset ; row stride
s_and_b32 s32, s5, 31
s_lshl_b32 s32, s32, 8          ; 128 cols * 2B
s_cmp_eq_u32 s37, 0
s_cselect_b32 s28, s20, s22
s_cselect_b32 s29, s21, s23
s_cmp_eq_u32 s37, 2
s_cselect_b32 s28, s24, s28
s_cselect_b32 s29, s25, s29
s_cmp_eq_u32 s37, 3
s_cselect_b32 s28, s26, s28
s_cselect_b32 s29, s27, s29
s_add_u32 s28, s28, s32
s_addc_u32 s29, s29, 0
s_mov_b32 s31, 8192
s_cmp_eq_u32 s37, 3
s_cselect_b32 s31, 3584, s31    ; row stride
; stage W: two tiles (64 cols each) of 512 rows x 128B ; wave w loads rows 128w..128w+127 of both tiles
v_lshrrev_b32 v5, 3, v1
s_lshl_b32 s16, s4, 7
v_add_u32 v5, s16, v5           ; row
v_mul_lo_u32 v5, v5, s31
v_and_b32 v6, 7, v1
v_bfe_u32 v7, v1, 4, 1
v_lshlrev_b32 v7, 2, v7
v_xor_b32 v6, v6, v7
v_lshl_add_u32 v8, v6, 4, v5    ; lane offset
s_lshl_b32 s30, s31, 3          ; 8 rows
s_lshl_b32 s17, s4, 14          ; wave lds offset 128 rows*128B
''' % (KA_WK,KA_WV,KA_WQ,KA_W1,KA_X))
    for tile in range(2):
        e('s_add_u32 s34, s28, %d\ns_addc_u32 s35, s29, 0'%(tile*128))
        for j in range(16):
            e('s_add_u32 m0, s17, %d'%(tile*65536+j*1024))
            e('global_load_lds_dwordx4 v8, s[34:35]')
            e('s_add_u32 s34, s34, s30\ns_addc_u32 s35, s35, 0')
    e('''
v_lshrrev_b32 v5, 5, v1
v_bfe_u32 v6, v1, 2, 2
v_lshl_add_u32 v5, v5, 3, v6
v_lshlrev_b32 v5, 7, v5
v_bfe_u32 v6, v1, 4, 1
v_lshl_add_u32 v5, v6, 5, v5
v_and_b32 v6, 3, v1
v_lshl_add_u32 v5, v6, 3, v5
s_lshl_b32 s33, s7, 16
v_add_u32 v5, s33, v5
v_bfe_u32 v6, v1, 3, 1
v_lshlrev_b32 v6, 6, v6
v_add_u32 v10, v5, v6           ; ct=0
v_xor_b32 v6, 64, v6
v_add_u32 v11, v5, v6           ; ct=1
v_bfe_u32 v5, v2, 2, 1
v_lshlrev_b32 v5, 12, v5
v_lshl_add_u32 v5, v3, 8, v5
v_lshrrev_b32 v6, 3, v2
v_lshlrev_b32 v6, 2, v6
v_and_b32 v7, 3, v2
v_add_u32 v6, v6, v7
v_lshl_add_u32 v12, v6, 4, v5   ; K
v_lshrrev_b32 v5, 4, v2
v_lshlrev_b32 v5, 12, v5
v_lshl_add_u32 v5, v3, 8, v5
v_and_b32 v6, 15, v2
v_lshl_add_u32 v13, v6, 4, v5   ; Q
v_lshlrev_b32 v5, 9, v3
v_lshl_add_u32 v14, v2, 4, v5   ; H
v_and_b32 v5, 15, v1
v_lshlrev_b32 v5, 6, v5
v_lshrrev_b32 v6, 4, v1
v_lshl_add_u32 v15, v6, 4, v5   ; V
s_cmp_eq_u32 s37, 1
s_cbranch_scc0 L_p_s1
v_mov_b32 v12, v15
L_p_s1:
s_cmp_eq_u32 s37, 2
s_cbranch_scc0 L_p_s2
v_mov_b32 v12, v13
L_p_s2:
s_cmp_eq_u32 s37, 3
s_cbranch_scc0 L_p_s3
v_mov_b32 v12, v14
L_p_s3:
v_lshlrev_b32 v5, 10, v2
s_lshl_b32 s33, s12, 15
v_add_u32 v5, s33, v5
v_and_b32 v6, 15, v2
''')
    for k in range(8):
        e('v_or_b32 v7, %d, v3\nv_xor_b32 v7, v7, v6\nv_lshl_add_u32 v%d, v7, 4, v5'%(2*k,AD+k))
    e('v_lshlrev_b32 v9, 4, v1')
    e('''
s_lshl_b32 s33, s6, 16
s_lshl_b32 s32, s4, 14          ; 16 rows*1024
s_add_u32 s33, s33, s32
s_add_u32 s14, s14, s33
s_addc_u32 s15, s15, 0
s_lshl_b32 s18, s4, 14
''')
    e('s_waitcnt vmcnt(0)\ns_barrier')
    lg.reset()
    for ks in range(32):
        for ct in range(2):
            for hh in range(2):
                r=(ct*32+ks)*4+2*hh
                e('ds_read_b64_tr_b16 %s, v%d offset:%d'%(ag(r,2),10+ct,ks*2048+hh*512))
        if ks%3==2: e('s_waitcnt lgkmcnt(4)')
    e('s_waitcnt lgkmcnt(0)\ns_barrier')
    WF=lambda ct,ks: ag((ct*32+ks)*4,4)
    def xdma(j,bufreg):
        e('v_xor_b32 v40, %d, v9'%(j<<4))
        e('s_add_u32 m0, %s, %d'%(bufreg,j*1024))
        e('global_load_lds_dwordx4 v40, s[14:15]')
        e('s_add_u32 s14, s14, 1024\ns_addc_u32 s15, s15, 0')
    e('s_mov_b32 s19, 0\ns_mov_b32 s38, 0\ns_mov_b32 s33, s18')
    for j in range(16): xdma(j,'s33')
    e('s_add_u32 s14, s14, %d\ns_addc_u32 s15, s15, 0'%(4*32768-16*1024))
    e('''
s_lshl_b32 s39, s6, 1
s_add_u32 s39, s39, s12         ; seg0 = 2*ts+sel
s_and_b32 s40, s5, 31
s_cmp_eq_u32 s37, 3
s_cbranch_scc1 L_p_obH
s_lshl_b32 s41, s39, 5
s_add_u32 s41, s41, s40
s_lshl_b32 s41, s41, 13         ; (seg*32+head)*8192
s_mov_b32 s44, %d               ; per-iteration advance 4 segs
s_cmp_eq_u32 s37, 1
s_cselect_b32 s42, 12, 11
s_lshl_b32 s42, s7, s42         ; ctp*4096 (V) or ctp*2048 (K,Q)
s_add_u32 s41, s41, s42
s_mov_b32 s42, %d
s_cmp_eq_u32 s37, 1
s_cselect_b32 s42, %d, s42
s_cmp_eq_u32 s37, 2
s_cselect_b32 s42, %d, s42
s_add_u32 s41, s41, s42
s_branch L_p_obd
L_p_obH:
s_mul_i32 s41, s39, %d
s_lshl_b32 s42, s40, 1
s_add_u32 s42, s42, s7          ; 64-col tile t' = 2*(cg-96)+ctp
s_lshl_b32 s42, s42, 12
s_add_u32 s41, s41, s42
s_add_u32 s41, s41, %d
s_mov_b32 s44, %d
L_p_obd:
s_add_u32 s42, s8, s41
s_addc_u32 s43, s9, 0
''' % (4*32*8192, WS_KX, WS_VX, WS_QX, 112*1024, WS_H, 4*112*1024))
    e('s_max_u32 s45, s37, 1\ns_sub_u32 s45, s45, 1\ns_lshl_b32 s45, s45, 11\ns_add_u32 s45, s45, %d'%FL_P)
    if sync:
        e('''
s_mov_b32 s47, 0
L_p_wr:
v_mov_b32 v17, {r}
global_load_dword v18, v17, s[10:11] sc1
s_waitcnt vmcnt(0)
v_readfirstlane_b32 s46, v18
s_cmp_ge_u32 s46, 32
s_cbranch_scc1 L_p_wrd
s_add_u32 s47, s47, 1
s_cmp_gt_u32 s47, 200000
s_cbranch_scc1 L_p_wrd
s_sleep 4
s_branch L_p_wr
L_p_wrd:
'''.format(r=DBG_READY))
    e('s_waitcnt vmcnt(0)')
    a.label('L_p_it')
    e('s_barrier')
    if sync:
        e('''
s_cmp_lt_u32 s38, 2
s_cbranch_scc1 L_p_nosig
s_cmp_eq_u32 s4, 0
s_cbranch_scc0 L_p_nosig
s_sub_u32 s47, s38, 2
s_lshl_b32 s47, s47, 7
s_add_u32 s47, s47, s45
v_mov_b32 v17, s47
v_mov_b32 v18, 1
s_mov_b64 exec, 1
global_atomic_add v17, v18, s[8:9] sc1
s_mov_b64 exec, -1
L_p_nosig:
''')
    e('s_xor_b32 s36, s19, 0x10000\ns_add_u32 s33, s18, s36')
    for r in range(ACC,ACC+32,2): e('v_mov_b64 v[%d:%d], 0'%(r,r+1))
    e('s_cmp_eq_u32 s37, 1\ns_cbranch_scc1 L_p_kV')
    def kloop(swap):
        lg.reset()
        def rd(ks):
            e('ds_read_b128 %s, v%d offset:%d'%(v(XF+4*(ks%4),4),AD+(ks&7),(ks>>3)*256)); lg.issue(ks)
        rd(0); rd(1); rd(2)
        for ks in range(32):
            x=v(XF+4*(ks%4),4)
            for ct in range(2):
                lg.wait(ks)
                if swap: e('v_mfma_f32_32x32x16_bf16 %s, %s, %s, %s'%(v(ACC+16*ct,16),x,WF(ct,ks),v(ACC+16*ct,16)))
                else:    e('v_mfma_f32_32x32x16_bf16 %s, %s, %s, %s'%(v(ACC+16*ct,16),WF(ct,ks),x,v(ACC+16*ct,16)))
                if ct==0 and ks+3<32: rd(ks+3)
                if ct==1 and ks<16: xdma(ks,'s33')
    kloop(False)
    e('s_branch L_p_epi')
    a.label('L_p_kV'); a.hist=[]
    kloop(True)
    a.label('L_p_epi')
    a.fence()
    P=112
    for ct in range(2):
        for q in range(4):
            for x in range(2):
                e('v_cvt_pk_bf16_f32 v%d, v%d, v%d'%(P+8*ct+2*q+x, ACC+16*ct+4*q+2*x, ACC+16*ct+4*q+2*x+1))
    e('s_cmp_eq_u32 s37, 3\ns_cbranch_scc0 L_p_norelu')
    for r in range(16): e('v_pk_max_i16 v%d, v%d, 0'%(P+r,P+r))
    a.label('L_p_norelu')
    for ct in range(2):
        for qp in range(2):
            for x in range(2):
                e('v_permlane32_swap_b32 v%d, v%d'%(P+8*ct+4*qp+x, P+8*ct+4*qp+2+x))
    e('s_waitcnt vmcnt(0)')
    e('s_cmp_eq_u32 s37, 1\ns_cbranch_scc1 L_p_stV\ns_cmp_eq_u32 s37, 3\ns_cbranch_scc1 L_p_stH')
    for ct in range(2):
        for qp in range(2):
            e('global_store_dwordx4 v12, %s, s[42:43] offset:%d%s'%(v(P+8*ct+4*qp,4),ct*1024+qp*512,sc))
    e('s_branch L_p_std')
    a.label('L_p_stV')
    for ct in range(2):
        X=P+8*ct; Y=P+8*ct+4
        for r in range(4): e('v_permlane32_swap_b32 v%d, v%d'%(X+r,Y+r))
        for r in range(4): e('v_permlane16_swap_b32 v%d, v%d'%(X+r,Y+r))
    for ct in range(2):
        for ab in range(2):
            e('global_store_dwordx4 v12, %s, s[42:43] offset:%d%s'%(v(P+8*ct+4*ab,4),ct*2048+ab*1024,sc))
    e('s_branch L_p_std')
    a.label('L_p_stH')
    for ct in range(2):
        for qp in range(2):
            e('global_store_dwordx4 v12, %s, s[42:43] offset:%d%s'%(v(P+8*ct+4*qp,4),(2*ct+qp)*1024,sc))
    a.label('L_p_std')
    e('s_add_u32 s42, s42, s44\ns_addc_u32 s43, s43, 0')
    for k in range(8): e('v_xor_b32 v%d, 0x10000, v%d'%(AD+k,AD+k))
    e('''
s_xor_b32 s19, s19, 0x10000
s_add_u32 s38, s38, 1
; X base for the block after next: +4 segs - 16 rows ; on the last two iterations step back so prefetch stays in bounds
s_mov_b32 s32, %d
s_cmp_lt_u32 s38, %d
s_cselect_b32 s32, s32, %d
s_ashr_i32 s30, s32, 31
s_add_u32 s14, s14, s32
s_addc_u32 s15, s15, s30
s_cmp_lt_u32 s38, %d
s_cbranch_scc1 L_p_it
''' % (4*32768-16*1024, NIT-1, -16*1024, NIT))
    e('s_waitcnt vmcnt(0)\ns_barrier')
    if sync:
        e('''
s_cmp_eq_u32 s4, 0
s_cbranch_scc0 L_p_nosig2
s_add_u32 s47, s45, %d
v_mov_b32 v17, s47
v_mov_b32 v18, 1
s_mov_b64 exec, 1
global_atomic_add v17, v18, s[8:9] sc1
global_atomic_add v17, v18, s[8:9] offset:128 sc1
s_mov_b64 exec, -1
L_p_nosig2:
''' % ((NIT-2)*128))
```

```python
import sys; sys.path.insert(0,'gen')
from kern import *
import chain, proj, attn, outp
NAME='gated_mix__memory_aug_recurrent_mem_tr__dense_activation_relu__prompt'
def gen(dA=200, dB=100, dA2=0, dB2=0, dbgtime=False, **kw):
    a=Asm()
    ref=open('cdna_kernels/%s.s.ref'%NAME).read().split('\n')
    hdr=[l for l in ref if l.startswith(';') and '@launch' not in l]
    lead=[]
    for l in ref:
        if l.startswith(';'):
            if '@launch' in l: lead.append('; @launch grid=(256,1,1) block=(256,1,1) lds=163840')
            else: lead.append(l)
        else: break
    a.raw('\n'.join(lead))
    header(a,None)
    K=NAME+'_kernel'
    begin(a,K)
    a.e('s_cmp_ge_u32 s2, 256\ns_cbranch_scc1 L_end')
    prologue(a)
    if dbgtime: a.e('s_memrealtime s[96:97]')
    ticket(a,chain.L_TMP)
    a.e('''
s_mov_b32 s98, s6
s_mov_b32 s99, s7
s_cmp_ge_u32 s7, 32
s_cbranch_scc1 L_end
s_cmp_eq_u32 s6, 0
s_cbranch_scc0 L_worker
s_mov_b32 s5, s7
''')
    chain.chain_setup(a,'',sync=True)
    chain.chain_loop(a,'',dA=dA,dB=dB,dA2=dA2,dB2=dB2,sync=True)
    if dbgtime: stamp(a,0)
    a.e('s_branch L_end')
    a.label('L_worker'); a.hist=[]
    a.e('''
s_sub_u32 s12, s98, 1
s_lshl_b32 s12, s12, 5
s_add_u32 s12, s12, s99         ; idx 0..223
s_cmp_ge_u32 s12, 220
s_cbranch_scc1 L_gate
s_lshr_b32 s5, s12, 1
s_and_b32 s6, s12, 1
''')
    proj.role_proj(a,sc=' sc1',sync=True)
    a.e('s_branch L_role2')
    a.label('L_gate'); a.hist=[]
    a.e('s_sub_u32 s5, s12, 220')
    outp.role_gate(a,sc=' sc1',sync=True)
    a.label('L_role2'); a.hist=[]
    if dbgtime: stamp(a,1)
    a.e('''
s_barrier
s_cmp_le_u32 s98, 4
s_cbranch_scc0 L_isattn_hi
s_cmp_lt_u32 s99, 16
s_cbranch_scc0 L_isattn_lo
s_mov_b32 s5, s99
s_sub_u32 s6, s98, 1
s_mov_b32 s7, 4
''')
    outp.role_out(a,sync=True)
    if dbgtime: stamp(a,2)
    a.e('s_branch L_end')
    a.label('L_isattn_lo'); a.hist=[]
    a.e('''
s_sub_u32 s12, s98, 1
s_lshl_b32 s12, s12, 4
s_add_u32 s12, s12, s99
s_sub_u32 s12, s12, 16
s_branch L_isattn
L_isattn_hi:
s_sub_u32 s12, s98, 5
s_lshl_b32 s12, s12, 5
s_add_u32 s12, s12, s99
s_add_u32 s12, s12, 64
L_isattn:
s_lshl_b32 s50, s12, 2
s_add_u32 s50, s50, s4
s_lshr_b32 s51, s50, 5
s_and_b32 s50, s50, 31
s_mov_b32 s52, 20
''')
    attn.role_attn(a,sc=' sc1',sync=True)
    if dbgtime: stamp(a,3)
    a.label('L_end');
    a.e('s_waitcnt vmcnt(0)\ns_endpgm')
    descriptor(a,[K])
    return a
def stamp(a,k):
    a.e('''
s_memrealtime s[94:95]
s_waitcnt lgkmcnt(0)
s_sub_u32 s94, s94, s96
s_lshl_b32 s95, s98, 5
s_add_u32 s95, s95, s99
s_lshl_b32 s95, s95, 4
s_add_u32 s95, s95, %d
v_mov_b32 v20, s95
v_mov_b32 v21, s94
s_mov_b64 exec, 1
global_store_dword v20, v21, s[8:9]
s_mov_b64 exec, -1
''' % (WS_B+4*k))
if __name__=='__main__':
    a=gen()
    out=sys.argv[1] if len(sys.argv)>1 else 'cdna_kernels/%s.s'%NAME
    open(out,'w').write(a.text()); print('instrs',a.count,'nops',a.nnops,'bytes',len(a.text()))
```

```python
from asmgen import Asm
from layout import *
from chain import v, ag, Q, f2u
import math

QF=32; KF=64; KM=96; VX=112; RAW=144; VMR=152; S=160; PX=184; PM=188; T=192; LL=200; B1=204; B2=206; ONES=208; TMP=212
def role_attn(a, sc='', sync=True, label='a'):
    e=a.e
    c=(128**-0.5)*math.log2(math.e)
    L=lambda x:'L_%s_%s'%(label,x)
    e('''
v_and_b32 v1, 63, v0
v_and_b32 v2, 15, v1            ; n / j
v_lshrrev_b32 v3, 4, v1         ; g
v_lshlrev_b32 v4, 4, v1         ; lane*16   (Q,K frags)
v_lshlrev_b32 v5, 7, v2
v_lshl_add_u32 v5, v3, 4, v5    ; V: j*128 + g*16   (+w*2048, T2 +64)
v_lshlrev_b32 v6, 3, v1         ; lane*8    (km, vm)
v_lshlrev_b32 v7, 9, v3
v_lshl_add_u32 v7, v2, 4, v7    ; O: g*512 + n*16
v_add_u32 v8, 0x1000, v7
v_add_u32 v9, 0x1000, v4
v_add_u32 v10, 0x1000, v5
; one-hot B1/B2 (K=16): t=n&7 ; hot = ((t>>2)==(g&1))
v_and_b32 v11, 7, v2
v_lshrrev_b32 v12, 2, v11
v_and_b32 v13, 1, v3
v_cmp_eq_u32 vcc, v12, v13
v_and_b32 v11, 3, v11           ; t&3
v_mov_b32 v14, 0x3f80
v_mov_b32 v15, 0x3f800000
v_mov_b32 v16, 0
v_mov_b32 v17, 0
v_cmp_eq_u32 s[60:61], 0, v11
v_cndmask_b32 v16, v16, v14, s[60:61]
v_cmp_eq_u32 s[60:61], 1, v11
v_cndmask_b32 v16, v16, v15, s[60:61]
v_cmp_eq_u32 s[60:61], 2, v11
v_cndmask_b32 v17, v17, v14, s[60:61]
v_cmp_eq_u32 s[60:61], 3, v11
v_cndmask_b32 v17, v17, v15, s[60:61]
v_cndmask_b32 v16, 0, v16, vcc
v_cndmask_b32 v17, 0, v17, vcc
s_mov_b32 s34, -1
s_mov_b32 s35, 0
s_mov_b32 s36, 0
s_mov_b32 s37, -1
v_cndmask_b32 v{B1}, 0, v16, s[34:35]
v_cndmask_b32 v{B1b}, 0, v17, s[34:35]
v_cndmask_b32 v{B2}, 0, v16, s[36:37]
v_cndmask_b32 v{B2b}, 0, v17, s[36:37]
v_mov_b32 v{O0}, 0x3f803f80
v_mov_b32 v{O1}, 0x3f803f80
v_mov_b32 v{O2}, 0x3f803f80
v_mov_b32 v{O3}, 0x3f803f80
; causal masks: thr = n - 8g (+16 qt) ; keep if c <= thr
v_lshlrev_b32 v11, 3, v3
v_sub_u32 v11, v2, v11          ; n-8g
v_add_u32 v12, 16, v11
s_mov_b32 s32, {c}
s_mov_b32 s33, {c}
v_mov_b32 v18, 0xf149f2ca       ; -1e30
'''.format(B1=B1,B1b=B1+1,B2=B2,B2b=B2+1,O0=ONES,O1=ONES+1,O2=ONES+2,O3=ONES+3,c=f2u(c)))
    for qt in range(2):
        for cc in range(8):
            sr=64+2*(qt*8+cc)
            e('v_cmp_le_i32 s[%d:%d], %d, v%d'%(sr,sr+1,cc,11+qt))
    e('s_mov_b32 s53, s51          ; segment')
    a.label(L('item'))
    def spin(name, checks, sleep):
        pass
    if sync:
        e('''
s_lshr_b32 s55, s53, 2
s_lshl_b32 s55, s55, 7
s_add_u32 s56, s55, {fq}
s_add_u32 s55, s55, {fkv}
v_mov_b32 v21, s55
v_mov_b32 v22, s56
s_mov_b32 s57, 0
{Lw}:
global_load_dword v24, v21, s[8:9] sc1
global_load_dword v25, v22, s[8:9] sc1
s_waitcnt vmcnt(0)
v_readfirstlane_b32 s59, v24
v_readfirstlane_b32 s62, v25
s_cmp_ge_u32 s59, 128
s_cselect_b32 s59, 1, 0
s_cmp_ge_u32 s62, 64
s_cselect_b32 s59, s59, 0
s_cmp_eq_u32 s59, 1
s_cbranch_scc1 {Lg}
s_add_u32 s57, s57, 1
s_cmp_gt_u32 s57, 300000
s_cbranch_scc1 {Lexit}
s_sleep 8
s_branch {Lw}
{Lg}:
'''.format(fq=FL_P+2048,fkv=FL_P,Lw=L('wait'),Lg=L('go'),Lexit=L('exit')))
    e('''
s_lshl_b32 s54, s53, 5
s_add_u32 s54, s54, s50         ; s*32+h
s_lshl_b32 s55, s54, 13
s_add_u32 s40, s8, s55
s_addc_u32 s41, s9, 0
s_add_u32 s42, s40, {qx}
s_addc_u32 s43, s41, 0
s_add_u32 s44, s40, {vx}
s_addc_u32 s45, s41, 0
s_add_u32 s40, s40, {kx}
s_addc_u32 s41, s41, 0
s_lshl_b32 s55, s54, 11
s_add_u32 s46, s8, s55
s_addc_u32 s47, s9, 0
s_add_u32 s48, s46, {vm}
s_addc_u32 s49, s47, 0
s_add_u32 s46, s46, {km}
s_addc_u32 s47, s47, 0
'''.format(qx=WS_QX,vx=WS_VX,kx=WS_KX,km=WS_KM,vm=WS_VM))
    ld=' sc1' if sync else ''
    for f in range(8): e('global_load_dwordx4 %s, v%d, s[42:43] offset:%d%s'%(v(QF+4*f,4),4 if f<4 else 9,(f&3)*1024,ld))
    for f in range(8): e('global_load_dwordx4 %s, v%d, s[40:41] offset:%d%s'%(v(KF+4*f,4),4 if f<4 else 9,(f&3)*1024,ld))
    for w in range(4):
        for t in range(2):
            e('global_load_dwordx4 %s, v%d, s[44:45] offset:%d%s'%(v(VX+8*w+4*t,4),5 if w<2 else 10,(w&1)*2048+t*64,ld))
    e('s_waitcnt vmcnt(8)')
    for qt in range(2):
        for ti,kb in enumerate((KF,KF+16)):
            acc=S+12*qt+4*ti
            for ks in range(4):
                e('v_mfma_f32_16x16x32_bf16 %s, %s, %s, %s'%(v(acc,4),v(kb+4*ks,4),v(QF+16*qt+4*ks,4),'0' if ks==0 else v(acc,4)))
    for qt in range(2):
        s0=S+12*qt
        for tau in range(2):
            for r in range(4):
                sr=64+2*(qt*8+4*tau+r)
                e('v_cndmask_b32 v%d, v18, v%d, s[%d:%d]'%(s0+4*tau+r,s0+4*tau+r,sr,sr+1))
    if sync:
        e('''
s_lshl_b32 s54, s50, 7
s_add_u32 s54, s54, {prog}
v_mov_b32 v20, s54
s_mov_b32 s57, 0
{Lw}:
global_load_dword v23, v20, s[8:9] sc1
s_waitcnt vmcnt(0)
v_readfirstlane_b32 s58, v23
s_cmp_gt_u32 s58, s53
s_cbranch_scc1 {Lg}
s_add_u32 s57, s57, 1
s_cmp_gt_u32 s57, 600000
s_cbranch_scc1 {Lexit}
s_sub_u32 s59, s53, s58
s_cmp_gt_u32 s59, 1
s_cbranch_scc0 {Lw}
s_sleep 16
s_branch {Lw}
{Lg}:
'''.format(prog=FL_PROG,Lw=L('wait2'),Lg=L('go2'),Lexit=L('exit')))
    for w in range(4): e('global_load_dwordx2 %s, v6, s[46:47] offset:%d%s'%(v(RAW+2*w,2),w*512,ld))
    for w in range(4): e('global_load_dwordx2 %s, v6, s[48:49] offset:%d%s'%(v(VMR+2*w,2),w*512,ld))
    e('s_waitcnt vmcnt(4)')
    TT=[T,216]
    for w in range(4):
        t0=TT[w&1]
        e('v_mfma_f32_16x16x16_bf16 %s, %s, %s, 0'%(v(t0,4),v(RAW+2*w,2),v(B1,2)))
        e('v_mfma_f32_16x16x16_bf16 %s, %s, %s, 0'%(v(t0+4,4),v(RAW+2*w,2),v(B2,2)))
        if w>0:
            tp=TT[(w-1)&1]
            for r in range(4): e('v_cvt_pk_bf16_f32 v%d, v%d, v%d'%(KM+4*(w-1)+r,tp+r,tp+4+r))
    for r in range(4): e('v_cvt_pk_bf16_f32 v%d, v%d, v%d'%(KM+12+r,TT[1]+r,TT[1]+4+r))
    for ks in range(4):
        for qt in range(2):
            acc=S+12*qt+8
            e('v_mfma_f32_16x16x32_bf16 %s, %s, %s, %s'%(v(acc,4),v(KM+4*ks,4),v(QF+16*qt+4*ks,4),'0' if ks==0 else v(acc,4)))
    e('s_waitcnt vmcnt(0)')
    ob=lambda w:(7 if w<2 else 8)
    e('''
s_lshl_b32 s55, s53, 18
s_lshl_b32 s56, s50, 13
s_add_u32 s55, s55, s56
s_add_u32 s55, s55, {o}
s_add_u32 s40, s8, s55
s_addc_u32 s41, s9, 0
'''.format(o=WS_O))
    for qt in range(2):
        s0=S+12*qt
        M_=TMP; T_=TMP+1; NMC=TMP+2
        e('v_max3_f32 v%d, v%d, v%d, v%d'%(T_,s0+8,s0+9,s0+10))
        e('v_max3_f32 v%d, v%d, v%d, v%d'%(M_,s0,s0+1,s0+2))
        e('v_max3_f32 v%d, v%d, v%d, v%d'%(T_,T_,s0+11,s0+3))
        e('v_max3_f32 v%d, v%d, v%d, v%d'%(M_,M_,s0+4,s0+5))
        e('v_max3_f32 v%d, v%d, v%d, v%d'%(T_,T_,s0+6,s0+7))
        e('v_max_f32 v%d, v%d, v%d'%(M_,M_,T_))
        e('v_mov_b32 v%d, v%d'%(T_,M_))
        e('v_permlane32_swap_b32 v%d, v%d'%(M_,T_))
        e('v_max_f32 v%d, v%d, v%d'%(M_,M_,T_))
        e('v_mov_b32 v%d, v%d'%(T_,M_))
        e('v_permlane16_swap_b32 v%d, v%d'%(M_,T_))
        e('v_max_f32 v%d, v%d, v%d'%(M_,M_,T_))
        e('v_mul_f32 v%d, s32, v%d'%(NMC,M_))
        for r in range(s0,s0+12,2):
            e('v_pk_fma_f32 v[%d:%d], v[%d:%d], s[32:33], v[%d:%d] op_sel_hi:[1,1,0] neg_lo:[0,0,1] neg_hi:[0,0,1]'%(r,r+1,r,r+1,NMC,NMC+1))
        for r in range(s0,s0+12): e('v_exp_f32 v%d, v%d'%(r,r))
        for i in range(4): e('v_cvt_pk_bf16_f32 v%d, v%d, v%d'%(PX+i,s0+2*i,s0+2*i+1))
        PM1=PM; PM2=PM+2
        e('v_cvt_pk_bf16_f32 v%d, v%d, v%d'%(PM2,s0+8,s0+9))
        e('v_cvt_pk_bf16_f32 v%d, v%d, v%d'%(PM2+1,s0+10,s0+11))
        e('v_cndmask_b32 v%d, 0, v%d, s[34:35]'%(PM1,PM2))
        e('v_cndmask_b32 v%d, 0, v%d, s[34:35]'%(PM1+1,PM2+1))
        e('v_cndmask_b32 v%d, 0, v%d, s[36:37]'%(PM2,PM2))
        e('v_cndmask_b32 v%d, 0, v%d, s[36:37]'%(PM2+1,PM2+1))
        e('v_mfma_f32_16x16x32_bf16 %s, %s, %s, 0'%(v(LL,4),v(ONES,4),v(PX,4)))
        e('v_mfma_f32_16x16x16_bf16 %s, %s, %s, %s'%(v(LL,4),v(ONES,2),v(PM1,2),v(LL,4)))
        TS=[T, 216]
        def pv(w):
            t0=TS[w&1]
            e('v_mfma_f32_16x16x32_bf16 %s, %s, %s, 0'%(v(t0,4),v(VX+8*w,4),v(PX,4)))
            e('v_mfma_f32_16x16x32_bf16 %s, %s, %s, 0'%(v(t0+4,4),v(VX+8*w+4,4),v(PX,4)))
            e('v_mfma_f32_16x16x16_bf16 %s, %s, %s, %s'%(v(t0,4),v(VMR+2*w,2),v(PM1,2),v(t0,4)))
            e('v_mfma_f32_16x16x16_bf16 %s, %s, %s, %s'%(v(t0+4,4),v(VMR+2*w,2),v(PM2,2),v(t0+4,4)))
        def fin(w):
            t0=TS[w&1]; o=224+4*(w&1)
            for r in (t0,t0+2,t0+4,t0+6):
                e('v_pk_mul_f32 v[%d:%d], v[%d:%d], v[%d:%d] op_sel_hi:[1,0]'%(r,r+1,r,r+1,LL,LL+1))
            for r in range(4): e('v_cvt_pk_bf16_f32 v%d, v%d, v%d'%(o+r,t0+r,t0+4+r))
            e('global_store_dwordx4 v%d, %s, s[40:41] offset:%d%s'%(ob(w),v(o,4),(w&1)*2048+qt*256,sc))
        pv(0)
        e('v_rcp_f32 v%d, v%d'%(LL,LL))
        pv(1); fin(0); pv(2); fin(1); pv(3); fin(2); fin(3)
    if sync:
        e('''
s_waitcnt vmcnt(0)
s_lshl_b32 s55, s53, 7
s_add_u32 s55, s55, {at}
v_mov_b32 v20, s55
v_mov_b32 v21, 1
s_mov_b64 exec, 1
global_atomic_add v20, v21, s[8:9] sc1
s_mov_b64 exec, -1
'''.format(at=FL_AT))
    e('s_add_u32 s53, s53, s52\ns_cmp_lt_u32 s53, 64')
    a.fence()
    e('s_cbranch_scc1 %s'%L('item'))
    a.label(L('exit'))
```

```python
from asmgen import Asm
from layout import *
import struct, math

L_M=0; L_K0=8192; L_K1=16384; L_Q=24576; L_KT=L_Q+2176; L_TMP=30976; L_WO=32768

class Q:
    def __init__(s, asm, name, maxv): s.a=asm; s.name=name; s.q=[]; s.maxv=maxv
    def issue(s, tag): s.q.append(tag)
    def wait(s, tag):
        if tag not in s.q: return
        i=s.q.index(tag); n=len(s.q)-1-i
        n=min(n,s.maxv)
        s.a.e('s_waitcnt %s(%d)'%(s.name,n)); s.q=s.q[len(s.q)-n:] if n>0 else []
    def waitall(s):
        s.a.e('s_waitcnt %s(0)'%s.name); s.q=[]
    def reset(s): s.q=[]

def f2u(x): return struct.unpack('<I',struct.pack('<f',x))[0]

def rowconst(kb,m):
    rho=2*kb+(m>>2); u=rho&3
    return 128*(rho>>3)+64*((rho>>2)&1)+32*(m&1)+16*(u&1)+(u>>1)+2*((m&3)>>1)
for kb in range(16):
    for m in range(8):
        for gb in range(4):
            assert pi_pos(32*kb+16*(m>>2)+4*gb+(m&3))==rowconst(kb,m)+4*gb
def rowrest(j,m): return rowconst(j&3,m)
for w in range(4):
    for j in range(16):
        for m in range(8):
            assert rowconst((4*w+j)&15,m)==128*((w+(j>>2))&3)+rowrest(j,m)

def v(a,n=1): return 'v%d'%a if n==1 else 'v[%d:%d]'%(a,a+n-1)
def ag(a,n=1): return 'a%d'%a if n==1 else 'a[%d:%d]'%(a,a+n-1)

aMb=[3,0,1,9]
IDX=2; aWo=4; aQw=5; aQr=6; aKr=8
gA0=10; gAr=12; gBw=13; gB0=14; gV=17; KVF=18; gVM=19
ONES=20; BSEL=24; TAGB=30; MASKB=31
VX1=32; AF=36; ACCQ=52; ACCK=56; ACCV=60; QF=64; KF=80; KXR=96; SX0=112; SX1=116; SM=120; VX2=124
WQ=lambda j: ag(8*j,8)
WK=lambda j: ag(128+8*j,8)
WV=lambda j: v(128+8*j,8)

def chain_setup(a, st, sync=False, dbgfn=None):
    e=a.e
    e('''
v_and_b32 v1, 63, v0
v_and_b32 v32, 15, v1          ; j / n / i
v_lshrrev_b32 v33, 4, v1       ; g
v_bfe_u32 v34, v1, 4, 1        ; rh
v_lshrrev_b32 v35, 5, v1       ; half
v_lshlrev_b32 v36, 4, v0       ; tid*16
s_lshl_b32 s40, s5, 13
v_add_u32 v37, s40, v36
v_mov_b32 v40, -1
v_mov_b32 v41, -1
v_mov_b32 v42, -1
v_mov_b32 v43, -1
v_add_u32 v38, 0x1000, v37
v_add_u32 v39, 0x40000, v37
v_add_u32 v44, 0x41000, v37
global_store_dwordx4 v37, v[40:43], s[8:9]{st}
global_store_dwordx4 v38, v[40:43], s[8:9]{st}
global_store_dwordx4 v39, v[40:43], s[8:9]{st}
global_store_dwordx4 v44, v[40:43], s[8:9]{st}
s_lshl_b32 s40, s5, 8
s_add_u32 s40, s40, {hb}
v_lshlrev_b32 v45, 2, v1
v_add_u32 v45, s40, v45
v_add_u32 v46, 0x2000, v45
global_store_dword v45, v40, s[8:9]{st}
global_store_dword v46, v40, s[8:9]{st}
; zero the flags area: 1 KB per chain WG (256 threads x 4 B)
s_lshl_b32 s40, s5, 10
s_add_u32 s40, s40, {fl}
v_lshlrev_b32 v45, 2, v0
v_add_u32 v45, s40, v45
v_mov_b32 v46, 0
global_store_dword v45, v46, s[8:9] sc1
s_waitcnt vmcnt(0)
s_barrier
s_cmp_eq_u32 s4, 0
s_cbranch_scc0 L_c_noready
v_mov_b32 v36, {rdy}
v_mov_b32 v37, 1
s_mov_b64 exec, 1
global_atomic_add v36, v37, s[10:11] sc1
s_mov_b64 exec, -1
L_c_noready:
'''.format(st=st,hb=WS_HOPB,fl=WS_FLAGS,rdy=DBG_READY))
    e('''
s_lshl_b32 s40, s5, 8          ; h*256
s_lshl_b32 s41, s4, 6          ; 64*w
s_add_u32 s40, s40, s41
v_lshlrev_b32 v36, 2, v32      ; 4j
v_lshlrev_b32 v37, 15, v33     ; gb*32768
v_add3_u32 v36, v36, v37, s40  ; voffset
''')
    e('s_load_dwordx2 s[12:13], s[0:1], %d\ns_load_dwordx2 s[48:49], s[0:1], %d\ns_load_dwordx2 s[50:51], s[0:1], %d'%(KA_WQ,KA_WK,KA_WV))
    e('s_waitcnt lgkmcnt(0)')
    e('s_mov_b32 s14, 0x400000\ns_mov_b32 s15, 0x00020000')
    for w in range(4):
        if w>0: a.label('L_c_wl%d'%w)
        if w<3: e('s_cmp_eq_u32 s4, %d\ns_cbranch_scc0 L_c_wl%d'%(w,w+1))
        if w>0: e('s_nop 0')
        for mat,dst in enumerate((lambda r:'a%d'%r,lambda r:'a%d'%(128+r),lambda r:'v%d'%(128+r))):
            if mat==1: e('s_mov_b64 s[52:53], s[12:13]\ns_mov_b64 s[12:13], s[48:49]')
            if mat==2: e('s_mov_b64 s[12:13], s[50:51]')
            for kb in range(16):
                j=(kb-4*w)&15
                for m in range(8):
                    e('s_mov_b32 s41, %d'%(rowconst(kb,m)*8192))
                    e('buffer_load_dword %s, v36, s[12:15], s41 offen'%dst(8*j+m))
        if w<3: e('s_branch L_c_wld')
    a.label('L_c_wld')
    if dbgfn: dbgfn(3)
    e('s_load_dwordx2 s[12:13], s[0:1], %d'%KA_WO)
    e('''
s_lshl_b32 s40, s5, 17         ; h*131072
s_lshl_b32 s41, s4, 8          ; 128*w*2
s_add_u32 s40, s40, s41
v_lshlrev_b32 v37, 2, v32      ; 4j
v_lshlrev_b32 v38, 12, v33     ; gb*4*1024
v_add3_u32 v37, v37, v38, s40
v_lshlrev_b32 {aWo}, 4, v1
s_lshl_b32 s41, s4, 15
s_add_u32 s41, s41, {lwo}
v_add_u32 {aWo}, s41, {aWo}
s_waitcnt lgkmcnt(0)
s_mov_b32 s14, 0x400000
'''.format(aWo=v(aWo),lwo=L_WO))
    for b in range(4):
        e('s_add_u32 s41, s4, %d\ns_and_b32 s41, s41, 3\ns_lshl_b32 s%d, s41, 15'%(b,44+b))
    for t in range(4):
        base=64+32*(t&1)
        for b in range(4):
            for hh in range(2):
                for mm in range(4):
                    e('s_add_u32 s41, s%d, %d'%(44+b,(16*hh+mm)*1024+t*64))
                    e('buffer_load_dword v%d, v37, s[12:15], s41 offen'%(base+(b*2+hh)*4+mm))
        if t>=1:
            e('s_waitcnt vmcnt(32)')
            pb=64+32*((t-1)&1)
            for b in range(4):
                for hh in range(2):
                    e('ds_write_b128 %s, %s offset:%d'%(v(aWo),v(pb+(b*2+hh)*4,4),((t-1)*4+b)*2048+hh*1024))
            e('s_waitcnt lgkmcnt(0)')
    e('s_waitcnt vmcnt(0)')
    pb=64+32
    for b in range(4):
        for hh in range(2):
            e('ds_write_b128 %s, %s offset:%d'%(v(aWo),v(pb+(b*2+hh)*4,4),(3*4+b)*2048+hh*1024))
    e('s_load_dwordx2 s[12:13], s[0:1], %d'%KA_MEM0)
    e('''
v_and_b32 v64, 7, v0           ; row
v_lshrrev_b32 v65, 3, v0       ; q8 (0..31)
v_and_b32 v66, 1, v65          ; oct
v_lshrrev_b32 v67, 1, v65      ; rho (0..15)
v_lshrrev_b32 v68, 3, v67
v_lshlrev_b32 v68, 7, v68
v_bfe_u32 v69, v67, 2, 1
v_lshlrev_b32 v69, 6, v69
v_add_u32 v68, v68, v69
v_and_b32 v69, 1, v67
v_lshlrev_b32 v69, 4, v69
v_add_u32 v68, v68, v69
v_lshlrev_b32 v69, 3, v66
v_add_u32 v68, v68, v69
v_bfe_u32 v69, v67, 1, 1
v_add_u32 v68, v68, v69        ; D0
v_lshlrev_b32 v68, 1, v68
v_lshlrev_b32 v64, 10, v64
v_add_u32 v68, v68, v64
s_waitcnt lgkmcnt(0)
s_mov_b32 s14, 8192
''')
    for hlf in range(2):
        for n in range(8):
            e('buffer_load_ushort v%d, v68, s[12:15], 0 offen offset:%d'%(72+8*hlf+n, hlf*512+(32*(n&1)+2*(n>>1))*2))
    e('s_waitcnt vmcnt(0)')
    for hlf in range(2):
        for d in range(4):
            e('v_lshl_or_b32 v%d, v%d, 16, v%d'%(96+4*hlf+d, 72+8*hlf+2*d+1, 72+8*hlf+2*d))
    e('''
v_lshlrev_b32 v64, 4, v0
v_add_u32 v65, 0x1000, v64
ds_write_b128 v64, v[96:99]
ds_write_b128 v65, v[100:103]
; gB0 = w*2048 + lane*16  (hop-B DMA offset, K DMA offset)
s_lshl_b32 s43, s4, 11
v_lshlrev_b32 v64, 4, v1
v_add_u32 {gB0}, s43, v64
; idx
v_mov_b32 {IDX}, 0x8888
v_mov_b32 v64, 0xdddd
v_cmp_le_u32 vcc, 8, v32
v_cndmask_b32 {IDX}, {IDX}, v64, vcc
; lanepart = g*128 + (i&7)*16
v_and_b32 v64, 7, v32
v_lshlrev_b32 v64, 4, v64
v_lshlrev_b32 v65, 7, v33
v_add_u32 v70, v64, v65
; aQw = L_Q + w*544 + half*272 + rh*128 + j*8
s_mul_i32 s40, s4, 544
s_add_u32 s40, s40, {lq}
v_mul_u32_u24 v64, 272, v35
v_lshlrev_b32 v65, 7, v34
v_lshlrev_b32 v66, 3, v32
v_add3_u32 v64, v64, v65, v66
v_add_u32 {aQw}, s40, v64
; aQr
v_bfe_u32 v64, v1, 2, 1
v_mul_u32_u24 v64, 272, v64
v_and_b32 v65, 1, v1
v_lshlrev_b32 v65, 7, v65
v_bfe_u32 v66, v1, 3, 1
v_lshl_add_u32 v66, v33, 2, v66
v_lshlrev_b32 v66, 3, v66
v_add3_u32 v64, v64, v65, v66
v_add_u32 {aQr}, {lq}, v64
; aKr = L_K0 + lane*16
v_lshlrev_b32 v64, 4, v1
v_add_u32 {aKr}, {lk0}, v64
; gA0 = (8w + 2*half + (j>>3))*8192 + (2rh+oct)*2048 + h*64 + (j&3)*16
v_lshrrev_b32 v64, 3, v32
v_lshl_add_u32 v64, v35, 1, v64
s_lshl_b32 s40, s4, 3
v_add_u32 v64, s40, v64
v_lshlrev_b32 v64, 13, v64
v_bfe_u32 v65, v32, 2, 1
v_lshl_add_u32 v65, v34, 1, v65
v_lshlrev_b32 v65, 11, v65
v_and_b32 v66, 3, v32
v_lshlrev_b32 v66, 4, v66
v_add3_u32 v64, v64, v65, v66
s_lshl_b32 s40, s5, 6
v_add_u32 {gA0}, s40, v64
; gAr = h*8192 + w*2048 + g*256 + (i&3)*64 + (i>>2)*16
v_lshlrev_b32 v64, 8, v33
v_and_b32 v65, 3, v32
v_lshlrev_b32 v65, 6, v65
v_lshrrev_b32 v66, 2, v32
v_lshlrev_b32 v66, 4, v66
v_add3_u32 v64, v64, v65, v66
s_lshl_b32 s40, s5, 13
s_add_u32 s40, s40, s43
v_add_u32 {gAr}, s40, v64
; gBw = h*256 + (w&1)*128 + (w>>1)*64 + n*16 + g*4
s_lshl_b32 s40, s5, 8
s_and_b32 s41, s4, 1
s_lshl_b32 s41, s41, 7
s_add_u32 s40, s40, s41
s_lshr_b32 s41, s4, 1
s_lshl_b32 s41, s41, 6
s_add_u32 s40, s40, s41
v_lshlrev_b32 v64, 4, v32
v_lshl_add_u32 v64, v33, 2, v64
v_add_u32 {gBw}, s40, v64
; gV = w*2048 + j*128 + g*16
v_lshlrev_b32 v64, 7, v32
v_lshl_add_u32 v64, v33, 4, v64
v_add_u32 {gV}, s43, v64
; gVM = w*512 + lane*8
s_lshl_b32 s40, s4, 9
v_lshlrev_b32 v64, 3, v1
v_add_u32 {gVM}, s40, v64
v_mov_b32 v20, 0x3f803f80
v_mov_b32 v21, 0x3f803f80
v_mov_b32 v22, 0x3f803f80
v_mov_b32 v23, 0x3f803f80
v_mov_b32 v24, 0
v_mov_b32 v25, 0
v_mov_b32 v28, 0
v_mov_b32 v29, 0
v_and_b32 v64, 3, v32
v_mov_b32 v65, 0x3f80
v_mov_b32 v66, 0x3f800000
v_mov_b32 v26, 0
v_mov_b32 v27, 0
v_cmp_eq_u32 vcc, 0, v64
v_cndmask_b32 v26, v26, v65, vcc
v_cmp_eq_u32 vcc, 1, v64
v_cndmask_b32 v26, v26, v66, vcc
v_cmp_eq_u32 vcc, 2, v64
v_cndmask_b32 v27, v27, v65, vcc
v_cmp_eq_u32 vcc, 3, v64
v_cndmask_b32 v27, v27, v66, vcc
v_mov_b32 {MASKB}, -1
v_mov_b32 v64, -2
v_cmp_eq_u32 vcc, 0, v33
v_cndmask_b32 {MASKB}, {MASKB}, v64, vcc
'''.format(gB0=v(gB0),IDX=v(IDX),aQw=v(aQw),aQr=v(aQr),aKr=v(aKr),gA0=v(gA0),
           gAr=v(gAr),gBw=v(gBw),gV=v(gV),gVM=v(gVM),MASKB=v(MASKB),aWo=v(aWo),lq=L_Q,lk0=L_K0))
    for b in (3,2,1,0):
        e('s_add_u32 s40, s4, %d\ns_and_b32 s40, s40, 3\ns_lshl_b32 s40, s40, 11\nv_add_u32 %s, s40, v70'%(b,v(aMb[b])))
    c=(128**-0.5)*math.log2(math.e)
    e('''
s_add_u32 s16, s8, {ha}
s_addc_u32 s17, s9, 0
s_add_u32 s18, s8, {hb}
s_addc_u32 s19, s9, 0
s_lshl_b32 s40, s5, 13
s_add_u32 s20, s8, {kx}
s_addc_u32 s21, s9, 0
s_add_u32 s20, s20, s40
s_addc_u32 s21, s21, 0
s_add_u32 s22, s8, {vx}
s_addc_u32 s23, s9, 0
s_add_u32 s22, s22, s40
s_addc_u32 s23, s23, 0
s_lshl_b32 s40, s5, 11
s_add_u32 s24, s8, {km}
s_addc_u32 s25, s9, 0
s_add_u32 s24, s24, s40
s_addc_u32 s25, s25, 0
s_add_u32 s26, s8, {vm}
s_addc_u32 s27, s9, 0
s_add_u32 s26, s26, s40
s_addc_u32 s27, s27, 0
s_mov_b32 s28, 0
s_mov_b32 s29, 0
s_mov_b32 s30, 0               ; expected tag of the M image (previous step)
s_mov_b32 s31, 0               ; tag check enable
s_mov_b32 s32, {c}
s_mov_b32 s33, {c}
s_mov_b32 s34, -1
s_mov_b32 s35, 0
s_mov_b32 s36, 0
s_mov_b32 s37, -1
s_mov_b32 s38, 0x000f000f
s_mov_b32 s39, 0x000f000f
s_add_u32 s46, s16, 0x8000     ; second A-store base
s_addc_u32 s47, s17, 0
s_mov_b64 s[92:93], s[18:19]
s_mov_b32 s45, 0
'''.format(ha=WS_HOPA,hb=WS_HOPB,kx=WS_KX,vx=WS_VX,km=WS_KM,vm=WS_VM,c=f2u(c)))
    if dbgfn:
        e('s_waitcnt vmcnt(0)'); dbgfn(2)
    for r in range(ACCQ,ACCQ+12): e('v_mov_b32 v%d, 0'%r)
    e('''
s_mov_b32 s44, 0
L_c_waitready:
v_mov_b32 v64, {rdy}
global_load_dword v65, v64, s[10:11] sc1
s_waitcnt vmcnt(0)
v_readfirstlane_b32 s40, v65
s_cmp_ge_u32 s40, 32
s_cbranch_scc1 L_c_ready
s_add_u32 s44, s44, 1
s_cmp_gt_u32 s44, 200000
s_cbranch_scc1 L_c_done
s_sleep 4
s_branch L_c_waitready
L_c_ready:
'''.format(rdy=DBG_READY))
    if sync:
        e('''
L_c_waitkv:
v_mov_b32 v64, {f}
global_load_dword v65, v64, s[8:9] sc1
s_waitcnt vmcnt(0)
v_readfirstlane_b32 s40, v65
s_cmp_ge_u32 s40, 128
s_cbranch_scc1 L_c_kvok
s_add_u32 s44, s44, 1
s_cmp_gt_u32 s44, 200000
s_cbranch_scc1 L_c_done
s_sleep 4
s_branch L_c_waitkv
L_c_kvok:
'''.format(f=FL_P))
    e('''
s_add_u32 m0, s43, {k0}
s_nop 0
global_load_lds_dwordx4 {gK}, s[20:21] sc1
global_load_lds_dwordx4 {gK}, s[20:21] offset:1024 sc1
s_add_u32 s20, s20, 0x40000
s_addc_u32 s21, s21, 0
v_mov_b32 v{kvf}, 128
s_waitcnt vmcnt(0) lgkmcnt(0)
s_barrier
'''.format(k0=L_K0,gK=v(gB0),kvf=KVF))

def chain_loop(a, st, nsteps=64, ts=False, dA=0, dB=0, stub=0, dA2=0, dB2=0, cnt=False, sync=False, fp=48, fpB=40, nA=1, pA=120, nB=1, pB=120, trace=False, big=0, nbig=4):
    e=a.e
    lg=Q(a,'lgkmcnt',15)
    tsn=[0]
    def TS(name=None):
        if not ts: return
        i=tsn[0]; tsn[0]+=1
        assert i<22
        e('s_memtime s[%d:%d]'%(50+2*i,51+2*i))
        a.tsnames.append(name)
    a.tsnames=[]
    def delay(n):
        for _ in range(n//4): e('v_mov_b32 v34, v35')
    if ts or cnt or trace: e('s_mov_b32 s48, 0\ns_mov_b32 s49, 0\ns_mov_b32 s94, 0')
    FRB=[KXR,QF,KF,AF]
    def fr(j): return FRB[j>>2]+4*(j&3)
    def rdF(j):
        e('ds_read_b128 %s, %s offset:%d'%(v(fr(j),4),v(aMb[j>>2]),L_M+(j&3)*512)); lg.issue(('A',j))
    SMF=lambda acc,A,B: e('v_smfmac_f32_16x16x64_bf16 %s, %s, %s, %s'%(v(acc,4),A,B,v(IDX)))
    for j in range(4): rdF(j)
    e('s_waitcnt lgkmcnt(0)'); lg.reset()
    a.fence()
    a.label('L_c_step')
    TS('top')
    if trace:
        e('s_mov_b32 m0, s28\nv_writelane_b32 v7, s94, m0\nv_writelane_b32 v11, s48, m0\nv_writelane_b32 v15, s49, m0\ns_memtime s[94:95]')
    if stub:
        delay(stub)
        e('s_cmp_eq_u32 s28, %d\ns_cbranch_scc1 L_c_done'%(nsteps-1))
        e('s_mov_b32 s41, 0')
    def QKs(j):
        lg.wait(('A',j))
        SMF(ACCQ,v(fr(j),4),WQ(j))
    if stub:
        e('s_barrier'); e('s_branch L_c_stub')
    SMF(ACCQ,v(fr(0),4),WQ(0))
    e('s_barrier')
    TS('bar')
    for j in (4,5,6,7): rdF(j)
    SMF(ACCK,v(fr(0),4),WK(0))
    SMF(ACCQ,v(fr(1),4),WQ(1))
    SMF(ACCK,v(fr(1),4),WK(1))
    if sync:
        e('v_readfirstlane_b32 s40, v%d'%KVF)
    for j in range(2,16):
        QKs(j)
        if j<6:
            rdF(4+2*j); rdF(5+2*j)
        SMF(ACCK,v(fr(j),4),WK(j))
        if j==2:
            e('s_and_b32 s41, s28, 1\ns_lshl_b32 s41, s41, 13\ns_sub_u32 s41, %d, s41\ns_add_u32 m0, s43, s41'%L_K1)
            if sync:
                e('s_cmp_ge_u32 s40, 128\ns_cbranch_scc0 L_c_kvspin')
                a.label('L_c_kvgo')
        if j==6: e('global_load_dwordx4 %s, %s, s[22:23] sc1'%(v(VX1,4),v(gV)))
        if j==7: e('global_load_dwordx4 %s, %s, s[22:23] offset:64 sc1'%(v(VX2,4),v(gV)))
        if j==8: e('global_load_lds_dwordx4 %s, s[20:21] sc1'%v(gB0))
        if j==9: e('global_load_lds_dwordx4 %s, s[20:21] offset:1024 sc1'%v(gB0))
        if j==10: e('s_add_u32 s20, s20, 0x40000\ns_addc_u32 s21, s21, 0')
        if j==11: e('s_add_u32 s22, s22, 0x40000\ns_addc_u32 s23, s23, 0')
        if sync and j==12:
            e('s_lshl_b32 s41, s5, 7\ns_add_u32 s41, s41, %d\nv_mov_b32 v113, s41\nv_mov_b32 v114, s28'%FL_PROG)
            e('s_mov_b64 exec, 1\nglobal_store_dword v113, v114, s[8:9] sc1\ns_mov_b64 exec, -1')
        if sync and j==13:
            e('s_add_u32 s41, s28, 2\ns_lshr_b32 s41, s41, 2\ns_min_u32 s41, s41, 15\ns_lshl_b32 s41, s41, 7\ns_add_u32 s41, s41, %d'%FL_P)
            e('v_mov_b32 v112, s41')
        if sync and j==14: e('global_load_dword v%d, v112, s[8:9] sc1'%KVF)
    TS('QK')
    QP=SX1; KP=SX1+2
    def Vs(j): SMF(ACCV,v(fr(j),4),WV(j))
    def rdQ1(base,off,ks,hh,tag):
        e('ds_read_b64_tr_b16 %s, %s offset:%d'%(v(base+4*ks+2*hh,2),v(aQr),off+ks*544+hh*16)); lg.issue((tag,ks,hh))
    def rdQ(base,off,ks,tag):
        rdQ1(base,off,ks,0,tag); rdQ1(base,off,ks,1,tag)
    kreg={0:KXR,4:KXR+4,1:KXR+8,5:KXR+12,2:AF,6:AF+4,3:AF+8,7:AF+12}
    def rdK(f):
        e('ds_read_b128 %s, %s offset:%d'%(v(kreg[f],4),v(aKr),f*1024)); lg.issue(('K',f))
    def Sx(f,first):
        ks=f&3; tau=f>>2
        lg.wait(('K',f)); lg.wait(('q',ks,1))
        acc=SX0 if tau==0 else SX1
        e('v_mfma_f32_16x16x32_bf16 %s, %s, %s, %s'%(v(acc,4),v(kreg[f],4),v(QF+4*ks,4),'0' if first else v(acc,4)))
    def Sm(ks):
        lg.wait(('k',ks,1))
        e('v_mfma_f32_16x16x32_bf16 %s, %s, %s, %s'%(v(SM,4),v(KF+4*ks,4),v(QF+4*ks,4),'0' if ks==0 else v(SM,4)))
    Vs(0)
    e('v_cvt_pk_bf16_f32 %s, %s, %s'%(v(QP),v(ACCQ),v(ACCQ+1)))
    e('v_cvt_pk_bf16_f32 %s, %s, %s'%(v(QP+1),v(ACCQ+2),v(ACCQ+3)))
    e('ds_write_b64 %s, %s'%(v(aQw),v(QP,2))); lg.issue('qw')
    Vs(1)
    e('v_cvt_pk_bf16_f32 %s, %s, %s'%(v(KP),v(ACCK),v(ACCK+1)))
    e('v_cvt_pk_bf16_f32 %s, %s, %s'%(v(KP+1),v(ACCK+2),v(ACCK+3)))
    e('ds_write_b64 %s, %s offset:2176'%(v(aQw),v(KP,2))); lg.issue('kw')
    Vs(2)
    e('global_store_dwordx2 %s, %s, s[24:25] sc1'%(v(gVM),v(KP,2)))
    Vs(3); rdK(0); rdK(4)
    Vs(4); rdK(1); rdK(5)
    Vs(5); Vs(6); Vs(7)
    lg.wait('kw')
    TS('prebar')
    e('s_barrier')
    rdQ(QF,0,0,'q')
    Vs(8); rdQ(QF,0,1,'q')
    Vs(9); rdQ(QF,0,2,'q')
    Vs(10); rdQ(QF,0,3,'q')
    Vs(11); rdQ(KF,2176,0,'k')
    Vs(12); rdQ(KF,2176,1,'k'); rdK(2)
    Vs(13); rdQ(KF,2176,2,'k'); rdK(6)
    Vs(14); rdQ(KF,2176,3,'k'); rdK(3)
    Vs(15); rdK(7)
    TS('preS')
    seq=[(0,0),(1,0),(2,0),(3,0),(0,1),(1,1),(0,2),(1,2),(0,3),(1,3),(2,1),(3,1),(2,2),(3,2),(2,3),(3,3)]
    bslot={}
    def rdB1(i,slot,hh):
        t,b=seq[i]; bslot[i]=slot
        e('ds_read_b128 %s, %s offset:%d'%(v(slot+4*hh,4),v(aWo),(t*4+b)*2048+hh*1024)); lg.issue(('W',i,hh))
    def rdB(i,slot): rdB1(i,slot,0); rdB1(i,slot,1)
    pre=[(0,KXR),(1,KXR+8),(2,KF),(3,KF+8),(4,AF),(5,AF+8),(6,QF),(7,QF+8)]
    pl=[]
    for i,sl in pre: pl+= [(i,sl,0),(i,sl,1)]
    def fill(n=1):
        for _ in range(n):
            if pl: rdB1(*pl.pop(0))
    M_=ACCQ; T_=ACCQ+1; NMC=ACCQ+2
    Sx(0,True); Sx(4,True); Sx(1,False); Sx(5,False)
    Sm(0); fill(); Sm(1); fill(); Sm(2); fill(); Sm(3); fill()
    Sx(2,False); Sx(6,False)
    Sx(3,False)
    e('v_max3_f32 v%d, v%d, v%d, v%d'%(T_,SM,SM+1,SM+2))
    Sx(7,False)
    e('v_max_f32 v%d, v%d, v%d'%(T_,T_,SM+3))
    fill(2)
    TS('VS')
    e('v_max3_f32 v%d, v%d, v%d, v%d'%(M_,SX0,SX0+1,SX0+2))
    fill(2)
    e('v_max3_f32 v%d, v%d, v%d, v%d'%(T_,T_,SX0+3,M_))
    e('v_max3_f32 v%d, v%d, v%d, v%d'%(M_,SX1,SX1+1,SX1+2))
    e('v_max3_f32 v%d, v%d, v%d, v%d'%(M_,M_,SX1+3,T_))
    e('v_mov_b32 v%d, v%d'%(T_,M_))
    fill(2)
    e('v_permlane32_swap_b32 v%d, v%d'%(M_,T_))
    e('v_max_f32 v%d, v%d, v%d'%(M_,M_,T_))
    e('v_mov_b32 v%d, v%d'%(T_,M_))
    fill(2)
    e('v_permlane16_swap_b32 v%d, v%d'%(M_,T_))
    e('v_max_f32 v%d, v%d, v%d'%(M_,M_,T_))
    e('v_mul_f32 v%d, s32, v%d'%(NMC,M_))
    TS('max')
    pkf=lambda r: e('v_pk_fma_f32 v[%d:%d], v[%d:%d], s[32:33], v[%d:%d] op_sel_hi:[1,1,0] neg_lo:[0,0,1] neg_hi:[0,0,1]'%(r,r+1,r,r+1,NMC,NMC+1))
    for r in (SX0,SX0+2,SX1,SX1+2): pkf(r)
    for r in range(SX0,SX0+8):
        e('v_exp_f32 v%d, v%d'%(r,r))
        if r>=SX0+2: fill()
    PX=ACCK
    pkf(SM); pkf(SM+2)
    e('v_cvt_pk_bf16_f32 v%d, v%d, v%d'%(PX,SX0,SX0+1))
    e('v_cvt_pk_bf16_f32 v%d, v%d, v%d'%(PX+1,SX0+2,SX0+3))
    e('v_cvt_pk_bf16_f32 v%d, v%d, v%d'%(PX+2,SX1,SX1+1))
    e('v_cvt_pk_bf16_f32 v%d, v%d, v%d'%(PX+3,SX1+2,SX1+3))
    TS('expx')
    e('s_waitcnt vmcnt(%d)'%(5 if sync else 3))
    T1=SX0; T2=SX1; L_=VX2
    e('v_exp_f32 v%d, v%d'%(SM,SM))
    e('v_mfma_f32_16x16x32_bf16 %s, %s, %s, 0'%(v(T2,4),v(VX2,4),v(PX,4)))
    e('v_exp_f32 v%d, v%d'%(SM+1,SM+1))
    e('v_mfma_f32_16x16x32_bf16 %s, %s, %s, 0'%(v(T1,4),v(VX1,4),v(PX,4)))
    e('v_exp_f32 v%d, v%d'%(SM+2,SM+2))
    e('v_mfma_f32_16x16x32_bf16 %s, %s, %s, 0'%(v(L_,4),v(ONES,4),v(PX,4)))
    e('v_exp_f32 v%d, v%d'%(SM+3,SM+3))
    VP=ACCV
    e('v_cvt_pk_bf16_f32 v%d, v%d, v%d'%(VP,ACCV,ACCV+1))
    PM1=ACCQ; PM2=ACCQ+2
    e('v_cvt_pk_bf16_f32 v%d, v%d, v%d'%(PM2,SM,SM+1))
    e('v_cvt_pk_bf16_f32 v%d, v%d, v%d'%(PM2+1,SM+2,SM+3))
    e('v_cvt_pk_bf16_f32 v%d, v%d, v%d'%(VP+1,ACCV+2,ACCV+3))
    e('v_cndmask_b32 v%d, 0, v%d, s[34:35]'%(PM1,PM2))
    e('v_cndmask_b32 v%d, 0, v%d, s[34:35]'%(PM1+1,PM2+1))
    e('v_mfma_f32_16x16x16_bf16 %s, %s, %s, %s'%(v(L_,4),v(ONES,2),v(PM1,2),v(L_,4)))
    e('v_cndmask_b32 v%d, 0, v%d, s[36:37]'%(PM2,PM2))
    e('v_cndmask_b32 v%d, 0, v%d, s[36:37]'%(PM2+1,PM2+1))
    e('v_mfma_f32_16x16x16_bf16 %s, %s, %s, %s'%(v(T1,4),v(VP,2),v(PM1,2),v(T1,4)))
    WA=[ACCQ,ACCK,ACCV,VX1]
    e('v_mov_b64 v[%d:%d], 0\nv_mov_b64 v[%d:%d], 0'%(WA[1],WA[1]+1,WA[1]+2,WA[1]+3))
    e('v_mfma_f32_16x16x16_bf16 %s, %s, %s, %s'%(v(T2,4),v(VP,2),v(PM2,2),v(T2,4)))
    e('global_store_dwordx2 %s, %s, s[26:27] sc1'%(v(gVM),v(VP,2)))
    TS('pv')
    e('s_cmp_eq_u32 s28, %d\ns_cbranch_scc1 L_c_done'%(nsteps-1))
    fill(16)
    for t in (3,0):
        e('v_mov_b64 v[%d:%d], 0\nv_mov_b64 v[%d:%d], 0'%(WA[t],WA[t]+1,WA[t]+2,WA[t]+3))
    e('v_rcp_f32 v%d, v%d'%(L_,L_))
    e('v_mov_b64 v[%d:%d], 0\nv_mov_b64 v[%d:%d], 0'%(WA[2],WA[2]+1,WA[2]+2,WA[2]+3))
    for r in (T1,T1+2,T2,T2+2):
        e('v_pk_mul_f32 v[%d:%d], v[%d:%d], v[%d:%d] op_sel_hi:[1,0]'%(r,r+1,r,r+1,L_,L_+1))
    O4=SM
    for r in range(4):
        e('v_cvt_pk_bf16_f32 v%d, v%d, v%d'%(O4+r,T1+r,T2+r))
    e('ds_write_b128 %s, %s offset:%d'%(v(aMb[0]),v(O4,4),L_M)); lg.issue('ow')
    TS('SMX')
    def Wm(i,areg):
        t,b=seq[i]
        lg.wait(('W',i,1))
        SMF(WA[t],v(areg,4),v(bslot[i],8))
    Wm(0,O4); rdB(8,bslot[0]); Wm(1,O4); rdB(9,bslot[1]); Wm(2,O4); rdB(10,bslot[2])
    lg.wait('ow')
    TS('ow')
    e('s_barrier')
    OF={1:SX0,2:SX1,3:VX2}
    for b in (1,2,3):
        e('ds_read_b128 %s, %s offset:%d'%(v(OF[b],4),v(aMb[b]),L_M)); lg.issue(('o',b))
    Wm(3,O4); rdB(11,bslot[3])
    G0=KXR; G1=KXR+4
    nxt=12
    for i in range(4,16):
        t,b=seq[i]
        lg.wait(('o',b))
        Wm(i,OF[b])
        if nxt<16:
            rdB(nxt,bslot[i]); nxt+=1
        if i==11:
            e('v_cvt_pk_bf16_f32 v%d, v%d, v%d'%(G0,WA[0],WA[0]+1))
        if i==12:
            e('v_cvt_pk_bf16_f32 v%d, v%d, v%d'%(G0+1,WA[0]+2,WA[0]+3))
        if i==13:
            e('v_cvt_pk_bf16_f32 v%d, v%d, v%d'%(G0+2,WA[1],WA[1]+1))
            e('v_cvt_pk_bf16_f32 v%d, v%d, v%d'%(G0+3,WA[1]+2,WA[1]+3))
        if i==14:
            e('v_and_or_b32 v%d, v%d, -2, s29'%(G0,G0))
            e('global_store_dwordx4 %s, %s, s[16:17]%s'%(v(gA0),v(G0,4),st))
    a.label('L_c_stub')
    if stub:
        e('v_and_or_b32 v%d, v%d, -2, s29'%(G0,G0))
        e('global_store_dwordx4 %s, %s, s[16:17]%s'%(v(gA0),v(G0,4),st))
        delay(64)
    e('v_cvt_pk_bf16_f32 v%d, v%d, v%d'%(G1,WA[2],WA[2]+1))
    e('v_cvt_pk_bf16_f32 v%d, v%d, v%d'%(G1+1,WA[2]+2,WA[2]+3))
    e('v_cvt_pk_bf16_f32 v%d, v%d, v%d'%(G1+2,WA[3],WA[3]+1))
    e('v_cvt_pk_bf16_f32 v%d, v%d, v%d'%(G1+3,WA[3]+2,WA[3]+3))
    e('v_and_or_b32 v%d, v%d, -2, s29'%(G1,G1))
    e('global_store_dwordx4 %s, %s, s[46:47]%s'%(v(gA0),v(G1,4),st))
    TS('WO')
    for r in range(ACCQ,ACCQ+12,2): e('v_mov_b64 v[%d:%d], 0'%(r,r+1))
    e('v_not_b32 v%d, v%d'%(TAGB,MASKB))
    e('v_and_b32 v%d, s29, v%d'%(TAGB,TAGB))
    e('s_mov_b32 m0, s43')
    delay(dA)
    def xdelay(tag):
        if not big: return
        e('s_cmp_lt_u32 s28, %d\ns_cbranch_scc0 L_c_nox%s'%(nbig,tag))
        delay(big)
        a.label('L_c_nox%s'%tag)
    xdelay('A')
    R0=AF; R1=AF+4; DA=AF+8; DB=AF+12; S0=QF; S1=QF+4
    def ldA(r0,r1):
        e('global_load_dwordx4 %s, %s, s[16:17] sc1'%(v(r0,4),v(gAr)))
        e('global_load_dwordx4 %s, %s, s[16:17] offset:1024 sc1'%(v(r1,4),v(gAr)))
    def redA(r0,r1,n0,n1,ok):
        e('s_waitcnt vmcnt(%d)'%n0)
        e('v_mfma_f32_16x16x32_bf16 %s, %s, %s, 0'%(v(DA,4),v(r0,4),v(BSEL+2,4)))
        e('v_mfma_f32_16x16x32_bf16 %s, %s, %s, 0'%(v(DB,4),v(r0,4),v(BSEL,4)))
        e('v_xor_b32 v80, s29, v%d'%r0)
        e('s_waitcnt vmcnt(%d)'%n1)
        e('v_mfma_f32_16x16x32_bf16 %s, %s, %s, %s'%(v(DA,4),v(r1,4),v(BSEL+2,4),v(DA,4)))
        e('v_mfma_f32_16x16x32_bf16 %s, %s, %s, %s'%(v(DB,4),v(r1,4),v(BSEL,4),v(DB,4)))
        e('v_bitop3_b32 v80, v80, v%d, s29 bitop3:0xf6'%r1)
        e('v_and_b32 v80, 1, v80')
        e('v_cmp_ne_u32 vcc, 0, v80')
        if ts or cnt or trace: e('s_add_u32 s48, s48, 1')
        e('s_cbranch_vccz %s'%ok)
    pre=[(R0,R1),(QF,QF+4),(QF+8,QF+12)][:nA]
    for i,(r0,r1) in enumerate(pre):
        ldA(r0,r1)
        if i+1<len(pre): delay(pA)
    for i,(r0,r1) in enumerate(pre):
        rem=2*(len(pre)-1-i)
        redA(r0,r1,rem+1,rem,'L_c_okA')
        a.fence()
    a.label('L_c_pollA')
    ldA(R0,R1)
    redA(R0,R1,1,0,'L_c_okA')
    e('s_add_u32 s44, s44, 1\ns_cmp_gt_u32 s44, 200000\ns_cbranch_scc1 L_c_done\ns_branch L_c_pollA')
    a.label('L_c_okA')
    TS('pollA')
    e('s_nop 3')
    e('v_pk_add_f32 v[%d:%d], v[%d:%d], v[%d:%d]'%(DA,DA+1,DA,DA+1,DA+2,DA+3))
    e('v_pk_add_f32 v[%d:%d], v[%d:%d], v[%d:%d]'%(DB,DB+1,DB,DB+1,DB+2,DB+3))
    e('v_add_f32 v%d, v%d, v%d'%(DA,DA,DA+1))
    e('v_add_f32 v%d, v%d, v%d'%(DB,DB,DB+1))
    e('v_cvt_pk_bf16_f32 v%d, v%d, v%d'%(DA,DA,DB))
    e('v_and_or_b32 v%d, v%d, v%d, v%d'%(DA,DA,MASKB,TAGB))
    e('s_mov_b64 exec, s[38:39]')
    e('global_store_dword %s, v%d, s[18:19]%s'%(v(gBw),DA,st))
    e('s_mov_b64 exec, -1')
    TS('HA')
    e('''s_mov_b64 s[92:93], s[18:19]
s_mov_b32 s30, s29
s_mov_b32 s31, 1
s_add_u32 s28, s28, 1
s_and_b32 s40, s28, 1
s_lshl_b32 s41, s40, 18
s_add_u32 s16, s8, s41
s_addc_u32 s17, s9, 0
s_add_u32 s46, s16, 0x8000
s_addc_u32 s47, s17, 0
s_lshl_b32 s41, s40, 13
s_add_u32 s41, s41, %d
s_add_u32 s18, s8, s41
s_addc_u32 s19, s9, 0
s_lshr_b32 s29, s28, 1
s_and_b32 s29, s29, 1
s_add_u32 s24, s24, 0x10000
s_addc_u32 s25, s25, 0
s_add_u32 s26, s26, 0x10000
s_addc_u32 s27, s27, 0
v_xor_b32 %s, 0x6000, %s'''%(WS_HOPB,v(aKr),v(aKr)))
    delay(max(0,dB-80))
    xdelay('B')
    def dmaB():
        e('global_load_lds_dwordx4 %s, s[92:93] sc1'%v(gB0))
        e('global_load_lds_dwordx4 %s, s[92:93] offset:1024 sc1'%v(gB0))
    CK=SX0
    dmaB()
    delay(pB)
    dmaB()
    a.label('L_c_loopB')
    e('s_waitcnt vmcnt(2)')
    lg.reset()
    for j in range(4): rdF(j)
    lg.wait(('A',0))
    e('v_xor_b32 v%d, s30, v%d'%(CK,fr(0)))
    lg.wait(('A',1))
    e('v_bitop3_b32 v%d, v%d, v%d, s30 bitop3:0xf6'%(CK,CK,fr(1)))
    lg.wait(('A',2))
    e('v_bitop3_b32 v%d, v%d, v%d, s30 bitop3:0xf6'%(CK,CK,fr(2)))
    lg.wait(('A',3))
    e('v_bitop3_b32 v%d, v%d, v%d, s30 bitop3:0xf6'%(CK,CK,fr(3)))
    e('v_and_b32 v%d, 1, v%d'%(CK,CK))
    e('v_cmp_ne_u32 vcc, 0, v%d'%CK)
    if ts or cnt or trace: e('s_add_u32 s49, s49, 1')
    e('s_cbranch_vccz L_c_okB')
    dmaB()
    e('s_add_u32 s44, s44, 1\ns_cmp_gt_u32 s44, 200000\ns_cbranch_scc1 L_c_done\ns_branch L_c_loopB')
    a.label('L_c_okB')
    TS('pollB')
    if ts:
        e('s_and_b32 s40, s28, 7\ns_cmp_eq_u32 s40, 5\ns_cbranch_scc0 L_c_nodump')
        e('s_waitcnt lgkmcnt(0)')
        e('s_lshl_b32 s40, s5, 6\ns_add_u32 s40, s40, s28\ns_lshl_b32 s40, s40, 2\ns_add_u32 s40, s40, s4\ns_lshl_b32 s40, s40, 7\ns_add_u32 s40, s40, %d'%(WS_O))
        e('v_mov_b32 v120, s40\ns_mov_b64 exec, 1')
        n=tsn[0]
        for i in range(n):
            e('v_mov_b32 v121, s%d'%(50+2*i)); e('global_store_dword v120, v121, s[8:9] offset:%d'%(4*i))
        e('v_mov_b32 v121, s48\nglobal_store_dword v120, v121, s[8:9] offset:120\nv_mov_b32 v121, s49\nglobal_store_dword v120, v121, s[8:9] offset:124')
        e('s_mov_b64 exec, -1')
        a.label('L_c_nodump')
    a.fence()
    e('s_branch L_c_step')
    if sync:
        a.label('L_c_kvspin'); a.hist=[]
        e('s_add_u32 s41, s28, 1\ns_lshr_b32 s41, s41, 2\ns_min_u32 s41, s41, 15\ns_lshl_b32 s41, s41, 7\ns_add_u32 s41, s41, %d'%FL_P)
        e('v_mov_b32 v113, s41\nglobal_load_dword v%d, v113, s[8:9] sc1\ns_waitcnt vmcnt(0)\nv_readfirstlane_b32 s40, v%d'%(KVF,KVF))
        e('s_add_u32 s44, s44, 1\ns_cmp_gt_u32 s44, 200000\ns_cbranch_scc1 L_c_done\ns_cmp_ge_u32 s40, 128\ns_cbranch_scc0 L_c_kvspin\ns_branch L_c_kvgo')
    a.label('L_c_done'); a.hist=[]
    e('s_waitcnt vmcnt(0)')
    if sync:
        e('s_barrier')
        e('s_lshl_b32 s41, s5, 7\ns_add_u32 s41, s41, %d\nv_mov_b32 v34, s41\nv_mov_b32 v35, 64'%FL_PROG)
        e('s_mov_b64 exec, 1\nglobal_store_dword v34, v35, s[8:9] sc1\ns_mov_b64 exec, -1\ns_waitcnt vmcnt(0)')
    if trace:
        e('s_lshl_b32 s40, s5, 2\ns_add_u32 s40, s40, s4\ns_mul_i32 s40, s40, 768\ns_add_u32 s40, s40, %d'%(WS_O))
        e('v_mbcnt_lo_u32_b32 v64, -1, 0\nv_mbcnt_hi_u32_b32 v64, -1, v64\nv_lshlrev_b32 v64, 2, v64\nv_add_u32 v64, s40, v64')
        e('global_store_dword v64, v7, s[8:9]\nglobal_store_dword v64, v11, s[8:9] offset:256\nglobal_store_dword v64, v15, s[8:9] offset:512\ns_waitcnt vmcnt(0)')
    if cnt:
        e('s_lshl_b32 s40, s5, 2\ns_add_u32 s40, s40, s4\ns_lshl_b32 s40, s40, 3\ns_add_u32 s40, s40, %d'%(WS_G))
        e('v_mov_b32 v64, s40\nv_mov_b32 v66, s48\nv_mov_b32 v67, s49\ns_mov_b64 exec, 1\nglobal_store_dwordx2 v64, v[66:67], s[8:9]\ns_mov_b64 exec, -1\ns_waitcnt vmcnt(0)')
```

```python
from asmgen import Asm
from layout import *
from chain import v, ag, Q, f2u
import math

def role_gate(a, sc='', sync=True):
    e=a.e
    e('''
v_and_b32 v1, 63, v0
v_and_b32 v2, 31, v1
v_lshrrev_b32 v3, 5, v1
s_load_dwordx2 s[12:13], s[0:1], %d
s_load_dwordx2 s[14:15], s[0:1], %d
v_lshlrev_b32 v4, 4, v3          ; g*16
v_lshl_add_u32 v5, v2, 10, v4    ; token*1024 + g*16
s_lshl_b32 s16, s5, 2
s_add_u32 s16, s16, s4
s_lshl_b32 s16, s16, 2           ; first segment
s_waitcnt lgkmcnt(0)
''' % (KA_GATE,KA_X))
    for ks in range(32): e('global_load_dwordx4 %s, v4, s[12:13] offset:%d'%(v(128+4*ks,4),ks*32))
    e('s_mov_b32 s17, 0')
    a.label('L_g_it')
    e('s_add_u32 s18, s16, s17\ns_lshl_b32 s19, s18, 15\ns_add_u32 s20, s14, s19\ns_addc_u32 s21, s15, 0')
    for ks in range(32): e('global_load_dwordx4 %s, v5, s[20:21] offset:%d'%(ag(4*ks,4),ks*32))
    e('s_waitcnt vmcnt(0)')
    for ks in range(32):
        e('v_mfma_f32_32x32x16_bf16 v[64:79], %s, %s, %s'%(v(128+4*ks,4),ag(4*ks,4),'0' if ks==0 else 'v[64:79]'))
    e('v_mul_f32 v64, 0xbfb8aa3b, v64')
    e('v_exp_f32 v64, v64')
    e('v_add_f32 v64, 1.0, v64')
    e('v_rcp_f32 v64, v64')
    e('s_lshl_b32 s19, s18, 7\ns_add_u32 s19, s19, %d'%WS_G)
    e('v_lshl_add_u32 v6, v2, 2, s19')
    e('s_mov_b32 exec_hi, 0')
    e('global_store_dword v6, v64, s[8:9]%s'%sc)
    e('s_mov_b32 exec_hi, -1')
    e('s_add_u32 s17, s17, 1\ns_cmp_lt_u32 s17, 4')
    a.fence()
    e('s_cbranch_scc1 L_g_it')
    e('s_waitcnt vmcnt(0)\ns_barrier')
    if sync:
        e('''
s_mov_b32 s47, 0
L_g_wr:
v_mov_b32 v17, %d
global_load_dword v18, v17, s[10:11] sc1
s_waitcnt vmcnt(0)
v_readfirstlane_b32 s46, v18
s_cmp_ge_u32 s46, 32
s_cbranch_scc1 L_g_wrd
s_add_u32 s47, s47, 1
s_cmp_gt_u32 s47, 200000
s_cbranch_scc1 L_g_wrd
s_sleep 4
s_branch L_g_wr
L_g_wrd:
s_cmp_eq_u32 s4, 0
s_cbranch_scc0 L_g_nosig
v_mov_b32 v17, %d
v_mov_b32 v18, 1
s_mov_b64 exec, 1
global_atomic_add v17, v18, s[8:9] sc1
s_mov_b64 exec, -1
L_g_nosig:
''' % (DBG_READY,FL_G))

def role_out(a, sync=True):
    e=a.e
    ACCA=64; ACCB=80
    W2=lambda kk: v(128+4*kk,4)
    WO=lambda ks: ag(4*ks,4)
    e('''
v_and_b32 v1, 63, v0
s_load_dwordx2 s[12:13], s[0:1], %d
s_load_dwordx2 s[14:15], s[0:1], %d
s_load_dwordx2 s[16:17], s[0:1], %d
; DMA lane offset: row=l>>2 (stride 1024) + chunk (l&3)*16 + ct16*64
v_lshrrev_b32 v2, 2, v1
v_lshlrev_b32 v2, 10, v2
v_and_b32 v3, 3, v1
v_lshl_add_u32 v2, v3, 4, v2
s_lshl_b32 s18, s5, 6
v_add_u32 v2, s18, v2
; tr read lane address: wave*32768 + (8*(G>>1)+m)*64 + (G&1)*32 + c*8
v_lshrrev_b32 v4, 5, v1
v_bfe_u32 v5, v1, 2, 2
v_lshl_add_u32 v4, v4, 3, v5
v_lshlrev_b32 v4, 6, v4
v_bfe_u32 v5, v1, 4, 1
v_lshl_add_u32 v4, v5, 5, v4
v_lshl_add_u32 v4, v3, 3, v4
s_lshl_b32 s19, s4, 15
v_add_u32 v4, s19, v4
s_waitcnt lgkmcnt(0)
''' % (KA_WO,KA_W2,KA_OUT))
    def stage(base_lo, rowoff_sreg, nins):
        e('s_add_u32 s20, s%d, %s\ns_addc_u32 s21, s%d, 0'%(base_lo,rowoff_sreg,base_lo+1))
        for j in range(nins):
            e('s_add_u32 m0, s19, %d'%(j*1024))
            e('global_load_lds_dwordx4 v2, s[20:21]')
            e('s_add_u32 s20, s20, 16384\ns_addc_u32 s21, s21, 0')
        e('s_waitcnt vmcnt(0)')
    def trread(dst,nks):
        n=0
        for ks in range(nks):
            for hh in range(2):
                e('ds_read_b64_tr_b16 %s, v4 offset:%d'%(dst(ks,hh),ks*1024+hh*256)); n+=1
                if n%12==0: e('s_waitcnt lgkmcnt(4)')
        e('s_waitcnt lgkmcnt(0)')
    for rnd in range(2):
        e('s_lshl_b32 s22, s4, 20\ns_add_u32 s22, s22, %d'%(rnd*512*1024))
        stage(12,'s22',32)
        trread(lambda ks,hh: ag(4*(32*rnd+ks)+2*hh,2),32)
    e('s_mul_i32 s22, s4, %d'%(448*1024))
    stage(14,'s22',28)
    trread(lambda ks,hh: v(128+4*ks+2*hh,2),28)
    e('''
v_lshlrev_b32 v6, 4, v1
s_lshl_b32 s19, s4, 12
v_add_u32 v6, s19, v6
v_and_b32 v7, 7, v1             ; t8
v_bfe_u32 v8, v1, 3, 2          ; q
v_lshrrev_b32 v9, 5, v1         ; hf
s_lshl_b32 s19, s4, 3
v_add_u32 v10, s19, v7          ; token = 8w+t8
v_lshl_add_u32 v11, v9, 5, v10
v_lshlrev_b32 v11, 4, v11
v_lshl_add_u32 v11, v8, 10, v11 ; + q*1024
v_lshlrev_b32 v12, 10, v10
v_lshl_add_u32 v12, v8, 4, v12
v_lshl_add_u32 v12, v9, 3, v12
s_lshl_b32 s19, s5, 6
v_add_u32 v12, s19, v12
v_lshlrev_b32 v13, 2, v10
v_lshlrev_b32 v14, 4, v1        ; lane*16
s_mov_b32 s24, s6               ; segment
s_barrier
''')
    if sync:
        e('''
s_mov_b32 s57, 0
v_mov_b32 v20, {fg}
L_o_wg:
global_load_dword v23, v20, s[8:9] sc1
s_waitcnt vmcnt(0)
v_readfirstlane_b32 s58, v23
s_cmp_ge_u32 s58, 4
s_cbranch_scc1 L_o_wgd
s_add_u32 s57, s57, 1
s_cmp_gt_u32 s57, 300000
s_cbranch_scc1 L_o_exit
s_sleep 8
s_branch L_o_wg
L_o_wgd:
'''.format(fg=FL_G))
    ld=' sc1' if sync else ''
    def ring_gemm(acc, n, wfrag, slots, base):
        NR=min(len(slots),n)
        def issue(k):
            e('global_load_dwordx4 %s, v14, s[%d:%d] offset:%d%s'%(v(slots[k%len(slots)],4),base,base+1,(k&3)*1024,ld))
            if (k&3)==3: e('s_add_u32 s%d, s%d, 4096\ns_addc_u32 s%d, s%d, 0'%(base,base,base+1,base+1))
        for k in range(NR): issue(k)
        for k in range(n):
            outstanding=min(NR,n-k)
            e('s_waitcnt vmcnt(%d)'%(outstanding-1))
            e('v_mfma_f32_32x32x16_bf16 %s, %s, %s, %s'%(v(acc,16),wfrag(k),v(slots[k%len(slots)],4),'0' if k==0 else v(acc,16)))
            if k+NR<n: issue(k+NR)
        a.fence()
    def reduce4(acc):
        for q in range(4): e('ds_write_b128 v6, %s offset:%d'%(v(acc+4*q,4),q*1024))
        e('s_waitcnt lgkmcnt(0)\ns_barrier')
        for src in range(4): e('ds_read_b128 %s, v11 offset:%d'%(v(32+4*src,4),src*4096))
        e('s_waitcnt lgkmcnt(0)\ns_barrier')
        for r in (0,2):
            e('v_pk_add_f32 v[%d:%d], v[%d:%d], v[%d:%d]'%(32+r,33+r,32+r,33+r,36+r,37+r))
            e('v_pk_add_f32 v[%d:%d], v[%d:%d], v[%d:%d]'%(40+r,41+r,40+r,41+r,44+r,45+r))
        for r in (0,2):
            e('v_pk_add_f32 v[%d:%d], v[%d:%d], v[%d:%d]'%(32+r,33+r,32+r,33+r,40+r,41+r))
    def spin(label, addr_setup, thr, sleep):
        e(addr_setup)
        e('''
s_mov_b32 s57, 0
{L}:
global_load_dword v23, v20, s[8:9] sc1
s_waitcnt vmcnt(0)
v_readfirstlane_b32 s58, v23
s_cmp_ge_u32 s58, {thr}
s_cbranch_scc1 {L}d
s_add_u32 s57, s57, 1
s_cmp_gt_u32 s57, 600000
s_cbranch_scc1 L_o_exit
{sl}
s_branch {L}
{L}d:
'''.format(L=label,thr=thr,sl=('s_sleep %d'%sleep if sleep else 's_nop 0')))
    s16=[32+4*i for i in range(8)]+[96+4*i for i in range(8)]
    e('v_lshlrev_b32 v16, 4, v0\nv_add_u32 v16, 16384, v16')
    a.label('L_o_p1')
    if sync: spin('L_o_wh','s_lshr_b32 s26, s24, 2\ns_lshl_b32 s26, s26, 7\ns_add_u32 s26, s26, %d\nv_mov_b32 v20, s26'%(FL_P+4096),28,8)
    e('''
s_mul_i32 s25, s24, {hs}
s_mul_i32 s26, s4, {hw}
s_add_u32 s25, s25, s26
s_add_u32 s25, s25, {h}
s_add_u32 s30, s8, s25
s_addc_u32 s31, s9, 0
'''.format(hs=112*1024,hw=28*1024,h=WS_H))
    ring_gemm(ACCB,28,W2,s16,30)
    reduce4(ACCB)
    e('ds_write_b128 v16, v[32:35]\nv_add_u32 v16, 4096, v16')
    e('s_add_u32 s24, s24, s7\ns_cmp_lt_u32 s24, 64')
    a.fence()
    e('s_cbranch_scc1 L_o_p1')
    e('s_mov_b32 s24, s6\nv_lshlrev_b32 v16, 4, v0\nv_add_u32 v16, 16384, v16\ns_waitcnt lgkmcnt(0)')
    s48=[128+4*i for i in range(32)]+s16
    a.label('L_o_seg')
    e('''
s_lshl_b32 s25, s24, 7
s_add_u32 s25, s25, {g}
s_add_u32 s32, s8, s25
s_addc_u32 s33, s9, 0
global_load_dword v15, v13, s[32:33]{ld}
ds_read_b128 v[80:83], v16
v_add_u32 v16, 4096, v16
'''.format(g=WS_G,ld=ld))
    if sync: spin('L_o_w','s_lshl_b32 s25, s24, 7\ns_add_u32 s25, s25, %d\nv_mov_b32 v20, s25'%FL_AT,32,0)
    e('''
s_lshl_b32 s25, s24, 18
s_lshl_b32 s26, s4, 16
s_add_u32 s25, s25, s26
s_add_u32 s25, s25, {o}
s_add_u32 s28, s8, s25
s_addc_u32 s29, s9, 0
'''.format(o=WS_O))
    ring_gemm(ACCA,64,WO,s48,28)
    reduce4(ACCA)
    for r in range(4):
        e('v_sub_f32 v%d, v%d, v%d'%(32+r,32+r,80+r))
        e('v_fma_f32 v%d, v15, v%d, v%d'%(32+r,32+r,80+r))
    e('v_cvt_pk_bf16_f32 v40, v32, v33\nv_cvt_pk_bf16_f32 v41, v34, v35')
    e('s_lshl_b32 s25, s24, 15\ns_add_u32 s34, s16, s25\ns_addc_u32 s35, s17, 0')
    e('global_store_dwordx2 v12, v[40:41], s[34:35]')
    e('s_add_u32 s24, s24, s7\ns_cmp_lt_u32 s24, 64')
    a.fence()
    e('s_cbranch_scc1 L_o_seg')
    a.label('L_o_exit')
```

```python
import sys; sys.path.insert(0,'gen')
from kern import *
import chain, proj, attn, outp
NAME='gated_mix__memory_aug_recurrent_mem_tr__dense_activation_relu__prompt'
def gen(dA=250, dB=200, pB=120, nA=2, pA=150, dbgtime=False, **kw):
    a=Asm()
    ref=open('cdna_kernels/%s.s.ref'%NAME).read().split('\n')
    hdr=[l for l in ref if l.startswith(';') and '@launch' not in l]
    lead=[]
    for l in ref:
        if l.startswith(';'):
            if '@launch' in l: lead.append('; @launch grid=(256,1,1) block=(256,1,1) lds=163840')
            else: lead.append(l)
        else: break
    a.raw('\n'.join(lead))
    header(a,None)
    K=NAME+'_kernel'
    begin(a,K)
    a.e('s_cmp_ge_u32 s2, 256\ns_cbranch_scc1 L_end')
    prologue(a)
    if dbgtime: a.e('s_memrealtime s[96:97]')
    ticket(a,chain.L_TMP)
    a.e('''
s_mov_b32 s98, s6
s_mov_b32 s99, s7
s_cmp_ge_u32 s7, 32
s_cbranch_scc1 L_end
s_cmp_eq_u32 s6, 0
s_cbranch_scc0 L_worker
s_mov_b32 s5, s7
''')
    chain.chain_setup(a,'',sync=True,dbgfn=(lambda k: stamp(a,k)) if dbgtime else None)
    if dbgtime: stamp(a,1)
    chain.chain_loop(a,'',dA=dA,dB=dB,pB=pB,nA=nA,pA=pA,sync=True)
    if dbgtime: stamp(a,0)
    a.e('s_branch L_end')
    a.label('L_worker'); a.hist=[]
    a.e('''
s_sub_u32 s12, s98, 1
s_lshl_b32 s12, s12, 5
s_add_u32 s12, s12, s99         ; idx 0..223
s_cmp_ge_u32 s12, 220
s_cbranch_scc1 L_gate
s_lshr_b32 s5, s12, 1
s_and_b32 s6, s12, 1
''')
    proj.role_proj(a,sc=' sc1',sync=True)
    a.e('s_branch L_role2')
    a.label('L_gate'); a.hist=[]
    a.e('s_sub_u32 s5, s12, 220')
    outp.role_gate(a,sc=' sc1',sync=True)
    a.label('L_role2'); a.hist=[]
    if dbgtime: stamp(a,1)
    a.e('''
s_barrier
s_cmp_le_u32 s98, 4
s_cbranch_scc0 L_isattn_hi
s_cmp_lt_u32 s99, 16
s_cbranch_scc0 L_isattn_lo
s_mov_b32 s5, s99
s_sub_u32 s6, s98, 1
s_mov_b32 s7, 4
''')
    outp.role_out(a,sync=True)
    if dbgtime: stamp(a,2)
    a.e('s_branch L_end')
    a.label('L_isattn_lo'); a.hist=[]
    a.e('''
s_sub_u32 s12, s98, 1
s_lshl_b32 s12, s12, 4
s_add_u32 s12, s12, s99
s_sub_u32 s12, s12, 16
s_branch L_isattn
L_isattn_hi:
s_sub_u32 s12, s98, 5
s_lshl_b32 s12, s12, 5
s_add_u32 s12, s12, s99
s_add_u32 s12, s12, 64
L_isattn:
s_lshl_b32 s50, s12, 2
s_add_u32 s50, s50, s4
s_lshr_b32 s51, s50, 5
s_and_b32 s50, s50, 31
s_mov_b32 s52, 20
''')
    attn.role_attn(a,sc=' sc1',sync=True)
    if dbgtime: stamp(a,3)
    a.label('L_end');
    a.e('s_waitcnt vmcnt(0)\ns_endpgm')
    descriptor(a,[K])
    return a
def stamp(a,k):
    a.e('''
s_memrealtime s[94:95]
s_waitcnt lgkmcnt(0)
s_sub_u32 s94, s94, s96
s_lshl_b32 s95, s98, 5
s_add_u32 s95, s95, s99
s_lshl_b32 s95, s95, 4
s_add_u32 s95, s95, %d
v_mov_b32 v126, s95
v_mov_b32 v127, s94
s_mov_b64 exec, 1
global_store_dword v126, v127, s[8:9]
s_mov_b64 exec, -1
''' % (WS_B+4*k))
if __name__=='__main__':
    a=gen()
    out=sys.argv[1] if len(sys.argv)>1 else 'cdna_kernels/%s.s'%NAME
    open(out,'w').write(a.text()); print('instrs',a.count,'nops',a.nnops,'bytes',len(a.text()))
```

```python
from asmgen import Asm
from layout import *
import struct, math

L_M=0; L_K0=8192; L_K1=16384; L_Q=24576; L_KT=L_Q+2176; L_TMP=30976; L_WO=32768

class Q:
    def __init__(s, asm, name, maxv): s.a=asm; s.name=name; s.q=[]; s.maxv=maxv
    def issue(s, tag): s.q.append(tag)
    def wait(s, tag):
        if tag not in s.q: return
        i=s.q.index(tag); n=len(s.q)-1-i
        n=min(n,s.maxv)
        s.a.e('s_waitcnt %s(%d)'%(s.name,n)); s.q=s.q[len(s.q)-n:] if n>0 else []
    def waitall(s):
        s.a.e('s_waitcnt %s(0)'%s.name); s.q=[]
    def reset(s): s.q=[]

def f2u(x): return struct.unpack('<I',struct.pack('<f',x))[0]

def rowconst(kb,m):
    rho=2*kb+(m>>2); u=rho&3
    return 128*(rho>>3)+64*((rho>>2)&1)+32*(m&1)+16*(u&1)+(u>>1)+2*((m&3)>>1)
for kb in range(16):
    for m in range(8):
        for gb in range(4):
            assert pi_pos(32*kb+16*(m>>2)+4*gb+(m&3))==rowconst(kb,m)+4*gb
def rowrest(j,m): return rowconst(j&3,m)
for w in range(4):
    for j in range(16):
        for m in range(8):
            assert rowconst((4*w+j)&15,m)==128*((w+(j>>2))&3)+rowrest(j,m)

def v(a,n=1): return 'v%d'%a if n==1 else 'v[%d:%d]'%(a,a+n-1)
def ag(a,n=1): return 'a%d'%a if n==1 else 'a[%d:%d]'%(a,a+n-1)

aMb=[3,0,1,9]
IDX=2; aWo=4; aQw=5; aQr=6; aKr=8
gA0=10; gAr=12; gBw=13; gB0=14; gV=7; KVF=11; gVM=15
ONES=20; BSEL=24; TAGB=30; MASKB=31
VX1=32; AF=36; ACCQ=52; ACCK=56; ACCV=60; QF=64; KF=80; KXR=96; SX0=112; SX1=116; SM=120; VX2=16; OF3=124
RING=[120,24,112]
SEQ=[(0,0),(1,0),(2,0),(3,0),(0,1),(1,1),(0,2),(1,2),(0,3),(1,3),(2,1),(3,1),(2,2),(3,2),(2,3),(3,3)]
WOR=lambda i: ag(64+8*(i-8),8)
WQ=lambda j: ag(8*j,8)
WK=lambda j: ag(128+8*j,8)
WV=lambda j: v(128+8*j,8)

def chain_setup(a, st, sync=False, dbgfn=None):
    e=a.e
    e('''
v_and_b32 v1, 63, v0
v_and_b32 v32, 15, v1          ; j / n / i
v_lshrrev_b32 v33, 4, v1       ; g
v_bfe_u32 v34, v1, 4, 1        ; rh
v_lshrrev_b32 v35, 5, v1       ; half
v_lshlrev_b32 v36, 4, v0       ; tid*16
s_lshl_b32 s40, s5, 13
v_add_u32 v37, s40, v36
v_mov_b32 v40, -1
v_mov_b32 v41, -1
v_mov_b32 v42, -1
v_mov_b32 v43, -1
v_add_u32 v38, 0x1000, v37
v_add_u32 v39, 0x40000, v37
v_add_u32 v44, 0x41000, v37
global_store_dwordx4 v37, v[40:43], s[8:9]{st}
global_store_dwordx4 v38, v[40:43], s[8:9]{st}
global_store_dwordx4 v39, v[40:43], s[8:9]{st}
global_store_dwordx4 v44, v[40:43], s[8:9]{st}
s_lshl_b32 s40, s5, 8
s_add_u32 s40, s40, {hb}
v_lshlrev_b32 v45, 2, v1
v_add_u32 v45, s40, v45
v_add_u32 v46, 0x2000, v45
global_store_dword v45, v40, s[8:9]{st}
global_store_dword v46, v40, s[8:9]{st}
; zero the flags area: 1 KB per chain WG (256 threads x 4 B)
s_lshl_b32 s40, s5, 10
s_add_u32 s40, s40, {fl}
v_lshlrev_b32 v45, 2, v0
v_add_u32 v45, s40, v45
v_mov_b32 v46, 0
global_store_dword v45, v46, s[8:9] sc1
s_waitcnt vmcnt(0)
s_barrier
s_cmp_eq_u32 s4, 0
s_cbranch_scc0 L_c_noready
v_mov_b32 v36, {rdy}
v_mov_b32 v37, 1
s_mov_b64 exec, 1
global_atomic_add v36, v37, s[10:11] sc1
s_mov_b64 exec, -1
L_c_noready:
'''.format(st=st,hb=WS_HOPB,fl=WS_FLAGS,rdy=DBG_READY))
    e('s_load_dwordx2 s[12:13], s[0:1], %d\ns_load_dwordx2 s[48:49], s[0:1], %d\ns_load_dwordx2 s[50:51], s[0:1], %d\ns_load_dwordx2 s[52:53], s[0:1], %d'%(KA_WO,KA_WQ,KA_WK,KA_WV))
    e('''
s_lshl_b32 s40, s5, 17         ; h*131072
s_lshl_b32 s41, s4, 8          ; 128*w*2
s_add_u32 s40, s40, s41
v_lshlrev_b32 v37, 2, v32      ; 4j
v_lshlrev_b32 v38, 12, v33     ; gb*4*1024
v_add3_u32 v37, v37, v38, s40
v_lshlrev_b32 {aWo}, 4, v1
s_lshl_b32 s41, s4, 15
s_add_u32 s41, s41, {lwo}
v_add_u32 {aWo}, s41, {aWo}
s_lshl_b32 s40, s5, 8          ; h*256
s_lshl_b32 s41, s4, 6          ; 64*w
s_add_u32 s40, s40, s41
v_lshlrev_b32 v36, 2, v32      ; 4j
v_lshlrev_b32 v38, 15, v33     ; gb*32768
v_add3_u32 v36, v36, v38, s40  ; voffset for Wq/Wk/Wv
s_waitcnt lgkmcnt(0)
s_mov_b32 s14, 0x400000
s_mov_b32 s15, 0x00020000
'''.format(aWo=v(aWo),lwo=L_WO))
    for b_ in range(4):
        e('s_add_u32 s41, s4, %d\ns_and_b32 s41, s41, 3\ns_lshl_b32 s%d, s41, 15'%(b_,44+b_))
    st_list=[]
    for i,(t,b_) in enumerate(SEQ):
        for hh in range(2):
            for mm in range(4):
                e('s_add_u32 s41, s%d, %d'%(44+b_,(16*hh+mm)*1024+t*64))
                dst=('v%d'%(128+8*i+4*hh+mm)) if i<8 else ('a%d'%(64+8*(i-8)+4*hh+mm))
                e('buffer_load_dword %s, v37, s[12:15], s41 offen'%dst)
            if i<8: st_list.append((128+8*i+4*hh,16384+i*2048+hh*1024))
    for j in range(8,16):
        for hh in range(2): st_list.append((192+8*(j-8)+4*hh,(j-8)*2048+hh*1024))
    def dq(r,j,m): return ('a%d'%(8*j+m)) if j<8 else ('v%d'%(192+8*(j-8)+m))
    for w in range(4):
        if w>0: a.label('L_c_wl%d'%w)
        if w<3: e('s_cmp_eq_u32 s4, %d\ns_cbranch_scc0 L_c_wl%d'%(w,w+1))
        if w>0: e('s_nop 0')
        for mat in range(3):
            e('s_mov_b64 s[12:13], s[%d:%d]'%(48+2*mat,49+2*mat))
            n=0
            for kb in range(16):
                j=(kb-4*w)&15
                for m in range(8):
                    dst=dq(0,j,m) if mat==0 else ('a%d'%(128+8*j+m) if mat==1 else 'v%d'%(128+8*j+m))
                    e('s_mov_b32 s41, %d'%(rowconst(kb,m)*8192))
                    e('buffer_load_dword %s, v36, s[12:15], s41 offen'%dst)
                    n+=1
                    if mat==1 and n%2==0 and n>64:
                        k=(n-66)//2
                        if n==66: e('s_waitcnt vmcnt(60)')
                        base,off=st_list[k]
                        e('ds_write_b128 %s, %s offset:%d'%(v(aWo),v(base,4),off))
            if mat==1: e('s_waitcnt lgkmcnt(0)')
        if w<3: e('s_branch L_c_wld')
    a.label('L_c_wld')
    if dbgfn: dbgfn(3)
    e('s_load_dwordx2 s[12:13], s[0:1], %d'%KA_MEM0)
    e('''
v_and_b32 v64, 7, v0           ; row
v_lshrrev_b32 v65, 3, v0       ; q8 (0..31)
v_and_b32 v66, 1, v65          ; oct
v_lshrrev_b32 v67, 1, v65      ; rho (0..15)
v_lshrrev_b32 v68, 3, v67
v_lshlrev_b32 v68, 7, v68
v_bfe_u32 v69, v67, 2, 1
v_lshlrev_b32 v69, 6, v69
v_add_u32 v68, v68, v69
v_and_b32 v69, 1, v67
v_lshlrev_b32 v69, 4, v69
v_add_u32 v68, v68, v69
v_lshlrev_b32 v69, 3, v66
v_add_u32 v68, v68, v69
v_bfe_u32 v69, v67, 1, 1
v_add_u32 v68, v68, v69        ; D0
v_lshlrev_b32 v68, 1, v68
v_lshlrev_b32 v64, 10, v64
v_add_u32 v68, v68, v64
s_waitcnt lgkmcnt(0)
s_mov_b32 s14, 8192
''')
    for hlf in range(2):
        for n in range(8):
            e('buffer_load_ushort v%d, v68, s[12:15], 0 offen offset:%d'%(72+8*hlf+n, hlf*512+(32*(n&1)+2*(n>>1))*2))
    e('s_waitcnt vmcnt(0)')
    for hlf in range(2):
        for d in range(4):
            e('v_lshl_or_b32 v%d, v%d, 16, v%d'%(96+4*hlf+d, 72+8*hlf+2*d+1, 72+8*hlf+2*d))
    e('''
v_lshlrev_b32 v64, 4, v0
v_add_u32 v65, 0x1000, v64
ds_write_b128 v64, v[96:99]
ds_write_b128 v65, v[100:103]
; gB0 = w*2048 + lane*16  (hop-B DMA offset, K DMA offset)
s_lshl_b32 s43, s4, 11
v_lshlrev_b32 v64, 4, v1
v_add_u32 {gB0}, s43, v64
; idx
v_mov_b32 {IDX}, 0x8888
v_mov_b32 v64, 0xdddd
v_cmp_le_u32 vcc, 8, v32
v_cndmask_b32 {IDX}, {IDX}, v64, vcc
; lanepart = g*128 + (i&7)*16
v_and_b32 v64, 7, v32
v_lshlrev_b32 v64, 4, v64
v_lshlrev_b32 v65, 7, v33
v_add_u32 v70, v64, v65
; aQw = L_Q + w*544 + half*272 + rh*128 + j*8
s_mul_i32 s40, s4, 544
s_add_u32 s40, s40, {lq}
v_mul_u32_u24 v64, 272, v35
v_lshlrev_b32 v65, 7, v34
v_lshlrev_b32 v66, 3, v32
v_add3_u32 v64, v64, v65, v66
v_add_u32 {aQw}, s40, v64
; aQr
v_bfe_u32 v64, v1, 2, 1
v_mul_u32_u24 v64, 272, v64
v_and_b32 v65, 1, v1
v_lshlrev_b32 v65, 7, v65
v_bfe_u32 v66, v1, 3, 1
v_lshl_add_u32 v66, v33, 2, v66
v_lshlrev_b32 v66, 3, v66
v_add3_u32 v64, v64, v65, v66
v_add_u32 {aQr}, {lq}, v64
; aKr = L_K0 + lane*16
v_lshlrev_b32 v64, 4, v1
v_add_u32 {aKr}, {lk0}, v64
; gA0 = (8w + 2*half + (j>>3))*8192 + (2rh+oct)*2048 + h*64 + (j&3)*16
v_lshrrev_b32 v64, 3, v32
v_lshl_add_u32 v64, v35, 1, v64
s_lshl_b32 s40, s4, 3
v_add_u32 v64, s40, v64
v_lshlrev_b32 v64, 13, v64
v_bfe_u32 v65, v32, 2, 1
v_lshl_add_u32 v65, v34, 1, v65
v_lshlrev_b32 v65, 11, v65
v_and_b32 v66, 3, v32
v_lshlrev_b32 v66, 4, v66
v_add3_u32 v64, v64, v65, v66
s_lshl_b32 s40, s5, 6
v_add_u32 {gA0}, s40, v64
; gAr = h*8192 + w*2048 + g*256 + (i&3)*64 + (i>>2)*16
v_lshlrev_b32 v64, 8, v33
v_and_b32 v65, 3, v32
v_lshlrev_b32 v65, 6, v65
v_lshrrev_b32 v66, 2, v32
v_lshlrev_b32 v66, 4, v66
v_add3_u32 v64, v64, v65, v66
s_lshl_b32 s40, s5, 13
s_add_u32 s40, s40, s43
v_add_u32 {gAr}, s40, v64
; gBw = h*256 + (w&1)*128 + (w>>1)*64 + n*16 + g*4
s_lshl_b32 s40, s5, 8
s_and_b32 s41, s4, 1
s_lshl_b32 s41, s41, 7
s_add_u32 s40, s40, s41
s_lshr_b32 s41, s4, 1
s_lshl_b32 s41, s41, 6
s_add_u32 s40, s40, s41
v_lshlrev_b32 v64, 4, v32
v_lshl_add_u32 v64, v33, 2, v64
v_add_u32 {gBw}, s40, v64
; gV = w*2048 + j*128 + g*16
v_lshlrev_b32 v64, 7, v32
v_lshl_add_u32 v64, v33, 4, v64
v_add_u32 {gV}, s43, v64
; gVM = w*512 + lane*8
s_lshl_b32 s40, s4, 9
v_lshlrev_b32 v64, 3, v1
v_add_u32 {gVM}, s40, v64
v_mov_b32 v20, 0x3f803f80
v_mov_b32 v21, 0x3f803f80
v_mov_b32 v22, 0x3f803f80
v_mov_b32 v23, 0x3f803f80
v_mov_b32 v24, 0
v_mov_b32 v25, 0
v_mov_b32 v28, 0
v_mov_b32 v29, 0
v_and_b32 v64, 3, v32
v_mov_b32 v65, 0x3f80
v_mov_b32 v66, 0x3f800000
v_mov_b32 v26, 0
v_mov_b32 v27, 0
v_cmp_eq_u32 vcc, 0, v64
v_cndmask_b32 v26, v26, v65, vcc
v_cmp_eq_u32 vcc, 1, v64
v_cndmask_b32 v26, v26, v66, vcc
v_cmp_eq_u32 vcc, 2, v64
v_cndmask_b32 v27, v27, v65, vcc
v_cmp_eq_u32 vcc, 3, v64
v_cndmask_b32 v27, v27, v66, vcc
v_mov_b32 {MASKB}, -1
v_mov_b32 v64, -2
v_cmp_eq_u32 vcc, 0, v33
v_cndmask_b32 {MASKB}, {MASKB}, v64, vcc
'''.format(gB0=v(gB0),IDX=v(IDX),aQw=v(aQw),aQr=v(aQr),aKr=v(aKr),gA0=v(gA0),
           gAr=v(gAr),gBw=v(gBw),gV=v(gV),gVM=v(gVM),MASKB=v(MASKB),aWo=v(aWo),lq=L_Q,lk0=L_K0))
    for b in (3,2,1,0):
        e('s_add_u32 s40, s4, %d\ns_and_b32 s40, s40, 3\ns_lshl_b32 s40, s40, 11\nv_add_u32 %s, s40, v70'%(b,v(aMb[b])))
    c=(128**-0.5)*math.log2(math.e)
    e('''
s_add_u32 s16, s8, {ha}
s_addc_u32 s17, s9, 0
s_add_u32 s18, s8, {hb}
s_addc_u32 s19, s9, 0
s_lshl_b32 s40, s5, 13
s_add_u32 s20, s8, {kx}
s_addc_u32 s21, s9, 0
s_add_u32 s20, s20, s40
s_addc_u32 s21, s21, 0
s_add_u32 s22, s8, {vx}
s_addc_u32 s23, s9, 0
s_add_u32 s22, s22, s40
s_addc_u32 s23, s23, 0
s_lshl_b32 s40, s5, 11
s_add_u32 s24, s8, {km}
s_addc_u32 s25, s9, 0
s_add_u32 s24, s24, s40
s_addc_u32 s25, s25, 0
s_add_u32 s26, s8, {vm}
s_addc_u32 s27, s9, 0
s_add_u32 s26, s26, s40
s_addc_u32 s27, s27, 0
s_mov_b32 s28, 0
s_mov_b32 s29, 0
s_mov_b32 s30, 0               ; expected tag of the M image (previous step)
s_mov_b32 s31, 0               ; tag check enable
s_mov_b32 s32, {c}
s_mov_b32 s33, {c}
s_mov_b32 s34, -1
s_mov_b32 s35, 0
s_mov_b32 s36, 0
s_mov_b32 s37, -1
s_mov_b32 s38, 0x000f000f
s_mov_b32 s39, 0x000f000f
s_add_u32 s46, s16, 0x8000     ; second A-store base
s_addc_u32 s47, s17, 0
s_mov_b64 s[92:93], s[18:19]
s_mov_b32 s45, 0
s_lshl_b32 s40, s5, 7
s_add_u32 s40, s40, {prog}
s_sub_u32 s40, s40, s43
s_add_u32 s86, s8, s40
s_addc_u32 s87, s9, 0          ; PROG[h] - w*2048
s_sub_u32 s40, {flp}, s43
s_add_u32 s84, s8, s40
s_addc_u32 s85, s9, 0          ; FL_P - w*2048
'''.format(ha=WS_HOPA,hb=WS_HOPB,kx=WS_KX,vx=WS_VX,km=WS_KM,vm=WS_VM,c=f2u(c),prog=FL_PROG,flp=FL_P))
    if dbgfn:
        e('s_waitcnt vmcnt(0)'); dbgfn(2)
    for r in range(ACCQ,ACCQ+12): e('v_mov_b32 v%d, 0'%r)
    e('''
s_mov_b32 s44, 0
L_c_waitready:
v_mov_b32 v64, {rdy}
global_load_dword v65, v64, s[10:11] sc1
s_waitcnt vmcnt(0)
v_readfirstlane_b32 s40, v65
s_cmp_ge_u32 s40, 32
s_cbranch_scc1 L_c_ready
s_add_u32 s44, s44, 1
s_cmp_gt_u32 s44, 200000
s_cbranch_scc1 L_c_done
s_sleep 4
s_branch L_c_waitready
L_c_ready:
'''.format(rdy=DBG_READY))
    if sync:
        e('''
L_c_waitkv:
v_mov_b32 v64, {f}
global_load_dword v65, v64, s[8:9] sc1
s_waitcnt vmcnt(0)
v_readfirstlane_b32 s40, v65
s_cmp_ge_u32 s40, 128
s_cbranch_scc1 L_c_kvok
s_add_u32 s44, s44, 1
s_cmp_gt_u32 s44, 200000
s_cbranch_scc1 L_c_done
s_sleep 4
s_branch L_c_waitkv
L_c_kvok:
'''.format(f=FL_P))
    e('''
s_add_u32 m0, s43, {k0}
s_nop 0
global_load_lds_dwordx4 {gK}, s[20:21] sc1
global_load_lds_dwordx4 {gK}, s[20:21] offset:1024 sc1
s_add_u32 s20, s20, 0x40000
s_addc_u32 s21, s21, 0
v_mov_b32 v{kvf}, 128
s_waitcnt vmcnt(0) lgkmcnt(0)
s_barrier
'''.format(k0=L_K0,gK=v(gB0),kvf=KVF))

def chain_loop(a, st, nsteps=64, ts=False, dA=0, dB=0, stub=0, dA2=0, dB2=0, cnt=False, sync=False, fp=48, fpB=40, nA=1, pA=120, nB=1, pB=120, trace=False, big=0, nbig=4, XB=0, sh=4, ob64=False):
    e=a.e
    lg=Q(a,'lgkmcnt',15)
    tsn=[0]
    def TS(name=None):
        if not ts: return
        i=tsn[0]; tsn[0]+=1
        assert i<22
        e('s_memtime s[%d:%d]'%(50+2*i,51+2*i))
        a.tsnames.append(name)
    a.tsnames=[]
    def delay(n):
        for _ in range(n//4): e('v_mov_b32 v34, v35')
    if ts or cnt or trace: e('s_mov_b32 s48, 0\ns_mov_b32 s49, 0\ns_mov_b32 s94, 0')
    FRB=[KXR,QF,KF,AF]
    def fr(j): return FRB[j>>2]+4*(j&3)
    def rdF(j):
        e('ds_read_b128 %s, %s offset:%d'%(v(fr(j),4),v(aMb[j>>2]),L_M+(j&3)*512)); lg.issue(('A',j))
    SMF=lambda acc,A,B: e('v_smfmac_f32_16x16x64_bf16 %s, %s, %s, %s'%(v(acc,4),A,B,v(IDX)))
    for j in range(4): rdF(j)
    e('s_waitcnt lgkmcnt(0)')
    for j in (8,9,10):
        for hh in range(2): e('ds_read_b128 %s, %s offset:%d'%(v(RING[(j-8)%3]+4*hh,4),v(aWo),(j-8)*2048+hh*1024))
    e('s_waitcnt lgkmcnt(0)'); lg.reset()
    a.fence()
    a.label('L_c_step')
    TS('top')
    if trace:
        e('s_mov_b32 m0, s28\nv_writelane_b32 v7, s94, m0\nv_writelane_b32 v11, s48, m0\nv_writelane_b32 v15, s49, m0\ns_memtime s[94:95]')
    if stub:
        delay(stub)
        e('s_cmp_eq_u32 s28, %d\ns_cbranch_scc1 L_c_done'%(nsteps-1))
        e('s_mov_b32 s41, 0')
    def QKs(j):
        lg.wait(('A',j))
        SMF(ACCQ,v(fr(j),4),WQ(j))
    if stub:
        e('s_barrier'); e('s_branch L_c_stub')
    SMF(ACCQ,v(fr(0),4),WQ(0))
    e('s_barrier')
    TS('bar')
    for j in (4,5,6,7): rdF(j)
    SMF(ACCK,v(fr(0),4),WK(0))
    SMF(ACCQ,v(fr(1),4),WQ(1))
    SMF(ACCK,v(fr(1),4),WK(1))
    if sync:
        e('v_readfirstlane_b32 s40, v%d'%KVF)
    def rdW(j,hh):
        e('ds_read_b128 %s, %s offset:%d'%(v(RING[(j-8)%3]+4*hh,4),v(aWo),(j-8)*2048+hh*1024)); lg.issue(('Q',j,hh))
    QP=SX1; KP=SX1+2
    def Qs(j):
        lg.wait(('A',j))
        if j>=8: lg.wait(('Q',j,1))
        SMF(ACCQ,v(fr(j),4),WQ(j) if j<8 else v(RING[(j-8)%3],8))
        if j<6:
            rdF(4+2*j); rdF(5+2*j)
        if 8<=j<13: rdW(j+3,0); rdW(j+3,1)
    def Ks(j):
        SMF(ACCK,v(fr(j),4),WK(j))
        if j==2:
            e('s_and_b32 s41, s28, 1\ns_lshl_b32 s41, s41, 13\ns_sub_u32 s41, %d, s41\ns_add_u32 m0, s43, s41'%L_K1)
            if sync:
                e('s_cmp_ge_u32 s40, 128\ns_cbranch_scc0 L_c_kvspin')
                a.label('L_c_kvgo')
        if j==5: e('global_load_dwordx4 %s, %s, s[22:23] sc1'%(v(VX1,4),v(gV)))
        if j==6: e('global_load_dwordx4 %s, %s, s[22:23] offset:64 sc1'%(v(VX2,4),v(gV)))
        if j==7: e('global_load_lds_dwordx4 %s, s[20:21] sc1'%v(gB0))
        if j==8: e('global_load_lds_dwordx4 %s, s[20:21] offset:1024 sc1'%v(gB0))
        if j==9: e('s_add_u32 s20, s20, 0x40000\ns_addc_u32 s21, s21, 0')
        if j==10: e('s_add_u32 s22, s22, 0x40000\ns_addc_u32 s23, s23, 0')
        if sync and j==11:
            e('v_mov_b32 v%d, s28'%KVF)
            e('s_mov_b64 exec, 1\nglobal_store_dword %s, v%d, s[86:87] sc1'%(v(gB0),KVF))
            e('s_add_u32 s41, s28, 2\ns_lshr_b32 s41, s41, 2\ns_min_u32 s41, s41, 15\ns_lshl_b32 s41, s41, 7\ns_add_u32 s82, s84, s41\ns_addc_u32 s83, s85, 0')
            e('global_load_dword v%d, %s, s[82:83] sc1\ns_mov_b64 exec, -1'%(KVF,v(gB0)))
    for j in range(2,16):
        Qs(j); Ks(j)
    TS('QK')
    def Vs(j): SMF(ACCV,v(fr(j),4),WV(j))
    def rdQ1(base,off,ks,hh,tag):
        e('ds_read_b64_tr_b16 %s, %s offset:%d'%(v(base+4*ks+2*hh,2),v(aQr),off+ks*544+hh*16)); lg.issue((tag,ks,hh))
    def rdQ(base,off,ks,tag):
        rdQ1(base,off,ks,0,tag); rdQ1(base,off,ks,1,tag)
    kreg={0:KXR,4:KXR+4,1:KXR+8,5:KXR+12,2:AF,6:AF+4,3:AF+8,7:AF+12}
    def rdK(f):
        e('ds_read_b128 %s, %s offset:%d'%(v(kreg[f],4),v(aKr),f*1024)); lg.issue(('K',f))
    def Sx(f,first):
        ks=f&3; tau=f>>2
        lg.wait(('K',f)); lg.wait(('q',ks,1))
        acc=SX0 if tau==0 else SX1
        e('v_mfma_f32_16x16x32_bf16 %s, %s, %s, %s'%(v(acc,4),v(kreg[f],4),v(QF+4*ks,4),'0' if first else v(acc,4)))
    def Sm(ks):
        lg.wait(('k',ks,1))
        e('v_mfma_f32_16x16x32_bf16 %s, %s, %s, %s'%(v(SM,4),v(KF+4*ks,4),v(QF+4*ks,4),'0' if ks==0 else v(SM,4)))
    Vs(0)
    e('v_cvt_pk_bf16_f32 %s, %s, %s'%(v(QP),v(ACCQ),v(ACCQ+1)))
    e('v_cvt_pk_bf16_f32 %s, %s, %s'%(v(QP+1),v(ACCQ+2),v(ACCQ+3)))
    e('ds_write_b64 %s, %s'%(v(aQw),v(QP,2))); lg.issue('qw')
    Vs(1)
    e('v_cvt_pk_bf16_f32 %s, %s, %s'%(v(KP),v(ACCK),v(ACCK+1)))
    e('v_cvt_pk_bf16_f32 %s, %s, %s'%(v(KP+1),v(ACCK+2),v(ACCK+3)))
    e('ds_write_b64 %s, %s offset:2176'%(v(aQw),v(KP,2))); lg.issue('kw')
    Vs(2)
    e('global_store_dwordx2 %s, %s, s[24:25] sc1'%(v(gVM),v(KP,2)))
    Vs(3); rdK(0); rdK(4)
    Vs(4); rdK(1); rdK(5)
    Vs(5); Vs(6); Vs(7)
    lg.wait('kw')
    TS('prebar')
    e('s_barrier')
    rdQ(QF,0,0,'q')
    Vs(8); rdQ(QF,0,1,'q')
    Vs(9); rdQ(QF,0,2,'q')
    Vs(10); rdQ(QF,0,3,'q')
    Vs(11); rdQ(KF,2176,0,'k')
    Vs(12); rdQ(KF,2176,1,'k'); rdK(2)
    Vs(13); rdQ(KF,2176,2,'k'); rdK(6)
    Vs(14); rdQ(KF,2176,3,'k'); rdK(3)
    Vs(15); rdK(7)
    TS('preS')
    seq=SEQ
    bslot={}
    def rdB1(i,slot,hh):
        t,b=seq[i]; bslot[i]=slot
        e('ds_read_b128 %s, %s offset:%d'%(v(slot+4*hh,4),v(aWo),16384+i*2048+hh*1024)); lg.issue(('W',i,hh))
    def rdB(i,slot): rdB1(i,slot,0); rdB1(i,slot,1)
    pre=[(0,KXR),(1,KXR+8),(2,KF),(3,KF+8),(4,AF),(5,AF+8),(6,QF),(7,QF+8)]
    pl=[]
    for i,sl in pre: pl+= [(i,sl,0),(i,sl,1)]
    def fill(n=1):
        for _ in range(n):
            if pl: rdB1(*pl.pop(0))
    M_=ACCQ; T_=ACCQ+1; NMC=ACCQ+2
    Sx(0,True); Sx(4,True); Sx(1,False); Sx(5,False)
    Sm(0); fill(2); Sm(1); fill(2); Sm(2); Sm(3)
    Sx(2,False); fill(2); Sx(6,False); fill(2)
    Sx(3,False)
    e('v_max3_f32 v%d, v%d, v%d, v%d'%(T_,SM,SM+1,SM+2))
    Sx(7,False)
    e('v_max_f32 v%d, v%d, v%d'%(T_,T_,SM+3))
    TS('VS')
    e('v_max3_f32 v%d, v%d, v%d, v%d'%(M_,SX0,SX0+1,SX0+2))
    e('v_max3_f32 v%d, v%d, v%d, v%d'%(T_,T_,SX0+3,M_))
    e('v_max3_f32 v%d, v%d, v%d, v%d'%(M_,SX1,SX1+1,SX1+2))
    e('v_max3_f32 v%d, v%d, v%d, v%d'%(M_,M_,SX1+3,T_))
    e('v_mov_b32 v%d, v%d'%(T_,M_))
    e('v_permlane32_swap_b32 v%d, v%d'%(M_,T_))
    e('v_max_f32 v%d, v%d, v%d'%(M_,M_,T_))
    e('v_mov_b32 v%d, v%d'%(T_,M_))
    e('v_permlane16_swap_b32 v%d, v%d'%(M_,T_))
    e('v_max_f32 v%d, v%d, v%d'%(M_,M_,T_))
    e('v_mul_f32 v%d, s32, v%d'%(NMC,M_))
    TS('max')
    pkf=lambda r: e('v_pk_fma_f32 v[%d:%d], v[%d:%d], s[32:33], v[%d:%d] op_sel_hi:[1,1,0] neg_lo:[0,0,1] neg_hi:[0,0,1]'%(r,r+1,r,r+1,NMC,NMC+1))
    for r in (SX0,SX0+2,SX1,SX1+2): pkf(r)
    for r in range(SX0,SX0+8): e('v_exp_f32 v%d, v%d'%(r,r))
    PX=ACCK
    pkf(SM); pkf(SM+2)
    e('v_cvt_pk_bf16_f32 v%d, v%d, v%d'%(PX,SX0,SX0+1))
    e('v_cvt_pk_bf16_f32 v%d, v%d, v%d'%(PX+1,SX0+2,SX0+3))
    e('v_cvt_pk_bf16_f32 v%d, v%d, v%d'%(PX+2,SX1,SX1+1))
    e('v_cvt_pk_bf16_f32 v%d, v%d, v%d'%(PX+3,SX1+2,SX1+3))
    TS('expx')
    e('s_waitcnt vmcnt(%d)'%(5 if sync else 3))
    T1=SX0; T2=SX1; L_=VX2
    e('v_exp_f32 v%d, v%d'%(SM,SM))
    e('v_mfma_f32_16x16x32_bf16 %s, %s, %s, 0'%(v(T2,4),v(VX2,4),v(PX,4)))
    fill()
    e('v_exp_f32 v%d, v%d'%(SM+1,SM+1))
    e('v_mfma_f32_16x16x32_bf16 %s, %s, %s, 0'%(v(T1,4),v(VX1,4),v(PX,4)))
    fill()
    e('v_exp_f32 v%d, v%d'%(SM+2,SM+2))
    e('v_mfma_f32_16x16x32_bf16 %s, %s, %s, 0'%(v(L_,4),v(ONES,4),v(PX,4)))
    fill()
    e('v_exp_f32 v%d, v%d'%(SM+3,SM+3))
    VP=ACCV
    e('v_cvt_pk_bf16_f32 v%d, v%d, v%d'%(VP,ACCV,ACCV+1))
    PM1=ACCQ; PM2=ACCQ+2
    e('v_cvt_pk_bf16_f32 v%d, v%d, v%d'%(PM2,SM,SM+1))
    e('v_cvt_pk_bf16_f32 v%d, v%d, v%d'%(PM2+1,SM+2,SM+3))
    e('v_cvt_pk_bf16_f32 v%d, v%d, v%d'%(VP+1,ACCV+2,ACCV+3))
    e('v_cndmask_b32 v%d, 0, v%d, s[34:35]'%(PM1,PM2))
    e('v_cndmask_b32 v%d, 0, v%d, s[34:35]'%(PM1+1,PM2+1))
    e('v_mfma_f32_16x16x16_bf16 %s, %s, %s, %s'%(v(L_,4),v(ONES,2),v(PM1,2),v(L_,4)))
    e('v_cndmask_b32 v%d, 0, v%d, s[36:37]'%(PM2,PM2))
    e('v_cndmask_b32 v%d, 0, v%d, s[36:37]'%(PM2+1,PM2+1))
    e('v_mfma_f32_16x16x16_bf16 %s, %s, %s, %s'%(v(T1,4),v(VP,2),v(PM1,2),v(T1,4)))
    fill(1)
    WA=[ACCQ,ACCK,ACCV,VX1]
    e('v_mfma_f32_16x16x16_bf16 %s, %s, %s, %s'%(v(T2,4),v(VP,2),v(PM2,2),v(T2,4)))
    fill(1)
    e('global_store_dwordx2 %s, %s, s[26:27] sc1'%(v(gVM),v(VP,2)))
    e('v_mov_b64 v[%d:%d], 0\nv_mov_b64 v[%d:%d], 0'%(WA[1],WA[1]+1,WA[1]+2,WA[1]+3))
    TS('pv')
    e('s_cmp_eq_u32 s28, %d\ns_cbranch_scc1 L_c_done'%(nsteps-1))
    fill(16)
    for t in (3,0):
        e('v_mov_b64 v[%d:%d], 0\nv_mov_b64 v[%d:%d], 0'%(WA[t],WA[t]+1,WA[t]+2,WA[t]+3))
    e('v_rcp_f32 v%d, v%d'%(L_,L_))
    e('v_mov_b64 v[%d:%d], 0\nv_mov_b64 v[%d:%d], 0'%(WA[2],WA[2]+1,WA[2]+2,WA[2]+3))
    for r in (T1,T1+2,T2,T2+2):
        e('v_pk_mul_f32 v[%d:%d], v[%d:%d], v[%d:%d] op_sel_hi:[1,0]'%(r,r+1,r,r+1,L_,L_+1))
    O4=SM
    for r in range(4):
        e('v_cvt_pk_bf16_f32 v%d, v%d, v%d'%(O4+r,T1+r,T2+r))
    if ob64:
        e('v_cndmask_b32 v%d, v%d, v%d, s[80:81]'%(T1,O4,O4+2))
        e('v_cndmask_b32 v%d, v%d, v%d, s[80:81]'%(T1+1,O4+1,O4+3))
        e('ds_write_b64 v%d, %s offset:%d'%(16+0, v(T1,2), L_M)) if False else None
        e('v_add_u32 v%d, %s, v%d'%(T1+2,v(aMb[0]),T1+3)) if False else None
        e('ds_write_b64 %s, %s offset:%d'%(v(aOw8),v(T1,2),L_M)); lg.issue('ow')
    else:
        e('ds_write_b128 %s, %s offset:%d'%(v(aMb[0]),v(O4,4),L_M)); lg.issue('ow')
    TS('SMX')
    def Wm(i,areg):
        t,b=seq[i]
        if i<8:
            lg.wait(('W',i,1))
            SMF(WA[t],v(areg,4),v(bslot[i],8))
        else: SMF(WA[t],v(areg,4),WOR(i))
    Wm(0,O4); Wm(1,O4); Wm(2,O4)
    lg.wait('ow')
    TS('ow')
    e('s_barrier')
    OF={1:SX0,2:SX1,3:OF3}
    for b in (1,2,3):
        e('ds_read_b128 %s, %s offset:%d'%(v(OF[b],4),v(aMb[b]),L_M)); lg.issue(('o',b))
    Wm(3,O4)
    G0=KXR; G1=KXR+4
    for i in range(4,16):
        t,b=seq[i]
        lg.wait(('o',b))
        Wm(i,OF[b])
        if i==11:
            e('v_cvt_pk_bf16_f32 v%d, v%d, v%d'%(G0,WA[0],WA[0]+1))
        if i==12:
            e('v_cvt_pk_bf16_f32 v%d, v%d, v%d'%(G0+1,WA[0]+2,WA[0]+3))
        if i==13:
            e('v_cvt_pk_bf16_f32 v%d, v%d, v%d'%(G0+2,WA[1],WA[1]+1))
            e('v_cvt_pk_bf16_f32 v%d, v%d, v%d'%(G0+3,WA[1]+2,WA[1]+3))
        if i==14:
            e('v_and_or_b32 v%d, v%d, -2, s29'%(G0,G0))
            e('global_store_dwordx4 %s, %s, s[16:17]%s'%(v(gA0),v(G0,4),st))
    a.label('L_c_stub')
    if stub:
        e('v_and_or_b32 v%d, v%d, -2, s29'%(G0,G0))
        e('global_store_dwordx4 %s, %s, s[16:17]%s'%(v(gA0),v(G0,4),st))
        delay(64)
    e('v_cvt_pk_bf16_f32 v%d, v%d, v%d'%(G1,WA[2],WA[2]+1))
    e('v_cvt_pk_bf16_f32 v%d, v%d, v%d'%(G1+1,WA[2]+2,WA[2]+3))
    e('v_cvt_pk_bf16_f32 v%d, v%d, v%d'%(G1+2,WA[3],WA[3]+1))
    e('v_cvt_pk_bf16_f32 v%d, v%d, v%d'%(G1+3,WA[3]+2,WA[3]+3))
    e('v_and_or_b32 v%d, v%d, -2, s29'%(G1,G1))
    e('global_store_dwordx4 %s, %s, s[46:47]%s'%(v(gA0),v(G1,4),st))
    TS('WO')
    if XB: e('s_memtime s[90:91]')
    for r in range(ACCQ,ACCQ+12,2): e('v_mov_b64 v[%d:%d], 0'%(r,r+1))
    e('v_mov_b64 v[24:25], 0\nv_mov_b64 v[26:27], 0\nv_mov_b64 v[28:29], 0\nv_mov_b32 v30, 0\nv_mov_b32 v31, -1')
    for k,(reg,val) in enumerate(((26,'0x3f80'),(26,'0x3f800000'),(27,'0x3f80'),(27,'0x3f800000'))):
        m='0x%x'%(0x11111111<<k)
        e('s_mov_b32 exec_lo, %s\ns_mov_b32 exec_hi, %s\nv_mov_b32 v%d, %s'%(m,m,reg,val))
    e('s_mov_b32 exec_lo, 0xffff\ns_mov_b32 exec_hi, 0\nv_mov_b32 v31, -2\nv_mov_b32 v30, s29\ns_mov_b64 exec, -1')
    e('s_mov_b32 m0, s43')
    delay(max(0,dA-100))
    def xdelay(tag):
        if not big: return
        e('s_cmp_lt_u32 s28, %d\ns_cbranch_scc0 L_c_nox%s'%(nbig,tag))
        delay(big)
        a.label('L_c_nox%s'%tag)
    xdelay('A')
    R0=AF; R1=AF+4; DA=AF+8; DB=AF+12; S0=QF; S1=QF+4
    def ldA(r0,r1):
        e('global_load_dwordx4 %s, %s, s[16:17] sc1'%(v(r0,4),v(gAr)))
        e('global_load_dwordx4 %s, %s, s[16:17] offset:1024 sc1'%(v(r1,4),v(gAr)))
    def redA(r0,r1,n0,n1,ok):
        e('s_waitcnt vmcnt(%d)'%n0)
        e('v_mfma_f32_16x16x32_bf16 %s, %s, %s, 0'%(v(DA,4),v(r0,4),v(BSEL+2,4)))
        e('v_mfma_f32_16x16x32_bf16 %s, %s, %s, 0'%(v(DB,4),v(r0,4),v(BSEL,4)))
        e('v_xor_b32 v80, s29, v%d'%r0)
        e('s_waitcnt vmcnt(%d)'%n1)
        e('v_mfma_f32_16x16x32_bf16 %s, %s, %s, %s'%(v(DA,4),v(r1,4),v(BSEL+2,4),v(DA,4)))
        e('v_mfma_f32_16x16x32_bf16 %s, %s, %s, %s'%(v(DB,4),v(r1,4),v(BSEL,4),v(DB,4)))
        e('v_bitop3_b32 v80, v80, v%d, s29 bitop3:0xf6'%r1)
        e('v_and_b32 v80, 1, v80')
        e('v_cmp_ne_u32 vcc, 0, v80')
        if ts or cnt or trace: e('s_add_u32 s48, s48, 1')
        e('s_cbranch_vccz %s'%ok)
    pre=[(R0,R1),(QF,QF+4),(QF+8,QF+12)][:nA]
    for i,(r0,r1) in enumerate(pre):
        ldA(r0,r1)
        if i+1<len(pre): delay(pA)
    for i,(r0,r1) in enumerate(pre):
        rem=2*(len(pre)-1-i)
        redA(r0,r1,rem+1,rem,'L_c_okA')
        a.fence()
    a.label('L_c_pollA')
    ldA(R0,R1)
    redA(R0,R1,1,0,'L_c_okA')
    e('s_add_u32 s44, s44, 1\ns_cmp_gt_u32 s44, 200000\ns_cbranch_scc1 L_c_done\ns_branch L_c_pollA')
    a.label('L_c_okA')
    TS('pollA')
    if XB: e('s_memtime s[88:89]')
    e('s_nop 3')
    e('v_pk_add_f32 v[%d:%d], v[%d:%d], v[%d:%d]'%(DA,DA+1,DA,DA+1,DA+2,DA+3))
    e('v_pk_add_f32 v[%d:%d], v[%d:%d], v[%d:%d]'%(DB,DB+1,DB,DB+1,DB+2,DB+3))
    e('v_add_f32 v%d, v%d, v%d'%(DA,DA,DA+1))
    e('v_add_f32 v%d, v%d, v%d'%(DB,DB,DB+1))
    e('v_cvt_pk_bf16_f32 v%d, v%d, v%d'%(DA,DA,DB))
    e('v_and_or_b32 v%d, v%d, v%d, v%d'%(DA,DA,MASKB,TAGB))
    e('s_mov_b64 exec, s[38:39]')
    e('global_store_dword %s, v%d, s[18:19]%s'%(v(gBw),DA,st))
    e('s_mov_b64 exec, -1')
    TS('HA')
    lg.reset()
    for j in (8,9,10):
        for hh in range(2): e('ds_read_b128 %s, %s offset:%d'%(v(RING[(j-8)%3]+4*hh,4),v(aWo),(j-8)*2048+hh*1024))
    e('''s_mov_b64 s[92:93], s[18:19]
s_mov_b32 s30, s29
s_mov_b32 s31, 1
s_add_u32 s28, s28, 1
s_and_b32 s40, s28, 1
s_lshl_b32 s41, s40, 18
s_add_u32 s16, s8, s41
s_addc_u32 s17, s9, 0
s_add_u32 s46, s16, 0x8000
s_addc_u32 s47, s17, 0
s_lshl_b32 s41, s40, 13
s_add_u32 s41, s41, %d
s_add_u32 s18, s8, s41
s_addc_u32 s19, s9, 0
s_lshr_b32 s29, s28, 1
s_and_b32 s29, s29, 1
s_add_u32 s24, s24, 0x10000
s_addc_u32 s25, s25, 0
s_add_u32 s26, s26, 0x10000
s_addc_u32 s27, s27, 0
v_xor_b32 %s, 0x6000, %s'''%(WS_HOPB,v(aKr),v(aKr)))
    if XB:
        e('s_waitcnt lgkmcnt(0)\ns_sub_u32 s40, s88, s90\ns_sub_u32 s40, %d, s40\ns_cbranch_scc1 L_c_nodB\ns_mul_i32 s40, s40, 37\ns_lshr_b32 s40, s40, 10'%(XB))
        a.label('L_c_dBl')
        e('s_sub_u32 s40, s40, 1\ns_cbranch_scc0 L_c_dBl')
        a.label('L_c_nodB')
    else:
        delay(max(0,dB-80))
    xdelay('B')
    def dmaB():
        e('global_load_lds_dwordx4 %s, s[92:93] sc1'%v(gB0))
        e('global_load_lds_dwordx4 %s, s[92:93] offset:1024 sc1'%v(gB0))
    CK=VX1
    dmaB()
    delay(pB)
    dmaB()
    a.label('L_c_loopB')
    e('s_waitcnt vmcnt(2)')
    lg.reset()
    for j in range(4): rdF(j)
    lg.wait(('A',0))
    e('v_xor_b32 v%d, s30, v%d'%(CK,fr(0)))
    lg.wait(('A',1))
    e('v_bitop3_b32 v%d, v%d, v%d, s30 bitop3:0xf6'%(CK,CK,fr(1)))
    lg.wait(('A',2))
    e('v_bitop3_b32 v%d, v%d, v%d, s30 bitop3:0xf6'%(CK,CK,fr(2)))
    lg.wait(('A',3))
    e('v_bitop3_b32 v%d, v%d, v%d, s30 bitop3:0xf6'%(CK,CK,fr(3)))
    e('v_and_b32 v%d, 1, v%d'%(CK,CK))
    e('v_cmp_ne_u32 vcc, 0, v%d'%CK)
    if ts or cnt or trace: e('s_add_u32 s49, s49, 1')
    e('s_cbranch_vccz L_c_okB')
    dmaB()
    e('s_add_u32 s44, s44, 1\ns_cmp_gt_u32 s44, 200000\ns_cbranch_scc1 L_c_done\ns_branch L_c_loopB')
    a.label('L_c_okB')
    TS('pollB')
    if ts:
        e('s_and_b32 s40, s28, 7\ns_cmp_eq_u32 s40, 5\ns_cbranch_scc0 L_c_nodump')
        e('s_waitcnt lgkmcnt(0)')
        e('s_lshl_b32 s40, s5, 6\ns_add_u32 s40, s40, s28\ns_lshl_b32 s40, s40, 2\ns_add_u32 s40, s40, s4\ns_lshl_b32 s40, s40, 7\ns_add_u32 s40, s40, %d'%(WS_O))
        e('v_mov_b32 v34, s40\ns_mov_b64 exec, 1')
        n=tsn[0]
        for i in range(n):
            e('v_mov_b32 v35, s%d'%(50+2*i)); e('global_store_dword v34, v35, s[8:9] offset:%d'%(4*i))
        e('v_mov_b32 v35, s48\nglobal_store_dword v34, v35, s[8:9] offset:120\nv_mov_b32 v35, s49\nglobal_store_dword v34, v35, s[8:9] offset:124')
        e('s_mov_b64 exec, -1')
        a.label('L_c_nodump')
    a.fence()
    e('s_branch L_c_step')
    if sync:
        a.label('L_c_kvspin'); a.hist=[]
        e('s_add_u32 s41, s28, 1\ns_lshr_b32 s41, s41, 2\ns_min_u32 s41, s41, 15\ns_lshl_b32 s41, s41, 7\ns_add_u32 s82, s84, s41\ns_addc_u32 s83, s85, 0')
        e('s_mov_b64 exec, 1\nglobal_load_dword v%d, %s, s[82:83] sc1\ns_mov_b64 exec, -1\ns_waitcnt vmcnt(0)\nv_readfirstlane_b32 s40, v%d'%(KVF,v(gB0),KVF))
        e('s_add_u32 s44, s44, 1\ns_cmp_gt_u32 s44, 200000\ns_cbranch_scc1 L_c_done\ns_cmp_ge_u32 s40, 128\ns_cbranch_scc0 L_c_kvspin\ns_branch L_c_kvgo')
    a.label('L_c_done'); a.hist=[]
    e('s_waitcnt vmcnt(0)')
    if sync:
        e('s_barrier')
        e('s_lshl_b32 s41, s5, 7\ns_add_u32 s41, s41, %d\nv_mov_b32 v34, s41\nv_mov_b32 v35, 64'%FL_PROG)
        e('s_mov_b64 exec, 1\nglobal_store_dword v34, v35, s[8:9] sc1\ns_mov_b64 exec, -1\ns_waitcnt vmcnt(0)')
    if trace:
        e('s_lshl_b32 s40, s5, 2\ns_add_u32 s40, s40, s4\ns_mul_i32 s40, s40, 768\ns_add_u32 s40, s40, %d'%(WS_O))
        e('v_mbcnt_lo_u32_b32 v64, -1, 0\nv_mbcnt_hi_u32_b32 v64, -1, v64\nv_lshlrev_b32 v64, 2, v64\nv_add_u32 v64, s40, v64')
        e('global_store_dword v64, v7, s[8:9]\nglobal_store_dword v64, v11, s[8:9] offset:256\nglobal_store_dword v64, v15, s[8:9] offset:512\ns_waitcnt vmcnt(0)')
    if cnt:
        e('s_lshl_b32 s40, s5, 2\ns_add_u32 s40, s40, s4\ns_lshl_b32 s40, s40, 3\ns_add_u32 s40, s40, %d'%(WS_G))
        e('v_mov_b32 v64, s40\nv_mov_b32 v66, s48\nv_mov_b32 v67, s49\ns_mov_b64 exec, 1\nglobal_store_dwordx2 v64, v[66:67], s[8:9]\ns_mov_b64 exec, -1\ns_waitcnt vmcnt(0)')
```

```python
from asmgen import Asm
from layout import *
from chain import v, ag, Q, f2u
import math

def role_gate(a, sc='', sync=True):
    e=a.e
    e('''
v_and_b32 v1, 63, v0
v_and_b32 v2, 31, v1
v_lshrrev_b32 v3, 5, v1
s_load_dwordx2 s[12:13], s[0:1], %d
s_load_dwordx2 s[14:15], s[0:1], %d
v_lshlrev_b32 v4, 4, v3          ; g*16
v_lshl_add_u32 v5, v2, 10, v4    ; token*1024 + g*16
s_lshl_b32 s16, s5, 2
s_add_u32 s16, s16, s4
s_lshl_b32 s16, s16, 2           ; first segment
s_waitcnt lgkmcnt(0)
''' % (KA_GATE,KA_X))
    e('s_load_dwordx2 s[22:23], s[0:1], %d'%KA_WO)
    e('s_lshl_b32 s24, s5, 2\ns_add_u32 s24, s24, s4\ns_lshl_b32 s24, s24, 18\nv_lshlrev_b32 v7, 7, v1\nv_add_u32 v7, s24, v7\ns_waitcnt lgkmcnt(0)')
    for i in range(32):
        e('global_load_dword v%d, v7, s[22:23]'%(80+i))
        e('v_add_u32 v7, 0x2000, v7')
    for ks in range(32): e('global_load_dwordx4 %s, v4, s[12:13] offset:%d'%(v(128+4*ks,4),ks*32))
    e('s_mov_b32 s17, 0')
    a.label('L_g_it')
    e('s_add_u32 s18, s16, s17\ns_lshl_b32 s19, s18, 15\ns_add_u32 s20, s14, s19\ns_addc_u32 s21, s15, 0')
    for ks in range(32): e('global_load_dwordx4 %s, v5, s[20:21] offset:%d'%(ag(4*ks,4),ks*32))
    e('s_waitcnt vmcnt(0)')
    for ks in range(32):
        e('v_mfma_f32_32x32x16_bf16 v[64:79], %s, %s, %s'%(v(128+4*ks,4),ag(4*ks,4),'0' if ks==0 else 'v[64:79]'))
    e('v_mul_f32 v64, 0xbfb8aa3b, v64')
    e('v_exp_f32 v64, v64')
    e('v_add_f32 v64, 1.0, v64')
    e('v_rcp_f32 v64, v64')
    e('s_lshl_b32 s19, s18, 7\ns_add_u32 s19, s19, %d'%WS_G)
    e('v_lshl_add_u32 v6, v2, 2, s19')
    e('s_mov_b32 exec_hi, 0')
    e('global_store_dword v6, v64, s[8:9]%s'%sc)
    e('s_mov_b32 exec_hi, -1')
    e('s_add_u32 s17, s17, 1\ns_cmp_lt_u32 s17, 4')
    a.fence()
    e('s_cbranch_scc1 L_g_it')
    e('s_waitcnt vmcnt(0)\ns_barrier')
    if sync:
        e('''
s_mov_b32 s47, 0
L_g_wr:
v_mov_b32 v17, %d
global_load_dword v18, v17, s[10:11] sc1
s_waitcnt vmcnt(0)
v_readfirstlane_b32 s46, v18
s_cmp_ge_u32 s46, 32
s_cbranch_scc1 L_g_wrd
s_add_u32 s47, s47, 1
s_cmp_gt_u32 s47, 200000
s_cbranch_scc1 L_g_wrd
s_sleep 4
s_branch L_g_wr
L_g_wrd:
s_cmp_eq_u32 s4, 0
s_cbranch_scc0 L_g_nosig
v_mov_b32 v17, %d
v_mov_b32 v18, 1
s_mov_b64 exec, 1
global_atomic_add v17, v18, s[8:9] sc1
s_mov_b64 exec, -1
L_g_nosig:
''' % (DBG_READY,FL_G))

def role_out(a, sync=True):
    e=a.e
    ACCA=64; ACCB=80
    W2=lambda kk: v(128+4*kk,4)
    WO=lambda ks: ag(4*ks,4)
    e('''
v_and_b32 v1, 63, v0
s_load_dwordx2 s[12:13], s[0:1], %d
s_load_dwordx2 s[14:15], s[0:1], %d
s_load_dwordx2 s[16:17], s[0:1], %d
; DMA lane offset: row=l>>2 (stride 1024) + chunk (l&3)*16 + ct16*64
v_lshrrev_b32 v2, 2, v1
v_lshlrev_b32 v2, 10, v2
v_and_b32 v3, 3, v1
v_lshl_add_u32 v2, v3, 4, v2
s_lshl_b32 s18, s5, 6
v_add_u32 v2, s18, v2
; tr read lane address: wave*32768 + (8*(G>>1)+m)*64 + (G&1)*32 + c*8
v_lshrrev_b32 v4, 5, v1
v_bfe_u32 v5, v1, 2, 2
v_lshl_add_u32 v4, v4, 3, v5
v_lshlrev_b32 v4, 6, v4
v_bfe_u32 v5, v1, 4, 1
v_lshl_add_u32 v4, v5, 5, v4
v_lshl_add_u32 v4, v3, 3, v4
s_lshl_b32 s19, s4, 15
v_add_u32 v4, s19, v4
s_waitcnt lgkmcnt(0)
''' % (KA_WO,KA_W2,KA_OUT))
    def stage(base_lo, rowoff_sreg, nins):
        e('s_add_u32 s20, s%d, %s\ns_addc_u32 s21, s%d, 0'%(base_lo,rowoff_sreg,base_lo+1))
        for j in range(nins):
            e('s_add_u32 m0, s19, %d'%(j*1024))
            e('global_load_lds_dwordx4 v2, s[20:21]')
            e('s_add_u32 s20, s20, 16384\ns_addc_u32 s21, s21, 0')
        e('s_waitcnt vmcnt(0)')
    def trread(dst,nks):
        n=0
        for ks in range(nks):
            for hh in range(2):
                e('ds_read_b64_tr_b16 %s, v4 offset:%d'%(dst(ks,hh),ks*1024+hh*256)); n+=1
                if n%12==0: e('s_waitcnt lgkmcnt(4)')
        e('s_waitcnt lgkmcnt(0)')
    for rnd in range(2):
        e('s_lshl_b32 s22, s4, 20\ns_add_u32 s22, s22, %d'%(rnd*512*1024))
        stage(12,'s22',32)
        trread(lambda ks,hh: ag(4*(32*rnd+ks)+2*hh,2),32)
    e('s_mul_i32 s22, s4, %d'%(448*1024))
    stage(14,'s22',28)
    trread(lambda ks,hh: v(128+4*ks+2*hh,2),28)
    e('''
v_lshlrev_b32 v6, 4, v1
s_lshl_b32 s19, s4, 12
v_add_u32 v6, s19, v6
v_and_b32 v7, 7, v1             ; t8
v_bfe_u32 v8, v1, 3, 2          ; q
v_lshrrev_b32 v9, 5, v1         ; hf
s_lshl_b32 s19, s4, 3
v_add_u32 v10, s19, v7          ; token = 8w+t8
v_lshl_add_u32 v11, v9, 5, v10
v_lshlrev_b32 v11, 4, v11
v_lshl_add_u32 v11, v8, 10, v11 ; + q*1024
v_lshlrev_b32 v12, 10, v10
v_lshl_add_u32 v12, v8, 4, v12
v_lshl_add_u32 v12, v9, 3, v12
s_lshl_b32 s19, s5, 6
v_add_u32 v12, s19, v12
v_lshlrev_b32 v13, 2, v10
v_lshlrev_b32 v14, 4, v1        ; lane*16
s_mov_b32 s24, s6               ; segment
s_barrier
''')
    if sync:
        e('''
s_mov_b32 s57, 0
v_mov_b32 v20, {fg}
L_o_wg:
global_load_dword v23, v20, s[8:9] sc1
s_waitcnt vmcnt(0)
v_readfirstlane_b32 s58, v23
s_cmp_ge_u32 s58, 4
s_cbranch_scc1 L_o_wgd
s_add_u32 s57, s57, 1
s_cmp_gt_u32 s57, 300000
s_cbranch_scc1 L_o_exit
s_sleep 8
s_branch L_o_wg
L_o_wgd:
'''.format(fg=FL_G))
    ld=' sc1' if sync else ''
    def ring_gemm(acc, n, wfrag, slots, base):
        NR=min(len(slots),n)
        def issue(k):
            e('global_load_dwordx4 %s, v14, s[%d:%d] offset:%d%s'%(v(slots[k%len(slots)],4),base,base+1,(k&3)*1024,ld))
            if (k&3)==3: e('s_add_u32 s%d, s%d, 4096\ns_addc_u32 s%d, s%d, 0'%(base,base,base+1,base+1))
        for k in range(NR): issue(k)
        for k in range(n):
            outstanding=min(NR,n-k)
            e('s_waitcnt vmcnt(%d)'%(outstanding-1))
            e('v_mfma_f32_32x32x16_bf16 %s, %s, %s, %s'%(v(acc,16),wfrag(k),v(slots[k%len(slots)],4),'0' if k==0 else v(acc,16)))
            if k+NR<n: issue(k+NR)
        a.fence()
    def reduce4(acc):
        for q in range(4): e('ds_write_b128 v6, %s offset:%d'%(v(acc+4*q,4),q*1024))
        e('s_waitcnt lgkmcnt(0)\ns_barrier')
        for src in range(4): e('ds_read_b128 %s, v11 offset:%d'%(v(32+4*src,4),src*4096))
        e('s_waitcnt lgkmcnt(0)\ns_barrier')
        for r in (0,2):
            e('v_pk_add_f32 v[%d:%d], v[%d:%d], v[%d:%d]'%(32+r,33+r,32+r,33+r,36+r,37+r))
            e('v_pk_add_f32 v[%d:%d], v[%d:%d], v[%d:%d]'%(40+r,41+r,40+r,41+r,44+r,45+r))
        for r in (0,2):
            e('v_pk_add_f32 v[%d:%d], v[%d:%d], v[%d:%d]'%(32+r,33+r,32+r,33+r,40+r,41+r))
    def spin(label, addr_setup, thr, sleep):
        e(addr_setup)
        e('''
s_mov_b32 s57, 0
{L}:
global_load_dword v23, v20, s[8:9] sc1
s_waitcnt vmcnt(0)
v_readfirstlane_b32 s58, v23
s_cmp_ge_u32 s58, {thr}
s_cbranch_scc1 {L}d
s_add_u32 s57, s57, 1
s_cmp_gt_u32 s57, 600000
s_cbranch_scc1 L_o_exit
{sl}
s_branch {L}
{L}d:
'''.format(L=label,thr=thr,sl=('s_sleep %d'%sleep if sleep else 's_nop 0')))
    s16=[32+4*i for i in range(8)]+[96+4*i for i in range(8)]
    e('v_lshlrev_b32 v16, 4, v0\nv_add_u32 v16, 16384, v16')
    a.label('L_o_p1')
    if sync: spin('L_o_wh','s_lshr_b32 s26, s24, 2\ns_lshl_b32 s26, s26, 7\ns_add_u32 s26, s26, %d\nv_mov_b32 v20, s26'%(FL_P+4096),28,8)
    e('''
s_mul_i32 s25, s24, {hs}
s_mul_i32 s26, s4, {hw}
s_add_u32 s25, s25, s26
s_add_u32 s25, s25, {h}
s_add_u32 s30, s8, s25
s_addc_u32 s31, s9, 0
'''.format(hs=112*1024,hw=28*1024,h=WS_H))
    ring_gemm(ACCB,28,W2,s16,30)
    reduce4(ACCB)
    e('ds_write_b128 v16, v[32:35]\nv_add_u32 v16, 4096, v16')
    e('s_add_u32 s24, s24, s7\ns_cmp_lt_u32 s24, 64')
    a.fence()
    e('s_cbranch_scc1 L_o_p1')
    e('s_mov_b32 s24, s6\nv_lshlrev_b32 v16, 4, v0\nv_add_u32 v16, 16384, v16\ns_waitcnt lgkmcnt(0)')
    s48=[128+4*i for i in range(32)]+s16
    a.label('L_o_seg')
    e('''
s_lshl_b32 s25, s24, 7
s_add_u32 s25, s25, {g}
s_add_u32 s32, s8, s25
s_addc_u32 s33, s9, 0
global_load_dword v15, v13, s[32:33]{ld}
ds_read_b128 v[80:83], v16
v_add_u32 v16, 4096, v16
'''.format(g=WS_G,ld=ld))
    if sync: spin('L_o_w','s_lshl_b32 s25, s24, 7\ns_add_u32 s25, s25, %d\nv_mov_b32 v20, s25'%FL_AT,32,0)
    e('''
s_lshl_b32 s25, s24, 18
s_lshl_b32 s26, s4, 16
s_add_u32 s25, s25, s26
s_add_u32 s25, s25, {o}
s_add_u32 s28, s8, s25
s_addc_u32 s29, s9, 0
'''.format(o=WS_O))
    ring_gemm(ACCA,64,WO,s48,28)
    reduce4(ACCA)
    for r in range(4):
        e('v_sub_f32 v%d, v%d, v%d'%(32+r,32+r,80+r))
        e('v_fma_f32 v%d, v15, v%d, v%d'%(32+r,32+r,80+r))
    e('v_cvt_pk_bf16_f32 v40, v32, v33\nv_cvt_pk_bf16_f32 v41, v34, v35')
    e('s_lshl_b32 s25, s24, 15\ns_add_u32 s34, s16, s25\ns_addc_u32 s35, s17, 0')
    e('global_store_dwordx2 v12, v[40:41], s[34:35]')
    e('s_add_u32 s24, s24, s7\ns_cmp_lt_u32 s24, 64')
    a.fence()
    e('s_cbranch_scc1 L_o_seg')
    a.label('L_o_exit')
```

```python
import sys; sys.path.insert(0,'gen')
from kern import *
import chain, proj, attn, outp
NAME='gated_mix__memory_aug_recurrent_mem_tr__dense_activation_relu__prompt'
def gen(dA=260, dB=240, pB=120, nA=2, pA=200, dbgtime=False, **kw):
    chain.set_lset(kw.pop('lset',[0,1,2,3,4,5,14,15]))
    a=Asm()
    ref=open('cdna_kernels/%s.s.ref'%NAME).read().split('\n')
    hdr=[l for l in ref if l.startswith(';') and '@launch' not in l]
    lead=[]
    for l in ref:
        if l.startswith(';'):
            if '@launch' in l: lead.append('; @launch grid=(256,1,1) block=(256,1,1) lds=163840')
            else: lead.append(l)
        else: break
    a.raw('\n'.join(lead))
    header(a,None)
    K=NAME+'_kernel'
    begin(a,K)
    a.e('s_cmp_ge_u32 s2, 256\ns_cbranch_scc1 L_end')
    prologue(a)
    if dbgtime: a.e('s_memrealtime s[96:97]')
    ticket(a,chain.L_TMP)
    a.e('''
s_mov_b32 s98, s6
s_mov_b32 s99, s7
''')
    if dbgtime:
        a.e('''
s_lshl_b32 s95, s98, 5
s_add_u32 s95, s95, s99
s_lshl_b32 s95, s95, 2
s_add_u32 s95, s95, %d
v_mov_b32 v126, s95
v_mov_b32 v127, s96
s_mov_b64 exec, 1
global_store_dword v126, v127, s[8:9]
s_mov_b64 exec, -1
''' % (WS_B+8192))
    a.e('''
s_cmp_ge_u32 s7, 32
s_cbranch_scc1 L_end
s_cmp_eq_u32 s6, 0
s_cbranch_scc0 L_worker
s_mov_b32 s5, s7
''')
    chain.chain_setup(a,'',sync=True,dbgfn=(lambda k: stamp(a,k)) if dbgtime else None)
    if dbgtime: stamp(a,1)
    chain.chain_loop(a,'',dA=dA,dB=dB,pB=pB,nA=nA,pA=pA,sync=True,**kw)
    if dbgtime: stamp(a,0)
    a.e('s_branch L_end')
    a.label('L_worker'); a.hist=[]
    a.e('''
s_sub_u32 s12, s98, 1
s_lshl_b32 s12, s12, 5
s_add_u32 s12, s12, s99         ; idx 0..223
s_cmp_ge_u32 s12, 220
s_cbranch_scc1 L_gate
s_lshr_b32 s5, s12, 1
s_and_b32 s6, s12, 1
''')
    proj.role_proj(a,sc=' sc1',sync=True)
    a.e('s_branch L_role2')
    a.label('L_gate'); a.hist=[]
    a.e('s_sub_u32 s5, s12, 220')
    outp.role_gate(a,sc=' sc1',sync=True)
    a.label('L_role2'); a.hist=[]
    if dbgtime: stamp(a,1)
    a.e('''
s_barrier
s_cmp_le_u32 s98, 4
s_cbranch_scc0 L_isattn_hi
s_cmp_lt_u32 s99, 16
s_cbranch_scc0 L_isattn_lo
s_mov_b32 s5, s99
s_sub_u32 s6, s98, 1
s_mov_b32 s7, 4
''')
    outp.role_out(a,sync=True)
    if dbgtime: stamp(a,2)
    a.e('s_branch L_end')
    a.label('L_isattn_lo'); a.hist=[]
    a.e('''
s_sub_u32 s12, s98, 1
s_lshl_b32 s12, s12, 4
s_add_u32 s12, s12, s99
s_sub_u32 s12, s12, 16
s_branch L_isattn
L_isattn_hi:
s_sub_u32 s12, s98, 5
s_lshl_b32 s12, s12, 5
s_add_u32 s12, s12, s99
s_add_u32 s12, s12, 64
L_isattn:
s_lshl_b32 s50, s12, 2
s_add_u32 s50, s50, s4
s_lshr_b32 s51, s50, 5
s_and_b32 s50, s50, 31
s_mov_b32 s52, 20
''')
    attn.role_attn(a,sc=' sc1',sync=True)
    if dbgtime: stamp(a,3)
    if dbgtime:
        pass
    a.label('L_end');
    a.e('s_waitcnt vmcnt(0)\ns_endpgm')
    descriptor(a,[K])
    return a
def stamp(a,k):
    a.e('''
s_memrealtime s[94:95]
s_waitcnt lgkmcnt(0)
s_sub_u32 s94, s94, s96
s_lshl_b32 s95, s98, 5
s_add_u32 s95, s95, s99
s_lshl_b32 s95, s95, 4
s_add_u32 s95, s95, %d
v_mov_b32 v126, s95
v_mov_b32 v127, s94
s_mov_b64 exec, 1
global_store_dword v126, v127, s[8:9]
s_mov_b64 exec, -1
''' % (WS_B+4*k))
if __name__=='__main__':
    a=gen()
    out=sys.argv[1] if len(sys.argv)>1 else 'cdna_kernels/%s.s'%NAME
    open(out,'w').write(a.text()); print('instrs',a.count,'nops',a.nnops,'bytes',len(a.text()))
```

```python
from asmgen import Asm
from layout import *
import struct, math

L_M=0; L_K0=8192; L_K1=16384; L_Q=24576; L_KT=L_Q+2176; L_TMP=30976; L_WO=32768

class Q:
    def __init__(s, asm, name, maxv): s.a=asm; s.name=name; s.q=[]; s.maxv=maxv
    def issue(s, tag): s.q.append(tag)
    def wait(s, tag):
        if tag not in s.q: return
        i=s.q.index(tag); n=len(s.q)-1-i
        n=min(n,s.maxv)
        s.a.e('s_waitcnt %s(%d)'%(s.name,n)); s.q=s.q[len(s.q)-n:] if n>0 else []
    def waitall(s):
        s.a.e('s_waitcnt %s(0)'%s.name); s.q=[]
    def reset(s): s.q=[]

def f2u(x): return struct.unpack('<I',struct.pack('<f',x))[0]

def rowconst(kb,m):
    rho=2*kb+(m>>2); u=rho&3
    return 128*(rho>>3)+64*((rho>>2)&1)+32*(m&1)+16*(u&1)+(u>>1)+2*((m&3)>>1)
for kb in range(16):
    for m in range(8):
        for gb in range(4):
            assert pi_pos(32*kb+16*(m>>2)+4*gb+(m&3))==rowconst(kb,m)+4*gb
def rowrest(j,m): return rowconst(j&3,m)
for w in range(4):
    for j in range(16):
        for m in range(8):
            assert rowconst((4*w+j)&15,m)==128*((w+(j>>2))&3)+rowrest(j,m)

def v(a,n=1): return 'v%d'%a if n==1 else 'v[%d:%d]'%(a,a+n-1)
def ag(a,n=1): return 'a%d'%a if n==1 else 'a[%d:%d]'%(a,a+n-1)

aMb=[3,0,1,9]
IDX=2; aWo=4; aQw=5; aQr=6; aKr=8
gA0=10; gAr=12; gBw=13; gB0=14; gV=7; KVF=11; gVM=15
ONES=20; BSEL=24; TAGB=30; MASKB=31
VX1=32; AF=36; ACCQ=52; ACCK=56; ACCV=60; QF=64; KF=80; KXR=96; SX0=112; SX1=116; SM=120; VX2=16; OF3=124
RING=[120,24,112]
SEQ=[(0,0),(1,0),(2,0),(3,0),(0,1),(1,1),(0,2),(1,2),(0,3),(1,3),(2,1),(3,1),(2,2),(3,2),(2,3),(3,3)]
LSET=[0,1,2,3,4,5,14,15]
ASET=[i for i in range(16) if i not in LSET]
def set_lset(l):
    LSET[:]=l; ASET[:]=[i for i in range(16) if i not in l]
WOR=lambda i: ag(64+8*ASET.index(i),8)
WQ=lambda j: ag(8*j,8)
WK=lambda j: ag(128+8*j,8)
WV=lambda j: v(128+8*j,8)

def chain_setup(a, st, sync=False, dbgfn=None):
    e=a.e
    e('''
v_and_b32 v1, 63, v0
v_and_b32 v32, 15, v1          ; j / n / i
v_lshrrev_b32 v33, 4, v1       ; g
v_bfe_u32 v34, v1, 4, 1        ; rh
v_lshrrev_b32 v35, 5, v1       ; half
v_lshlrev_b32 v36, 4, v0       ; tid*16
s_lshl_b32 s40, s5, 13
v_add_u32 v37, s40, v36
v_mov_b32 v40, -1
v_mov_b32 v41, -1
v_mov_b32 v42, -1
v_mov_b32 v43, -1
v_add_u32 v38, 0x1000, v37
v_add_u32 v39, 0x40000, v37
v_add_u32 v44, 0x41000, v37
global_store_dwordx4 v37, v[40:43], s[8:9]{st}
global_store_dwordx4 v38, v[40:43], s[8:9]{st}
global_store_dwordx4 v39, v[40:43], s[8:9]{st}
global_store_dwordx4 v44, v[40:43], s[8:9]{st}
s_lshl_b32 s40, s5, 8
s_add_u32 s40, s40, {hb}
v_lshlrev_b32 v45, 2, v1
v_add_u32 v45, s40, v45
v_add_u32 v46, 0x2000, v45
global_store_dword v45, v40, s[8:9]{st}
global_store_dword v46, v40, s[8:9]{st}
; zero the flags area: 1 KB per chain WG (256 threads x 4 B)
s_lshl_b32 s40, s5, 10
s_add_u32 s40, s40, {fl}
v_lshlrev_b32 v45, 2, v0
v_add_u32 v45, s40, v45
v_mov_b32 v46, 0
global_store_dword v45, v46, s[8:9] sc1
'''.format(st=st,hb=WS_HOPB,fl=WS_FLAGS))
    e('s_load_dwordx2 s[88:89], s[0:1], %d'%KA_MEM0)
    e('''
v_and_b32 v64, 7, v0           ; row
v_lshrrev_b32 v65, 3, v0       ; q8 (0..31)
v_and_b32 v66, 1, v65          ; oct
v_lshrrev_b32 v67, 1, v65      ; rho (0..15)
v_lshrrev_b32 v68, 3, v67
v_lshlrev_b32 v68, 7, v68
v_bfe_u32 v69, v67, 2, 1
v_lshlrev_b32 v69, 6, v69
v_add_u32 v68, v68, v69
v_and_b32 v69, 1, v67
v_lshlrev_b32 v69, 4, v69
v_add_u32 v68, v68, v69
v_lshlrev_b32 v69, 3, v66
v_add_u32 v68, v68, v69
v_bfe_u32 v69, v67, 1, 1
v_add_u32 v68, v68, v69        ; D0
v_lshlrev_b32 v68, 1, v68
v_lshlrev_b32 v64, 10, v64
v_add_u32 v68, v68, v64
s_waitcnt lgkmcnt(0)
s_mov_b32 s90, 8192
s_mov_b32 s91, 0x00020000
''')
    for hlf in range(2):
        for n in range(8):
            e('buffer_load_ushort v%d, v68, s[88:91], 0 offen offset:%d'%(72+8*hlf+n, hlf*512+(32*(n&1)+2*(n>>1))*2))
    e('s_load_dwordx2 s[12:13], s[0:1], %d\ns_load_dwordx2 s[82:83], s[0:1], %d\ns_load_dwordx2 s[84:85], s[0:1], %d\ns_load_dwordx2 s[86:87], s[0:1], %d'%(KA_WO,KA_WQ,KA_WK,KA_WV))
    e('''
s_lshl_b32 s40, s5, 17         ; h*131072
s_lshl_b32 s41, s4, 8          ; 128*w*2
s_add_u32 s40, s40, s41
v_lshlrev_b32 v37, 2, v32      ; 4j
v_lshlrev_b32 v38, 12, v33     ; gb*4*1024
v_add3_u32 v37, v37, v38, s40
v_lshlrev_b32 {aWo}, 4, v1
s_lshl_b32 s41, s4, 15
s_add_u32 s41, s41, {lwo}
v_add_u32 {aWo}, s41, {aWo}
s_lshl_b32 s40, s5, 8          ; h*256
s_lshl_b32 s41, s4, 6          ; 64*w
s_add_u32 s40, s40, s41
v_lshlrev_b32 v36, 2, v32      ; 4j
v_lshlrev_b32 v38, 15, v33     ; gb*32768
v_add3_u32 v36, v36, v38, s40  ; voffset for Wq/Wk/Wv
s_waitcnt lgkmcnt(0)
s_mov_b32 s14, 0x400000
s_mov_b32 s15, 0x00020000
'''.format(aWo=v(aWo),lwo=L_WO))
    for b_ in range(4):
        e('s_add_u32 s41, s4, %d\ns_and_b32 s41, s41, 3\ns_lshl_b32 s%d, s41, 15'%(b_,44+b_))
    for jj in range(4):
        for m in range(8): e('s_mov_b32 s%d, %d'%(50+8*jj+m,rowrest(jj,m)*8192))
    st_list=[]
    nld=0
    e('s_mov_b64 s[100:101], s[12:13]')
    for i,(t,b_) in enumerate(SEQ):
        if i in ASET[4:]: continue
        for hh in range(2):
            for mm in range(4):
                e('s_add_u32 s41, s%d, %d'%(44+b_,(16*hh+mm)*1024+t*64))
                dst=('v%d'%(128+8*LSET.index(i)+4*hh+mm)) if i in LSET else ('a%d'%(64+8*ASET.index(i)+4*hh+mm))
                e('buffer_load_dword %s, v37, s[12:15], s41 offen'%dst)
                nld+=1
                if nld==40:
                    e('s_waitcnt vmcnt(40)')
                    for hlf in range(2):
                        for d in range(4):
                            e('v_lshl_or_b32 v%d, v%d, 16, v%d'%(96+4*hlf+d, 72+8*hlf+2*d+1, 72+8*hlf+2*d))
                    e('v_lshlrev_b32 v64, 4, v0\nv_add_u32 v65, 0x1000, v64\nds_write_b128 v64, v[96:99]\nds_write_b128 v65, v[100:103]')
                    e('''s_barrier
s_cmp_eq_u32 s4, 0
s_cbranch_scc0 L_c_noready
v_mov_b32 v38, {rdy}
v_mov_b32 v39, 1
s_mov_b64 exec, 1
global_atomic_add v38, v39, s[10:11] sc1
s_mov_b64 exec, -1
L_c_noready:'''.format(rdy=DBG_READY))
            if i in LSET: st_list.append((128+8*LSET.index(i)+4*hh,16384+LSET.index(i)*2048+hh*1024))
    for j in range(8,16):
        for hh in range(2): st_list.append((192+8*(j-8)+4*hh,(j-8)*2048+hh*1024))
    def dq(r,j,m): return ('a%d'%(8*j+m)) if j<8 else ('v%d'%(192+8*(j-8)+m))
    for w in range(4):
        if w>0: a.label('L_c_wl%d'%w)
        if w<3: e('s_cmp_eq_u32 s4, %d\ns_cbranch_scc0 L_c_wl%d'%(w,w+1))
        if w>0: e('s_nop 0')
        for mat in range(3):
            e('s_mov_b64 s[12:13], s[%d:%d]'%(82+2*mat,83+2*mat))
            n=0
            for kb in range(16):
                j=(kb-4*w)&15
                if kb>0 and kb%4==0: e('s_add_u32 s12, s12, 0x100000\ns_addc_u32 s13, s13, 0\ns_sub_u32 s14, s14, 0x100000')
                for m in range(8):
                    dst=dq(0,j,m) if mat==0 else ('a%d'%(128+8*j+m) if mat==1 else 'v%d'%(128+8*j+m))
                    e('buffer_load_dword %s, v36, s[12:15], s%d offen'%(dst,50+8*(kb&3)+m))
                    n+=1
                    if mat==1 and n%2==0 and n>64:
                        k=(n-66)//2
                        if n==66: e('s_waitcnt vmcnt(60)')
                        base,off=st_list[k]
                        e('ds_write_b128 %s, %s offset:%d'%(v(aWo),v(base,4),off))
            e('s_mov_b32 s14, 0x400000')
            if mat==1: e('s_waitcnt lgkmcnt(0)')
            if mat==2:
                e('v_mov_b32 v104, %d\nv_mov_b32 v105, %d\nglobal_load_dword v106, v104, s[10:11] sc1\nglobal_load_dword v107, v105, s[8:9] sc1'%(DBG_READY,FL_P))
        if w<3: e('s_branch L_c_wld')
    a.label('L_c_wld')
    if dbgfn: dbgfn(3)
    e('''
; gB0 = w*2048 + lane*16  (hop-B DMA offset, K DMA offset)
s_lshl_b32 s43, s4, 11
v_lshlrev_b32 v64, 4, v1
v_add_u32 {gB0}, s43, v64
; idx
v_mov_b32 {IDX}, 0x8888
v_mov_b32 v64, 0xdddd
v_cmp_le_u32 vcc, 8, v32
v_cndmask_b32 {IDX}, {IDX}, v64, vcc
; lanepart = g*128 + (i&7)*16
v_and_b32 v64, 7, v32
v_lshlrev_b32 v64, 4, v64
v_lshlrev_b32 v65, 7, v33
v_add_u32 v70, v64, v65
; aQw = L_Q + w*544 + half*272 + rh*128 + j*8
s_mul_i32 s40, s4, 544
s_add_u32 s40, s40, {lq}
v_mul_u32_u24 v64, 272, v35
v_lshlrev_b32 v65, 7, v34
v_lshlrev_b32 v66, 3, v32
v_add3_u32 v64, v64, v65, v66
v_add_u32 {aQw}, s40, v64
; aQr
v_bfe_u32 v64, v1, 2, 1
v_mul_u32_u24 v64, 272, v64
v_and_b32 v65, 1, v1
v_lshlrev_b32 v65, 7, v65
v_bfe_u32 v66, v1, 3, 1
v_lshl_add_u32 v66, v33, 2, v66
v_lshlrev_b32 v66, 3, v66
v_add3_u32 v64, v64, v65, v66
v_add_u32 {aQr}, {lq}, v64
; aKr = L_K0 + lane*16
v_lshlrev_b32 v64, 4, v1
v_add_u32 {aKr}, {lk0}, v64
; gA0 = (8w + 2*half + (j>>3))*8192 + (2rh+oct)*2048 + h*64 + (j&3)*16
v_lshrrev_b32 v64, 3, v32
v_lshl_add_u32 v64, v35, 1, v64
s_lshl_b32 s40, s4, 3
v_add_u32 v64, s40, v64
v_lshlrev_b32 v64, 13, v64
v_bfe_u32 v65, v32, 2, 1
v_lshl_add_u32 v65, v34, 1, v65
v_lshlrev_b32 v65, 11, v65
v_and_b32 v66, 3, v32
v_lshlrev_b32 v66, 4, v66
v_add3_u32 v64, v64, v65, v66
s_lshl_b32 s40, s5, 6
v_add_u32 {gA0}, s40, v64
; gAr = h*8192 + w*2048 + g*256 + (i&3)*64 + (i>>2)*16
v_lshlrev_b32 v64, 8, v33
v_and_b32 v65, 3, v32
v_lshlrev_b32 v65, 6, v65
v_lshrrev_b32 v66, 2, v32
v_lshlrev_b32 v66, 4, v66
v_add3_u32 v64, v64, v65, v66
s_lshl_b32 s40, s5, 13
s_add_u32 s40, s40, s43
v_add_u32 {gAr}, s40, v64
; gBw = h*256 + (w&1)*128 + (w>>1)*64 + n*16 + g*4
s_lshl_b32 s40, s5, 8
s_and_b32 s41, s4, 1
s_lshl_b32 s41, s41, 7
s_add_u32 s40, s40, s41
s_lshr_b32 s41, s4, 1
s_lshl_b32 s41, s41, 6
s_add_u32 s40, s40, s41
v_lshlrev_b32 v64, 4, v32
v_lshl_add_u32 v64, v33, 2, v64
v_add_u32 {gBw}, s40, v64
; gV = w*2048 + j*128 + g*16
v_lshlrev_b32 v64, 7, v32
v_lshl_add_u32 v64, v33, 4, v64
v_add_u32 {gV}, s43, v64
; gVM = w*512 + lane*8
s_lshl_b32 s40, s4, 9
v_lshlrev_b32 v64, 3, v1
v_add_u32 {gVM}, s40, v64
v_mov_b32 v20, 0x3f803f80
v_mov_b32 v21, 0x3f803f80
v_mov_b32 v22, 0x3f803f80
v_mov_b32 v23, 0x3f803f80
v_mov_b32 v24, 0
v_mov_b32 v25, 0
v_mov_b32 v28, 0
v_mov_b32 v29, 0
v_and_b32 v64, 3, v32
v_mov_b32 v65, 0x3f80
v_mov_b32 v66, 0x3f800000
v_mov_b32 v26, 0
v_mov_b32 v27, 0
v_cmp_eq_u32 vcc, 0, v64
v_cndmask_b32 v26, v26, v65, vcc
v_cmp_eq_u32 vcc, 1, v64
v_cndmask_b32 v26, v26, v66, vcc
v_cmp_eq_u32 vcc, 2, v64
v_cndmask_b32 v27, v27, v65, vcc
v_cmp_eq_u32 vcc, 3, v64
v_cndmask_b32 v27, v27, v66, vcc
v_mov_b32 {MASKB}, -1
v_mov_b32 v64, -2
v_cmp_eq_u32 vcc, 0, v33
v_cndmask_b32 {MASKB}, {MASKB}, v64, vcc
'''.format(gB0=v(gB0),IDX=v(IDX),aQw=v(aQw),aQr=v(aQr),aKr=v(aKr),gA0=v(gA0),
           gAr=v(gAr),gBw=v(gBw),gV=v(gV),gVM=v(gVM),MASKB=v(MASKB),aWo=v(aWo),lq=L_Q,lk0=L_K0))
    for b in (3,2,1,0):
        e('s_add_u32 s40, s4, %d\ns_and_b32 s40, s40, 3\ns_lshl_b32 s40, s40, 11\nv_add_u32 %s, s40, v70'%(b,v(aMb[b])))
    c=(128**-0.5)*math.log2(math.e)
    e('''
s_add_u32 s16, s8, {ha}
s_addc_u32 s17, s9, 0
s_add_u32 s18, s8, {hb}
s_addc_u32 s19, s9, 0
s_lshl_b32 s40, s5, 13
s_add_u32 s20, s8, {kx}
s_addc_u32 s21, s9, 0
s_add_u32 s20, s20, s40
s_addc_u32 s21, s21, 0
s_add_u32 s22, s8, {vx}
s_addc_u32 s23, s9, 0
s_add_u32 s22, s22, s40
s_addc_u32 s23, s23, 0
s_lshl_b32 s40, s5, 11
s_add_u32 s24, s8, {km}
s_addc_u32 s25, s9, 0
s_add_u32 s24, s24, s40
s_addc_u32 s25, s25, 0
s_add_u32 s26, s8, {vm}
s_addc_u32 s27, s9, 0
s_add_u32 s26, s26, s40
s_addc_u32 s27, s27, 0
s_mov_b32 s28, 0
s_mov_b32 s29, 0
s_mov_b32 s30, 0               ; expected tag of the M image (previous step)
s_mov_b32 s31, 0               ; tag check enable
s_mov_b32 s32, {c}
s_mov_b32 s33, {c}
s_mov_b32 s34, -1
s_mov_b32 s35, 0
s_mov_b32 s36, 0
s_mov_b32 s37, -1
s_mov_b32 s38, 0x000f000f
s_mov_b32 s39, 0x000f000f
s_add_u32 s46, s16, 0x8000     ; second A-store base
s_addc_u32 s47, s17, 0
s_mov_b64 s[92:93], s[18:19]
s_mov_b32 s45, 0
s_lshl_b32 s40, s5, 7
s_add_u32 s40, s40, {prog}
s_sub_u32 s40, s40, s43
s_add_u32 s86, s8, s40
s_addc_u32 s87, s9, 0          ; PROG[h] - w*2048
s_sub_u32 s40, {flp}, s43
s_add_u32 s84, s8, s40
s_addc_u32 s85, s9, 0          ; FL_P - w*2048
'''.format(ha=WS_HOPA,hb=WS_HOPB,kx=WS_KX,vx=WS_VX,km=WS_KM,vm=WS_VM,c=f2u(c),prog=FL_PROG,flp=FL_P))
    if dbgfn:
        e('s_waitcnt vmcnt(0)'); dbgfn(2)
    for r in range(ACCQ,ACCQ+12): e('v_mov_b32 v%d, 0'%r)
    e('''
s_mov_b32 s44, 0
s_waitcnt vmcnt(0)
v_readfirstlane_b32 s40, v106
v_readfirstlane_b32 s41, v107
s_cmp_ge_u32 s40, 32
s_cselect_b32 s40, s41, 0
s_cmp_ge_u32 s40, {kvneed}
s_cbranch_scc1 L_c_kvok
L_c_waitready:
v_mov_b32 v64, {rdy}
global_load_dword v65, v64, s[10:11] sc1
s_waitcnt vmcnt(0)
v_readfirstlane_b32 s40, v65
s_cmp_ge_u32 s40, 32
s_cbranch_scc1 L_c_ready
s_add_u32 s44, s44, 1
s_cmp_gt_u32 s44, 200000
s_cbranch_scc1 L_c_done
s_sleep 4
s_branch L_c_waitready
L_c_ready:
'''.format(rdy=DBG_READY,kvneed=(128 if sync else 0x7fffffff)))
    if not sync: a.raw('s_branch L_c_kvok')
    if sync:
        e('''
L_c_waitkv:
v_mov_b32 v64, {f}
global_load_dword v65, v64, s[8:9] sc1
s_waitcnt vmcnt(0)
v_readfirstlane_b32 s40, v65
s_cmp_ge_u32 s40, 128
s_cbranch_scc1 L_c_kvok
s_add_u32 s44, s44, 1
s_cmp_gt_u32 s44, 200000
s_cbranch_scc1 L_c_done
s_sleep 4
s_branch L_c_waitkv
'''.format(f=FL_P))
    a.label('L_c_kvok')
    e('''
s_add_u32 m0, s43, {k0}
s_nop 0
global_load_lds_dwordx4 {gK}, s[20:21] sc1
global_load_lds_dwordx4 {gK}, s[20:21] offset:1024 sc1
s_add_u32 s20, s20, 0x40000
s_addc_u32 s21, s21, 0
v_mov_b32 v{kvf}, 128
s_mov_b64 s[12:13], s[100:101]
s_mov_b32 s14, 0x400000
'''.format(k0=L_K0,gK=v(gB0),kvf=KVF))
    for b_ in range(4):
        e('s_add_u32 s41, s4, %d\ns_and_b32 s41, s41, 3\ns_lshl_b32 s%d, s41, 15'%(b_,50+b_))
    for i in ASET[4:]:
        t,b_=SEQ[i]
        for hh in range(2):
            for mm in range(4):
                e('s_add_u32 s41, s%d, %d'%(50+b_,(16*hh+mm)*1024+t*64))
                e('buffer_load_dword a%d, v37, s[12:15], s41 offen'%(64+8*ASET.index(i)+4*hh+mm))
    e('s_waitcnt lgkmcnt(0)\ns_barrier')


def chain_loop(a, st, nsteps=64, ts=False, dA=0, dB=0, stub=0, dA2=0, dB2=0, cnt=False, sync=False, fp=48, fpB=40, nA=1, pA=120, nB=1, pB=120, trace=False, big=0, nbig=4, XB=0, sh=4, ob64=False, barpos=1, early=True, hafast=False, sA=0):
    e=a.e
    lg=Q(a,'lgkmcnt',15)
    tsn=[0]
    def TS(name=None):
        if not ts: return
        i=tsn[0]; tsn[0]+=1
        assert i<22
        e('s_memtime s[%d:%d]'%(50+2*i,51+2*i))
        a.tsnames.append(name)
    a.tsnames=[]
    def delay(n):
        for _ in range(n//4): e('v_mov_b32 v34, v35')
    if ts or cnt or trace: e('s_mov_b32 s48, 0\ns_mov_b32 s49, 0\ns_mov_b32 s94, 0')
    FRB=[KXR,QF,KF,AF]
    def fr(j): return FRB[j>>2]+4*(j&3)
    def rdF(j):
        e('ds_read_b128 %s, %s offset:%d'%(v(fr(j),4),v(aMb[j>>2]),L_M+(j&3)*512)); lg.issue(('A',j))
    SMF=lambda acc,A,B: e('v_smfmac_f32_16x16x64_bf16 %s, %s, %s, %s'%(v(acc,4),A,B,v(IDX)))
    for j in range(4): rdF(j)
    e('s_waitcnt lgkmcnt(0)')
    for j in (8,9,10):
        for hh in range(2): e('ds_read_b128 %s, %s offset:%d'%(v(RING[(j-8)%3]+4*hh,4),v(aWo),(j-8)*2048+hh*1024))
    e('s_waitcnt lgkmcnt(0)'); lg.reset()
    a.fence()
    a.label('L_c_step')
    TS('top')
    if trace:
        e('s_mov_b32 m0, s28\nv_writelane_b32 v7, s94, m0\nv_writelane_b32 v11, s48, m0\nv_writelane_b32 v15, s49, m0\ns_memtime s[94:95]')
    if stub:
        delay(stub)
        e('s_cmp_eq_u32 s28, %d\ns_cbranch_scc1 L_c_done'%(nsteps-1))
        e('s_mov_b32 s41, 0')
    def QKs(j):
        lg.wait(('A',j))
        SMF(ACCQ,v(fr(j),4),WQ(j))
    if stub:
        e('s_barrier'); e('s_branch L_c_stub')
    seq0=[(ACCQ,0,WQ),(ACCK,0,WK),(ACCQ,1,WQ),(ACCK,1,WK)]
    for i,(acc,j,W) in enumerate(seq0):
        if i==barpos:
            e('s_barrier')
            TS('bar')
            for jj in (4,5,6,7): rdF(jj)
        SMF(acc,v(fr(j),4),W(j))
    if barpos>=4:
        e('s_barrier')
        TS('bar')
        for jj in (4,5,6,7): rdF(jj)
    if sync:
        e('v_readfirstlane_b32 s40, v%d'%KVF)
    def rdW(j,hh):
        e('ds_read_b128 %s, %s offset:%d'%(v(RING[(j-8)%3]+4*hh,4),v(aWo),(j-8)*2048+hh*1024)); lg.issue(('Q',j,hh))
    QP=SX1; KP=SX1+2
    def Qs(j):
        lg.wait(('A',j))
        if j>=8: lg.wait(('Q',j,1))
        SMF(ACCQ,v(fr(j),4),WQ(j) if j<8 else v(RING[(j-8)%3],8))
        if j<6:
            rdF(4+2*j); rdF(5+2*j)
        if 8<=j<13: rdW(j+3,0); rdW(j+3,1)
    def Ks(j):
        SMF(ACCK,v(fr(j),4),WK(j))
        if j==2:
            e('s_and_b32 s41, s28, 1\ns_lshl_b32 s41, s41, 13\ns_sub_u32 s41, %d, s41\ns_add_u32 m0, s43, s41'%L_K1)
            if sync:
                e('s_cmp_ge_u32 s40, 128\ns_cbranch_scc0 L_c_kvspin')
                a.label('L_c_kvgo')
        if j==5: e('global_load_dwordx4 %s, %s, s[22:23] sc1'%(v(VX1,4),v(gV)))
        if j==6: e('global_load_dwordx4 %s, %s, s[22:23] offset:64 sc1'%(v(VX2,4),v(gV)))
        if j==7: e('global_load_lds_dwordx4 %s, s[20:21] sc1'%v(gB0))
        if j==8: e('global_load_lds_dwordx4 %s, s[20:21] offset:1024 sc1'%v(gB0))
        if j==9: e('s_add_u32 s20, s20, 0x40000\ns_addc_u32 s21, s21, 0')
        if j==10: e('s_add_u32 s22, s22, 0x40000\ns_addc_u32 s23, s23, 0')
        if sync and j==11:
            e('v_mov_b32 v%d, s28'%KVF)
            e('s_mov_b64 exec, 1\nglobal_store_dword %s, v%d, s[86:87] sc1'%(v(gB0),KVF))
            e('s_add_u32 s41, s28, 2\ns_lshr_b32 s41, s41, 2\ns_min_u32 s41, s41, 15\ns_lshl_b32 s41, s41, 7\ns_add_u32 s82, s84, s41\ns_addc_u32 s83, s85, 0')
            e('global_load_dword v%d, %s, s[82:83] sc1\ns_mov_b64 exec, -1'%(KVF,v(gB0)))
    for j in range(2,16):
        Qs(j); Ks(j)
    TS('QK')
    def Vs(j): SMF(ACCV,v(fr(j),4),WV(j))
    def rdQ1(base,off,ks,hh,tag):
        e('ds_read_b64_tr_b16 %s, %s offset:%d'%(v(base+4*ks+2*hh,2),v(aQr),off+ks*544+hh*16)); lg.issue((tag,ks,hh))
    def rdQ(base,off,ks,tag):
        rdQ1(base,off,ks,0,tag); rdQ1(base,off,ks,1,tag)
    kreg={0:KXR,4:KXR+4,1:KXR+8,5:KXR+12,2:AF,6:AF+4,3:AF+8,7:AF+12}
    def rdK(f):
        e('ds_read_b128 %s, %s offset:%d'%(v(kreg[f],4),v(aKr),f*1024)); lg.issue(('K',f))
    def Sx(f,first):
        ks=f&3; tau=f>>2
        lg.wait(('K',f)); lg.wait(('q',ks,1))
        acc=SX0 if tau==0 else SX1
        e('v_mfma_f32_16x16x32_bf16 %s, %s, %s, %s'%(v(acc,4),v(kreg[f],4),v(QF+4*ks,4),'0' if first else v(acc,4)))
    def Sm(ks):
        lg.wait(('k',ks,1))
        e('v_mfma_f32_16x16x32_bf16 %s, %s, %s, %s'%(v(SM,4),v(KF+4*ks,4),v(QF+4*ks,4),'0' if ks==0 else v(SM,4)))
    Vs(0)
    e('v_cvt_pk_bf16_f32 %s, %s, %s'%(v(QP),v(ACCQ),v(ACCQ+1)))
    e('v_cvt_pk_bf16_f32 %s, %s, %s'%(v(QP+1),v(ACCQ+2),v(ACCQ+3)))
    e('ds_write_b64 %s, %s'%(v(aQw),v(QP,2))); lg.issue('qw')
    Vs(1)
    e('v_cvt_pk_bf16_f32 %s, %s, %s'%(v(KP),v(ACCK),v(ACCK+1)))
    e('v_cvt_pk_bf16_f32 %s, %s, %s'%(v(KP+1),v(ACCK+2),v(ACCK+3)))
    e('ds_write_b64 %s, %s offset:2176'%(v(aQw),v(KP,2))); lg.issue('kw')
    Vs(2)
    e('global_store_dwordx2 %s, %s, s[24:25] sc1'%(v(gVM),v(KP,2)))
    Vs(3); rdK(0); rdK(4)
    Vs(4); rdK(1); rdK(5)
    Vs(5); Vs(6); Vs(7)
    lg.wait('kw')
    e('s_waitcnt vmcnt(%d)'%(32+(7 if sync else 5)))
    TS('prebar')
    e('s_barrier')
    rdQ(QF,0,0,'q')
    Vs(8); rdQ(QF,0,1,'q')
    Vs(9); rdQ(QF,0,2,'q')
    Vs(10); rdQ(QF,0,3,'q')
    Vs(11); rdQ(KF,2176,0,'k')
    Vs(12); rdQ(KF,2176,1,'k'); rdK(2)
    Vs(13); rdQ(KF,2176,2,'k'); rdK(6)
    Vs(14); rdQ(KF,2176,3,'k'); rdK(3)
    Vs(15); rdK(7)
    TS('preS')
    seq=SEQ
    bslot={}
    def rdB1(i,slot,hh):
        t,b=seq[i]; bslot[i]=slot
        e('ds_read_b128 %s, %s offset:%d'%(v(slot+4*hh,4),v(aWo),16384+LSET.index(i)*2048+hh*1024)); lg.issue(('W',i,hh))
    def rdB(i,slot): rdB1(i,slot,0); rdB1(i,slot,1)
    pre=[(0,KXR),(1,KXR+8),(2,KF),(3,KF+8),(4,AF),(5,AF+8)]+([(6,QF),(7,QF+8)] if 6 in LSET else [])
    pl=[]
    for i,sl in pre: pl+= [(i,sl,0),(i,sl,1)]
    def fill(n=1):
        for _ in range(n):
            if pl: rdB1(*pl.pop(0))
    M_=ACCQ; T_=ACCQ+1; NMC=ACCQ+2
    Sx(0,True); Sx(4,True); Sx(1,False); Sx(5,False)
    Sm(0); fill(2); Sm(1); fill(2); Sm(2); Sm(3)
    Sx(2,False); fill(2); Sx(6,False); fill(2)
    Sx(3,False)
    e('v_max3_f32 v%d, v%d, v%d, v%d'%(T_,SM,SM+1,SM+2))
    Sx(7,False)
    e('v_max_f32 v%d, v%d, v%d'%(T_,T_,SM+3))
    TS('VS')
    e('v_max3_f32 v%d, v%d, v%d, v%d'%(M_,SX0,SX0+1,SX0+2))
    e('v_max3_f32 v%d, v%d, v%d, v%d'%(T_,T_,SX0+3,M_))
    e('v_max3_f32 v%d, v%d, v%d, v%d'%(M_,SX1,SX1+1,SX1+2))
    e('v_max3_f32 v%d, v%d, v%d, v%d'%(M_,M_,SX1+3,T_))
    e('v_mov_b32 v%d, v%d'%(T_,M_))
    e('v_permlane32_swap_b32 v%d, v%d'%(M_,T_))
    e('v_max_f32 v%d, v%d, v%d'%(M_,M_,T_))
    e('v_mov_b32 v%d, v%d'%(T_,M_))
    e('v_permlane16_swap_b32 v%d, v%d'%(M_,T_))
    e('v_max_f32 v%d, v%d, v%d'%(M_,M_,T_))
    e('v_mul_f32 v%d, s32, v%d'%(NMC,M_))
    TS('max')
    pkf=lambda r: e('v_pk_fma_f32 v[%d:%d], v[%d:%d], s[32:33], v[%d:%d] op_sel_hi:[1,1,0] neg_lo:[0,0,1] neg_hi:[0,0,1]'%(r,r+1,r,r+1,NMC,NMC+1))
    for r in (SX0,SX0+2,SX1,SX1+2): pkf(r)
    for r in range(SX0,SX0+8): e('v_exp_f32 v%d, v%d'%(r,r))
    PX=ACCK
    pkf(SM); pkf(SM+2)
    e('v_cvt_pk_bf16_f32 v%d, v%d, v%d'%(PX,SX0,SX0+1))
    e('v_cvt_pk_bf16_f32 v%d, v%d, v%d'%(PX+1,SX0+2,SX0+3))
    e('v_cvt_pk_bf16_f32 v%d, v%d, v%d'%(PX+2,SX1,SX1+1))
    e('v_cvt_pk_bf16_f32 v%d, v%d, v%d'%(PX+3,SX1+2,SX1+3))
    TS('expx')
    e('s_waitcnt vmcnt(%d)'%(5 if sync else 3))
    T1=SX0; T2=SX1; L_=VX2
    e('v_exp_f32 v%d, v%d'%(SM,SM))
    e('v_mfma_f32_16x16x32_bf16 %s, %s, %s, 0'%(v(T2,4),v(VX2,4),v(PX,4)))
    fill()
    e('v_exp_f32 v%d, v%d'%(SM+1,SM+1))
    e('v_mfma_f32_16x16x32_bf16 %s, %s, %s, 0'%(v(T1,4),v(VX1,4),v(PX,4)))
    fill()
    e('v_exp_f32 v%d, v%d'%(SM+2,SM+2))
    e('v_mfma_f32_16x16x32_bf16 %s, %s, %s, 0'%(v(L_,4),v(ONES,4),v(PX,4)))
    fill()
    e('v_exp_f32 v%d, v%d'%(SM+3,SM+3))
    VP=ACCV
    e('v_cvt_pk_bf16_f32 v%d, v%d, v%d'%(VP,ACCV,ACCV+1))
    PM1=ACCQ; PM2=ACCQ+2
    e('v_cvt_pk_bf16_f32 v%d, v%d, v%d'%(PM2,SM,SM+1))
    e('v_cvt_pk_bf16_f32 v%d, v%d, v%d'%(PM2+1,SM+2,SM+3))
    e('v_cvt_pk_bf16_f32 v%d, v%d, v%d'%(VP+1,ACCV+2,ACCV+3))
    e('v_cndmask_b32 v%d, 0, v%d, s[34:35]'%(PM1,PM2))
    e('v_cndmask_b32 v%d, 0, v%d, s[34:35]'%(PM1+1,PM2+1))
    e('v_mfma_f32_16x16x16_bf16 %s, %s, %s, %s'%(v(L_,4),v(ONES,2),v(PM1,2),v(L_,4)))
    e('v_cndmask_b32 v%d, 0, v%d, s[36:37]'%(PM2,PM2))
    e('v_cndmask_b32 v%d, 0, v%d, s[36:37]'%(PM2+1,PM2+1))
    e('v_mfma_f32_16x16x16_bf16 %s, %s, %s, %s'%(v(T1,4),v(VP,2),v(PM1,2),v(T1,4)))
    fill(1)
    WA=[ACCQ,ACCK,ACCV,VX1]
    e('v_mfma_f32_16x16x16_bf16 %s, %s, %s, %s'%(v(T2,4),v(VP,2),v(PM2,2),v(T2,4)))
    fill(1)
    e('global_store_dwordx2 %s, %s, s[26:27] sc1'%(v(gVM),v(VP,2)))
    e('v_mov_b64 v[%d:%d], 0\nv_mov_b64 v[%d:%d], 0'%(WA[1],WA[1]+1,WA[1]+2,WA[1]+3))
    TS('pv')
    e('s_cmp_eq_u32 s28, %d\ns_cbranch_scc1 L_c_done'%(nsteps-1))
    fill(16)
    for t in (3,0):
        e('v_mov_b64 v[%d:%d], 0\nv_mov_b64 v[%d:%d], 0'%(WA[t],WA[t]+1,WA[t]+2,WA[t]+3))
    e('v_rcp_f32 v%d, v%d'%(L_,L_))
    e('v_mov_b64 v[%d:%d], 0\nv_mov_b64 v[%d:%d], 0'%(WA[2],WA[2]+1,WA[2]+2,WA[2]+3))
    for r in (T1,T1+2,T2,T2+2):
        e('v_pk_mul_f32 v[%d:%d], v[%d:%d], v[%d:%d] op_sel_hi:[1,0]'%(r,r+1,r,r+1,L_,L_+1))
    O4=SM
    for r in range(4):
        e('v_cvt_pk_bf16_f32 v%d, v%d, v%d'%(O4+r,T1+r,T2+r))
    if ob64:
        e('v_cndmask_b32 v%d, v%d, v%d, s[80:81]'%(T1,O4,O4+2))
        e('v_cndmask_b32 v%d, v%d, v%d, s[80:81]'%(T1+1,O4+1,O4+3))
        e('ds_write_b64 v%d, %s offset:%d'%(16+0, v(T1,2), L_M)) if False else None
        e('v_add_u32 v%d, %s, v%d'%(T1+2,v(aMb[0]),T1+3)) if False else None
        e('ds_write_b64 %s, %s offset:%d'%(v(aOw8),v(T1,2),L_M)); lg.issue('ow')
    else:
        e('ds_write_b128 %s, %s offset:%d'%(v(aMb[0]),v(O4,4),L_M)); lg.issue('ow')
    TS('SMX')
    def Wm(i,areg):
        t,b=seq[i]
        if i in LSET:
            lg.wait(('W',i,1))
            SMF(WA[t],v(areg,4),v(bslot[i],8))
        else: SMF(WA[t],v(areg,4),WOR(i))
    Wm(0,O4); Wm(1,O4); Wm(2,O4)
    lg.wait('ow')
    TS('ow')
    e('s_barrier')
    OF={1:SX0,2:SX1,3:OF3}
    for b in (1,2,3):
        e('ds_read_b128 %s, %s offset:%d'%(v(OF[b],4),v(aMb[b]),L_M)); lg.issue(('o',b))
    Wm(3,O4)
    if 14 in LSET: rdB(14,QF); rdB(15,QF+8)
    G0=KXR; G1=KXR+4
    for i in range(4,16):
        t,b=seq[i]
        lg.wait(('o',b))
        Wm(i,OF[b])
        if early:
            if i==10:
                e('v_cvt_pk_bf16_f32 v%d, v%d, v%d'%(G0,WA[0],WA[0]+1))
                e('v_cvt_pk_bf16_f32 v%d, v%d, v%d'%(G0+1,WA[0]+2,WA[0]+3))
            if i==11:
                e('v_cvt_pk_bf16_f32 v%d, v%d, v%d'%(G0+2,WA[1],WA[1]+1))
                e('v_cvt_pk_bf16_f32 v%d, v%d, v%d'%(G0+3,WA[1]+2,WA[1]+3))
                e('v_and_or_b32 v%d, v%d, -2, s29'%(G0,G0))
                e('global_store_dwordx4 %s, %s, s[16:17]%s'%(v(gA0),v(G0,4),st))
            continue
        if i==11:
            e('v_cvt_pk_bf16_f32 v%d, v%d, v%d'%(G0,WA[0],WA[0]+1))
        if i==12:
            e('v_cvt_pk_bf16_f32 v%d, v%d, v%d'%(G0+1,WA[0]+2,WA[0]+3))
        if i==13:
            e('v_cvt_pk_bf16_f32 v%d, v%d, v%d'%(G0+2,WA[1],WA[1]+1))
            e('v_cvt_pk_bf16_f32 v%d, v%d, v%d'%(G0+3,WA[1]+2,WA[1]+3))
        if i==14:
            e('v_and_or_b32 v%d, v%d, -2, s29'%(G0,G0))
            e('global_store_dwordx4 %s, %s, s[16:17]%s'%(v(gA0),v(G0,4),st))
    a.label('L_c_stub')
    if stub:
        e('v_and_or_b32 v%d, v%d, -2, s29'%(G0,G0))
        e('global_store_dwordx4 %s, %s, s[16:17]%s'%(v(gA0),v(G0,4),st))
        delay(64)
    e('v_cvt_pk_bf16_f32 v%d, v%d, v%d'%(G1,WA[2],WA[2]+1))
    e('v_cvt_pk_bf16_f32 v%d, v%d, v%d'%(G1+1,WA[2]+2,WA[2]+3))
    e('v_cvt_pk_bf16_f32 v%d, v%d, v%d'%(G1+2,WA[3],WA[3]+1))
    e('v_cvt_pk_bf16_f32 v%d, v%d, v%d'%(G1+3,WA[3]+2,WA[3]+3))
    e('v_and_or_b32 v%d, v%d, -2, s29'%(G1,G1))
    e('global_store_dwordx4 %s, %s, s[46:47]%s'%(v(gA0),v(G1,4),st))
    TS('WO')
    if XB: e('s_memtime s[90:91]')
    for r in range(ACCQ,ACCQ+12,2): e('v_mov_b64 v[%d:%d], 0'%(r,r+1))
    e('v_mov_b64 v[24:25], 0\nv_mov_b64 v[26:27], 0\nv_mov_b64 v[28:29], 0\nv_mov_b32 v30, 0\nv_mov_b32 v31, -1')
    for k,(reg,val) in enumerate(((26,'0x3f80'),(26,'0x3f800000'),(27,'0x3f80'),(27,'0x3f800000'))):
        m='0x%x'%(0x11111111<<k)
        e('s_mov_b32 exec_lo, %s\ns_mov_b32 exec_hi, %s\nv_mov_b32 v%d, %s'%(m,m,reg,val))
    e('s_mov_b32 exec_lo, 0xffff\ns_mov_b32 exec_hi, 0\nv_mov_b32 v31, -2\nv_mov_b32 v30, s29\ns_mov_b64 exec, -1')
    e('s_mov_b32 m0, s43')
    if sA:
        e('s_bitcmp1_b32 s5, 2\ns_cbranch_scc0 L_c_skipdA')
        delay(sA)
        a.label('L_c_skipdA')
    delay(max(0,dA-100-sA))
    def xdelay(tag):
        if not big: return
        e('s_cmp_lt_u32 s28, %d\ns_cbranch_scc0 L_c_nox%s'%(nbig,tag))
        delay(big)
        a.label('L_c_nox%s'%tag)
    xdelay('A')
    R0=AF; R1=AF+4; DA=AF+8; DB=AF+12; S0=QF; S1=QF+4
    def ldA(r0,r1):
        e('global_load_dwordx4 %s, %s, s[16:17] sc1'%(v(r0,4),v(gAr)))
        e('global_load_dwordx4 %s, %s, s[16:17] offset:1024 sc1'%(v(r1,4),v(gAr)))
    def redA(r0,r1,n0,n1,ok):
        e('s_waitcnt vmcnt(%d)'%n0)
        e('v_mfma_f32_16x16x32_bf16 %s, %s, %s, 0'%(v(DA,4),v(r0,4),v(BSEL+2,4)))
        e('v_mfma_f32_16x16x32_bf16 %s, %s, %s, 0'%(v(DB,4),v(r0,4),v(BSEL,4)))
        e('v_xor_b32 v80, s29, v%d'%r0)
        e('s_waitcnt vmcnt(%d)'%n1)
        e('v_mfma_f32_16x16x32_bf16 %s, %s, %s, %s'%(v(DA,4),v(r1,4),v(BSEL+2,4),v(DA,4)))
        e('v_mfma_f32_16x16x32_bf16 %s, %s, %s, %s'%(v(DB,4),v(r1,4),v(BSEL,4),v(DB,4)))
        e('v_bitop3_b32 v80, v80, v%d, s29 bitop3:0xf6'%r1)
        e('v_and_b32 v80, 1, v80')
        e('v_cmp_ne_u32 vcc, 0, v80')
        if ts or cnt or trace: e('s_add_u32 s48, s48, 1')
        e('s_cbranch_vccz %s'%ok)
    pre=[(R0,R1),(QF,QF+4),(QF+8,QF+12)][:nA]
    for i,(r0,r1) in enumerate(pre):
        ldA(r0,r1)
        if i+1<len(pre): delay(pA)
    for i,(r0,r1) in enumerate(pre):
        rem=2*(len(pre)-1-i)
        redA(r0,r1,rem+1,rem,'L_c_okA')
        a.fence()
    a.label('L_c_pollA')
    ldA(R0,R1)
    redA(R0,R1,1,0,'L_c_okA')
    e('s_add_u32 s44, s44, 1\ns_cmp_gt_u32 s44, 200000\ns_cbranch_scc1 L_c_done\ns_branch L_c_pollA')
    a.label('L_c_okA')
    TS('pollA')
    if XB: e('s_memtime s[88:89]')
    e('s_nop 3')
    e('v_pk_add_f32 v[%d:%d], v[%d:%d], v[%d:%d]'%(DA,DA+1,DA,DA+1,DA+2,DA+3))
    e('v_pk_add_f32 v[%d:%d], v[%d:%d], v[%d:%d]'%(DB,DB+1,DB,DB+1,DB+2,DB+3))
    e('v_add_f32 v%d, v%d, v%d'%(DA,DA,DA+1))
    e('v_add_f32 v%d, v%d, v%d'%(DB,DB,DB+1))
    e('v_cvt_pk_bf16_f32 v%d, v%d, v%d'%(DA,DA,DB))
    e('v_and_or_b32 v%d, v%d, v%d, v%d'%(DA,DA,MASKB,TAGB))
    e('s_mov_b64 exec, s[38:39]')
    e('global_store_dword %s, v%d, s[18:19]%s'%(v(gBw),DA,st))
    e('s_mov_b64 exec, -1')
    TS('HA')
    lg.reset()
    for j in (8,9,10):
        for hh in range(2): e('ds_read_b128 %s, %s offset:%d'%(v(RING[(j-8)%3]+4*hh,4),v(aWo),(j-8)*2048+hh*1024))
    e('''s_mov_b64 s[92:93], s[18:19]
s_mov_b32 s30, s29
s_mov_b32 s31, 1
s_add_u32 s28, s28, 1
s_and_b32 s40, s28, 1
s_lshl_b32 s41, s40, 18
s_add_u32 s16, s8, s41
s_addc_u32 s17, s9, 0
s_add_u32 s46, s16, 0x8000
s_addc_u32 s47, s17, 0
s_lshl_b32 s41, s40, 13
s_add_u32 s41, s41, %d
s_add_u32 s18, s8, s41
s_addc_u32 s19, s9, 0
s_lshr_b32 s29, s28, 1
s_and_b32 s29, s29, 1
s_add_u32 s24, s24, 0x10000
s_addc_u32 s25, s25, 0
s_add_u32 s26, s26, 0x10000
s_addc_u32 s27, s27, 0
v_xor_b32 %s, 0x6000, %s'''%(WS_HOPB,v(aKr),v(aKr)))
    if XB:
        e('s_waitcnt lgkmcnt(0)\ns_sub_u32 s40, s88, s90\ns_sub_u32 s40, %d, s40\ns_cbranch_scc1 L_c_nodB\ns_mul_i32 s40, s40, 37\ns_lshr_b32 s40, s40, 10'%(XB))
        a.label('L_c_dBl')
        e('s_sub_u32 s40, s40, 1\ns_cbranch_scc0 L_c_dBl')
        a.label('L_c_nodB')
    else:
        delay(max(0,dB-80))
    xdelay('B')
    def dmaB():
        e('global_load_lds_dwordx4 %s, s[92:93] sc1'%v(gB0))
        e('global_load_lds_dwordx4 %s, s[92:93] offset:1024 sc1'%v(gB0))
    CK=VX1
    dmaB()
    delay(pB)
    dmaB()
    a.label('L_c_loopB')
    e('s_waitcnt vmcnt(2)')
    lg.reset()
    for j in range(4): rdF(j)
    lg.wait(('A',0))
    e('v_xor_b32 v%d, s30, v%d'%(CK,fr(0)))
    lg.wait(('A',1))
    e('v_bitop3_b32 v%d, v%d, v%d, s30 bitop3:0xf6'%(CK,CK,fr(1)))
    lg.wait(('A',2))
    e('v_bitop3_b32 v%d, v%d, v%d, s30 bitop3:0xf6'%(CK,CK,fr(2)))
    lg.wait(('A',3))
    e('v_bitop3_b32 v%d, v%d, v%d, s30 bitop3:0xf6'%(CK,CK,fr(3)))
    e('v_and_b32 v%d, 1, v%d'%(CK,CK))
    e('v_cmp_ne_u32 vcc, 0, v%d'%CK)
    if ts or cnt or trace: e('s_add_u32 s49, s49, 1')
    e('s_cbranch_vccz L_c_okB')
    dmaB()
    e('s_add_u32 s44, s44, 1\ns_cmp_gt_u32 s44, 200000\ns_cbranch_scc1 L_c_done\ns_branch L_c_loopB')
    a.label('L_c_okB')
    TS('pollB')
    if ts:
        e('s_and_b32 s40, s28, 7\ns_cmp_eq_u32 s40, 5\ns_cbranch_scc0 L_c_nodump')
        e('s_waitcnt lgkmcnt(0)')
        e('s_lshl_b32 s40, s5, 6\ns_add_u32 s40, s40, s28\ns_lshl_b32 s40, s40, 2\ns_add_u32 s40, s40, s4\ns_lshl_b32 s40, s40, 7\ns_add_u32 s40, s40, %d'%(WS_O))
        e('v_mov_b32 v34, s40\ns_mov_b64 exec, 1')
        n=tsn[0]
        for i in range(n):
            e('v_mov_b32 v35, s%d'%(50+2*i)); e('global_store_dword v34, v35, s[8:9] offset:%d'%(4*i))
        e('v_mov_b32 v35, s48\nglobal_store_dword v34, v35, s[8:9] offset:120\nv_mov_b32 v35, s49\nglobal_store_dword v34, v35, s[8:9] offset:124')
        e('s_mov_b64 exec, -1')
        a.label('L_c_nodump')
    a.fence()
    e('s_branch L_c_step')
    if sync:
        a.label('L_c_kvspin'); a.hist=[]
        e('s_add_u32 s41, s28, 1\ns_lshr_b32 s41, s41, 2\ns_min_u32 s41, s41, 15\ns_lshl_b32 s41, s41, 7\ns_add_u32 s82, s84, s41\ns_addc_u32 s83, s85, 0')
        e('s_mov_b64 exec, 1\nglobal_load_dword v%d, %s, s[82:83] sc1\ns_mov_b64 exec, -1\ns_waitcnt vmcnt(0)\nv_readfirstlane_b32 s40, v%d'%(KVF,v(gB0),KVF))
        e('s_add_u32 s44, s44, 1\ns_cmp_gt_u32 s44, 200000\ns_cbranch_scc1 L_c_done\ns_cmp_ge_u32 s40, 128\ns_cbranch_scc0 L_c_kvspin\ns_branch L_c_kvgo')
    a.label('L_c_done'); a.hist=[]
    e('s_waitcnt vmcnt(0)')
    if sync:
        e('s_barrier')
        e('s_lshl_b32 s41, s5, 7\ns_add_u32 s41, s41, %d\nv_mov_b32 v34, s41\nv_mov_b32 v35, 64'%FL_PROG)
        e('s_mov_b64 exec, 1\nglobal_store_dword v34, v35, s[8:9] sc1\ns_mov_b64 exec, -1\ns_waitcnt vmcnt(0)')
    if trace:
        e('s_lshl_b32 s40, s5, 2\ns_add_u32 s40, s40, s4\ns_mul_i32 s40, s40, 768\ns_add_u32 s40, s40, %d'%(WS_O))
        e('v_mbcnt_lo_u32_b32 v64, -1, 0\nv_mbcnt_hi_u32_b32 v64, -1, v64\nv_lshlrev_b32 v64, 2, v64\nv_add_u32 v64, s40, v64')
        e('global_store_dword v64, v7, s[8:9]\nglobal_store_dword v64, v11, s[8:9] offset:256\nglobal_store_dword v64, v15, s[8:9] offset:512\ns_waitcnt vmcnt(0)')
    if cnt:
        e('s_lshl_b32 s40, s5, 2\ns_add_u32 s40, s40, s4\ns_lshl_b32 s40, s40, 3\ns_add_u32 s40, s40, %d'%(WS_G))
        e('v_mov_b32 v64, s40\nv_mov_b32 v66, s48\nv_mov_b32 v67, s49\ns_mov_b64 exec, 1\nglobal_store_dwordx2 v64, v[66:67], s[8:9]\ns_mov_b64 exec, -1\ns_waitcnt vmcnt(0)')
```

```python
from asmgen import Asm
from layout import *
import struct, math

L_M=0; L_K0=8192; L_K1=16384; L_Q=24576; L_KT=L_Q+2176; L_TMP=30976; L_WO=32768

class Q:
    def __init__(s, asm, name, maxv): s.a=asm; s.name=name; s.q=[]; s.maxv=maxv
    def issue(s, tag): s.q.append(tag)
    def wait(s, tag):
        if tag not in s.q: return
        i=s.q.index(tag); n=len(s.q)-1-i
        n=min(n,s.maxv)
        s.a.e('s_waitcnt %s(%d)'%(s.name,n)); s.q=s.q[len(s.q)-n:] if n>0 else []
    def waitall(s):
        s.a.e('s_waitcnt %s(0)'%s.name); s.q=[]
    def reset(s): s.q=[]

def f2u(x): return struct.unpack('<I',struct.pack('<f',x))[0]

def rowconst(kb,m):
    rho=2*kb+(m>>2); u=rho&3
    return 128*(rho>>3)+64*((rho>>2)&1)+32*(m&1)+16*(u&1)+(u>>1)+2*((m&3)>>1)
for kb in range(16):
    for m in range(8):
        for gb in range(4):
            assert pi_pos(32*kb+16*(m>>2)+4*gb+(m&3))==rowconst(kb,m)+4*gb
def rowrest(j,m): return rowconst(j&3,m)
for w in range(4):
    for j in range(16):
        for m in range(8):
            assert rowconst((4*w+j)&15,m)==128*((w+(j>>2))&3)+rowrest(j,m)

def v(a,n=1): return 'v%d'%a if n==1 else 'v[%d:%d]'%(a,a+n-1)
def ag(a,n=1): return 'a%d'%a if n==1 else 'a[%d:%d]'%(a,a+n-1)

aMb=[3,0,1,9]
IDX=2; aWo=4; aQw=5; aQr=6; aKr=8
gA0=10; gAr=12; gBw=13; gB0=14; gV=7; KVF=11; gVM=15
ONES=20; BSEL=24; TAGB=30; MASKB=31
VX1=32; AF=36; ACCQ=52; ACCK=56; ACCV=60; QF=64; KF=80; KXR=96; SX0=112; SX1=116; SM=120; VX2=16; OF3=124
RING=[120,24,112]
SEQ=[(0,0),(1,0),(2,0),(3,0),(0,1),(1,1),(0,2),(1,2),(0,3),(1,3),(2,1),(3,1),(2,2),(3,2),(2,3),(3,3)]
LSET=[0,1,2,3,4,5,14,15]
ASET=[i for i in range(16) if i not in LSET]
def set_lset(l):
    LSET[:]=l; ASET[:]=[i for i in range(16) if i not in l]
WOR=lambda i: ag(64+8*ASET.index(i),8)
WQ=lambda j: ag(8*j,8)
WK=lambda j: ag(128+8*j,8)
WV=lambda j: v(128+8*j,8)

def chain_setup(a, st, sync=False, dbgfn=None):
    e=a.e
    e('''
v_and_b32 v1, 63, v0
v_and_b32 v32, 15, v1          ; j / n / i
v_lshrrev_b32 v33, 4, v1       ; g
v_bfe_u32 v34, v1, 4, 1        ; rh
v_lshrrev_b32 v35, 5, v1       ; half
v_lshlrev_b32 v36, 4, v0       ; tid*16
s_lshl_b32 s40, s5, 13
v_add_u32 v37, s40, v36
v_mov_b32 v40, -1
v_mov_b32 v41, -1
v_mov_b32 v42, -1
v_mov_b32 v43, -1
v_add_u32 v38, 0x1000, v37
v_add_u32 v39, 0x40000, v37
v_add_u32 v44, 0x41000, v37
global_store_dwordx4 v37, v[40:43], s[8:9]{st}
global_store_dwordx4 v38, v[40:43], s[8:9]{st}
global_store_dwordx4 v39, v[40:43], s[8:9]{st}
global_store_dwordx4 v44, v[40:43], s[8:9]{st}
s_lshl_b32 s40, s5, 8
s_add_u32 s40, s40, {hb}
v_lshlrev_b32 v45, 2, v1
v_add_u32 v45, s40, v45
v_add_u32 v46, 0x2000, v45
global_store_dword v45, v40, s[8:9]{st}
global_store_dword v46, v40, s[8:9]{st}
; zero the flags area: 1 KB per chain WG (256 threads x 4 B)
s_lshl_b32 s40, s5, 10
s_add_u32 s40, s40, {fl}
v_lshlrev_b32 v45, 2, v0
v_add_u32 v45, s40, v45
v_mov_b32 v46, 0
global_store_dword v45, v46, s[8:9] sc1
'''.format(st=st,hb=WS_HOPB,fl=WS_FLAGS))
    e('s_load_dwordx2 s[88:89], s[0:1], %d'%KA_MEM0)
    e('''
v_and_b32 v64, 7, v0           ; row
v_lshrrev_b32 v65, 3, v0       ; q8 (0..31)
v_and_b32 v66, 1, v65          ; oct
v_lshrrev_b32 v67, 1, v65      ; rho (0..15)
v_lshrrev_b32 v68, 3, v67
v_lshlrev_b32 v68, 7, v68
v_bfe_u32 v69, v67, 2, 1
v_lshlrev_b32 v69, 6, v69
v_add_u32 v68, v68, v69
v_and_b32 v69, 1, v67
v_lshlrev_b32 v69, 4, v69
v_add_u32 v68, v68, v69
v_lshlrev_b32 v69, 3, v66
v_add_u32 v68, v68, v69
v_bfe_u32 v69, v67, 1, 1
v_add_u32 v68, v68, v69        ; D0
v_lshlrev_b32 v68, 1, v68
v_lshlrev_b32 v64, 10, v64
v_add_u32 v68, v68, v64
s_waitcnt lgkmcnt(0)
s_mov_b32 s90, 8192
s_mov_b32 s91, 0x00020000
''')
    for hlf in range(2):
        for n in range(8):
            e('buffer_load_ushort v%d, v68, s[88:91], 0 offen offset:%d'%(72+8*hlf+n, hlf*512+(32*(n&1)+2*(n>>1))*2))
    e('s_load_dwordx2 s[12:13], s[0:1], %d\ns_load_dwordx2 s[82:83], s[0:1], %d\ns_load_dwordx2 s[84:85], s[0:1], %d\ns_load_dwordx2 s[86:87], s[0:1], %d'%(KA_WO,KA_WQ,KA_WK,KA_WV))
    e('''
s_lshl_b32 s40, s5, 17         ; h*131072
s_lshl_b32 s41, s4, 8          ; 128*w*2
s_add_u32 s40, s40, s41
v_lshlrev_b32 v37, 2, v32      ; 4j
v_lshlrev_b32 v38, 12, v33     ; gb*4*1024
v_add3_u32 v37, v37, v38, s40
v_lshlrev_b32 {aWo}, 4, v1
s_lshl_b32 s41, s4, 15
s_add_u32 s41, s41, {lwo}
v_add_u32 {aWo}, s41, {aWo}
s_lshl_b32 s40, s5, 8          ; h*256
s_lshl_b32 s41, s4, 6          ; 64*w
s_add_u32 s40, s40, s41
v_lshlrev_b32 v36, 2, v32      ; 4j
v_lshlrev_b32 v38, 15, v33     ; gb*32768
v_add3_u32 v36, v36, v38, s40  ; voffset for Wq/Wk/Wv
s_waitcnt lgkmcnt(0)
s_mov_b32 s14, 0x400000
s_mov_b32 s15, 0x00020000
'''.format(aWo=v(aWo),lwo=L_WO))
    for b_ in range(4):
        e('s_add_u32 s41, s4, %d\ns_and_b32 s41, s41, 3\ns_lshl_b32 s%d, s41, 15'%(b_,44+b_))
    for jj in range(4):
        for m in range(8): e('s_mov_b32 s%d, %d'%(50+8*jj+m,rowrest(jj,m)*8192))
    st_list=[]
    nld=0
    e('s_mov_b64 s[100:101], s[12:13]')
    for i,(t,b_) in enumerate(SEQ):
        if i in ASET[4:]: continue
        for hh in range(2):
            for mm in range(4):
                e('s_add_u32 s41, s%d, %d'%(44+b_,(16*hh+mm)*1024+t*64))
                dst=('v%d'%(128+8*LSET.index(i)+4*hh+mm)) if i in LSET else ('a%d'%(64+8*ASET.index(i)+4*hh+mm))
                e('buffer_load_dword %s, v37, s[12:15], s41 offen'%dst)
                nld+=1
                if nld==40:
                    e('s_waitcnt vmcnt(40)')
                    for hlf in range(2):
                        for d in range(4):
                            e('v_lshl_or_b32 v%d, v%d, 16, v%d'%(96+4*hlf+d, 72+8*hlf+2*d+1, 72+8*hlf+2*d))
                    e('v_lshlrev_b32 v64, 4, v0\nv_add_u32 v65, 0x1000, v64\nds_write_b128 v64, v[96:99]\nds_write_b128 v65, v[100:103]')
                    e('''s_barrier
s_cmp_eq_u32 s4, 0
s_cbranch_scc0 L_c_noready
v_mov_b32 v38, {rdy}
v_mov_b32 v39, 1
s_mov_b64 exec, 1
global_atomic_add v38, v39, s[10:11] sc1
s_mov_b64 exec, -1
L_c_noready:'''.format(rdy=DBG_READY))
            if i in LSET: st_list.append((128+8*LSET.index(i)+4*hh,16384+LSET.index(i)*2048+hh*1024))
    for j in range(8,16):
        for hh in range(2): st_list.append((192+8*(j-8)+4*hh,(j-8)*2048+hh*1024))
    def dq(r,j,m): return ('a%d'%(8*j+m)) if j<8 else ('v%d'%(192+8*(j-8)+m))
    for w in range(4):
        if w>0: a.label('L_c_wl%d'%w)
        if w<3: e('s_cmp_eq_u32 s4, %d\ns_cbranch_scc0 L_c_wl%d'%(w,w+1))
        if w>0: e('s_nop 0')
        for mat in range(3):
            e('s_mov_b64 s[12:13], s[%d:%d]'%(82+2*mat,83+2*mat))
            n=0
            for kb in range(16):
                j=(kb-4*w)&15
                if kb>0 and kb%4==0: e('s_add_u32 s12, s12, 0x100000\ns_addc_u32 s13, s13, 0\ns_sub_u32 s14, s14, 0x100000')
                for m in range(8):
                    dst=dq(0,j,m) if mat==0 else ('a%d'%(128+8*j+m) if mat==1 else 'v%d'%(128+8*j+m))
                    e('buffer_load_dword %s, v36, s[12:15], s%d offen'%(dst,50+8*(kb&3)+m))
                    n+=1
                    if mat==1 and n%2==0 and n>64:
                        k=(n-66)//2
                        if n==66: e('s_waitcnt vmcnt(60)')
                        base,off=st_list[k]
                        e('ds_write_b128 %s, %s offset:%d'%(v(aWo),v(base,4),off))
            e('s_mov_b32 s14, 0x400000')
            if mat==1: e('s_waitcnt lgkmcnt(0)')
            if mat==2:
                e('v_mov_b32 v104, %d\nv_mov_b32 v105, %d\nglobal_load_dword v106, v104, s[10:11] sc1\nglobal_load_dword v107, v105, s[8:9] sc1'%(DBG_READY,FL_P))
        if w<3: e('s_branch L_c_wld')
    a.label('L_c_wld')
    if dbgfn: dbgfn(3)
    e('''
; gB0 = w*2048 + lane*16  (hop-B DMA offset, K DMA offset)
s_lshl_b32 s43, s4, 11
v_lshlrev_b32 v64, 4, v1
v_add_u32 {gB0}, s43, v64
; idx
v_mov_b32 {IDX}, 0x8888
v_mov_b32 v64, 0xdddd
v_cmp_le_u32 vcc, 8, v32
v_cndmask_b32 {IDX}, {IDX}, v64, vcc
; lanepart = g*128 + (i&7)*16
v_and_b32 v64, 7, v32
v_lshlrev_b32 v64, 4, v64
v_lshlrev_b32 v65, 7, v33
v_add_u32 v70, v64, v65
; aQw = L_Q + w*544 + half*272 + rh*128 + j*8
s_mul_i32 s40, s4, 544
s_add_u32 s40, s40, {lq}
v_mul_u32_u24 v64, 272, v35
v_lshlrev_b32 v65, 7, v34
v_lshlrev_b32 v66, 3, v32
v_add3_u32 v64, v64, v65, v66
v_add_u32 {aQw}, s40, v64
; aQr
v_bfe_u32 v64, v1, 2, 1
v_mul_u32_u24 v64, 272, v64
v_and_b32 v65, 1, v1
v_lshlrev_b32 v65, 7, v65
v_bfe_u32 v66, v1, 3, 1
v_lshl_add_u32 v66, v33, 2, v66
v_lshlrev_b32 v66, 3, v66
v_add3_u32 v64, v64, v65, v66
v_add_u32 {aQr}, {lq}, v64
; aKr = L_K0 + lane*16
v_lshlrev_b32 v64, 4, v1
v_add_u32 {aKr}, {lk0}, v64
; gA0 = (8w + 2*half + (j>>3))*8192 + (2rh+oct)*2048 + h*64 + (j&3)*16
v_lshrrev_b32 v64, 3, v32
v_lshl_add_u32 v64, v35, 1, v64
s_lshl_b32 s40, s4, 3
v_add_u32 v64, s40, v64
v_lshlrev_b32 v64, 13, v64
v_bfe_u32 v65, v32, 2, 1
v_lshl_add_u32 v65, v34, 1, v65
v_lshlrev_b32 v65, 11, v65
v_and_b32 v66, 3, v32
v_lshlrev_b32 v66, 4, v66
v_add3_u32 v64, v64, v65, v66
s_lshl_b32 s40, s5, 6
v_add_u32 {gA0}, s40, v64
; gAr = h*8192 + w*2048 + g*256 + (i&3)*64 + (i>>2)*16
v_lshlrev_b32 v64, 8, v33
v_and_b32 v65, 3, v32
v_lshlrev_b32 v65, 6, v65
v_lshrrev_b32 v66, 2, v32
v_lshlrev_b32 v66, 4, v66
v_add3_u32 v64, v64, v65, v66
s_lshl_b32 s40, s5, 13
s_add_u32 s40, s40, s43
v_add_u32 {gAr}, s40, v64
; gBw = h*256 + (w&1)*128 + (w>>1)*64 + n*16 + g*4
s_lshl_b32 s40, s5, 8
s_and_b32 s41, s4, 1
s_lshl_b32 s41, s41, 7
s_add_u32 s40, s40, s41
s_lshr_b32 s41, s4, 1
s_lshl_b32 s41, s41, 6
s_add_u32 s40, s40, s41
v_lshlrev_b32 v64, 4, v32
v_lshl_add_u32 v64, v33, 2, v64
v_add_u32 {gBw}, s40, v64
; gV = w*2048 + j*128 + g*16
v_lshlrev_b32 v64, 7, v32
v_lshl_add_u32 v64, v33, 4, v64
v_add_u32 {gV}, s43, v64
; gVM = w*512 + lane*8
s_lshl_b32 s40, s4, 9
v_lshlrev_b32 v64, 3, v1
v_add_u32 {gVM}, s40, v64
v_mov_b32 v20, 0x3f803f80
v_mov_b32 v21, 0x3f803f80
v_mov_b32 v22, 0x3f803f80
v_mov_b32 v23, 0x3f803f80
v_mov_b32 v24, 0
v_mov_b32 v25, 0
v_mov_b32 v28, 0
v_mov_b32 v29, 0
v_and_b32 v64, 3, v32
v_mov_b32 v65, 0x3f80
v_mov_b32 v66, 0x3f800000
v_mov_b32 v26, 0
v_mov_b32 v27, 0
v_cmp_eq_u32 vcc, 0, v64
v_cndmask_b32 v26, v26, v65, vcc
v_cmp_eq_u32 vcc, 1, v64
v_cndmask_b32 v26, v26, v66, vcc
v_cmp_eq_u32 vcc, 2, v64
v_cndmask_b32 v27, v27, v65, vcc
v_cmp_eq_u32 vcc, 3, v64
v_cndmask_b32 v27, v27, v66, vcc
v_mov_b32 {MASKB}, -1
v_mov_b32 v64, -2
v_cmp_eq_u32 vcc, 0, v33
v_cndmask_b32 {MASKB}, {MASKB}, v64, vcc
'''.format(gB0=v(gB0),IDX=v(IDX),aQw=v(aQw),aQr=v(aQr),aKr=v(aKr),gA0=v(gA0),
           gAr=v(gAr),gBw=v(gBw),gV=v(gV),gVM=v(gVM),MASKB=v(MASKB),aWo=v(aWo),lq=L_Q,lk0=L_K0))
    for b in (3,2,1,0):
        e('s_add_u32 s40, s4, %d\ns_and_b32 s40, s40, 3\ns_lshl_b32 s40, s40, 11\nv_add_u32 %s, s40, v70'%(b,v(aMb[b])))
    c=(128**-0.5)*math.log2(math.e)
    e('''
s_add_u32 s16, s8, {ha}
s_addc_u32 s17, s9, 0
s_add_u32 s18, s8, {hb}
s_addc_u32 s19, s9, 0
s_lshl_b32 s40, s5, 13
s_add_u32 s20, s8, {kx}
s_addc_u32 s21, s9, 0
s_add_u32 s20, s20, s40
s_addc_u32 s21, s21, 0
s_add_u32 s22, s8, {vx}
s_addc_u32 s23, s9, 0
s_add_u32 s22, s22, s40
s_addc_u32 s23, s23, 0
s_lshl_b32 s40, s5, 11
s_add_u32 s24, s8, {km}
s_addc_u32 s25, s9, 0
s_add_u32 s24, s24, s40
s_addc_u32 s25, s25, 0
s_add_u32 s26, s8, {vm}
s_addc_u32 s27, s9, 0
s_add_u32 s26, s26, s40
s_addc_u32 s27, s27, 0
s_mov_b32 s28, 0
s_mov_b32 s29, 0
s_mov_b32 s30, 0               ; expected tag of the M image (previous step)
s_mov_b32 s31, 0               ; tag check enable
s_mov_b32 s32, {c}
s_mov_b32 s33, {c}
s_mov_b32 s34, -1
s_mov_b32 s35, 0
s_mov_b32 s36, 0
s_mov_b32 s37, -1
s_mov_b32 s38, 0x000f000f
s_mov_b32 s39, 0x000f000f
s_add_u32 s46, s16, 0x8000     ; second A-store base
s_addc_u32 s47, s17, 0
s_mov_b64 s[92:93], s[18:19]
s_mov_b32 s45, 0
s_lshl_b32 s40, s5, 7
s_add_u32 s40, s40, {prog}
s_sub_u32 s40, s40, s43
s_add_u32 s86, s8, s40
s_addc_u32 s87, s9, 0          ; PROG[h] - w*2048
s_sub_u32 s40, {flp}, s43
s_add_u32 s84, s8, s40
s_addc_u32 s85, s9, 0          ; FL_P - w*2048
'''.format(ha=WS_HOPA,hb=WS_HOPB,kx=WS_KX,vx=WS_VX,km=WS_KM,vm=WS_VM,c=f2u(c),prog=FL_PROG,flp=FL_P))
    if dbgfn:
        e('s_waitcnt vmcnt(0)'); dbgfn(2)
    for r in range(ACCQ,ACCQ+12): e('v_mov_b32 v%d, 0'%r)
    e('''
s_mov_b32 s44, 0
s_waitcnt vmcnt(0)
v_readfirstlane_b32 s40, v106
v_readfirstlane_b32 s41, v107
s_cmp_ge_u32 s40, 32
s_cselect_b32 s40, s41, 0
s_cmp_ge_u32 s40, {kvneed}
s_cbranch_scc1 L_c_kvok
L_c_waitready:
v_mov_b32 v64, {rdy}
global_load_dword v65, v64, s[10:11] sc1
s_waitcnt vmcnt(0)
v_readfirstlane_b32 s40, v65
s_cmp_ge_u32 s40, 32
s_cbranch_scc1 L_c_ready
s_add_u32 s44, s44, 1
s_cmp_gt_u32 s44, 200000
s_cbranch_scc1 L_c_done
s_sleep 4
s_branch L_c_waitready
L_c_ready:
'''.format(rdy=DBG_READY,kvneed=(128 if sync else 0x7fffffff)))
    if not sync: a.raw('s_branch L_c_kvok')
    if sync:
        e('''
L_c_waitkv:
v_mov_b32 v64, {f}
global_load_dword v65, v64, s[8:9] sc1
s_waitcnt vmcnt(0)
v_readfirstlane_b32 s40, v65
s_cmp_ge_u32 s40, 128
s_cbranch_scc1 L_c_kvok
s_add_u32 s44, s44, 1
s_cmp_gt_u32 s44, 200000
s_cbranch_scc1 L_c_done
s_sleep 4
s_branch L_c_waitkv
'''.format(f=FL_P))
    a.label('L_c_kvok')
    e('''
s_add_u32 m0, s43, {k0}
s_nop 0
global_load_lds_dwordx4 {gK}, s[20:21] sc1
global_load_lds_dwordx4 {gK}, s[20:21] offset:1024 sc1
s_add_u32 s20, s20, 0x40000
s_addc_u32 s21, s21, 0
v_mov_b32 v{kvf}, 128
s_mov_b64 s[12:13], s[100:101]
s_mov_b32 s14, 0x400000
'''.format(k0=L_K0,gK=v(gB0),kvf=KVF))
    for b_ in range(4):
        e('s_add_u32 s41, s4, %d\ns_and_b32 s41, s41, 3\ns_lshl_b32 s%d, s41, 15'%(b_,50+b_))
    for i in ASET[4:]:
        t,b_=SEQ[i]
        for hh in range(2):
            for mm in range(4):
                e('s_add_u32 s41, s%d, %d'%(50+b_,(16*hh+mm)*1024+t*64))
                e('buffer_load_dword a%d, v37, s[12:15], s41 offen'%(64+8*ASET.index(i)+4*hh+mm))
    e('s_waitcnt lgkmcnt(0)\ns_barrier')


def chain_loop(a, st, nsteps=64, ts=False, dA=0, dB=0, stub=0, dA2=0, dB2=0, cnt=False, sync=False, fp=48, fpB=40, nA=1, pA=120, nB=1, pB=120, trace=False, big=0, nbig=4, XB=0, sh=4, ob64=False, barpos=1, early=True, hafast=False, sA=0):
    e=a.e
    lg=Q(a,'lgkmcnt',15)
    tsn=[0]
    def TS(name=None):
        if not ts: return
        i=tsn[0]; tsn[0]+=1
        assert i<22
        e('s_memtime s[%d:%d]'%(50+2*i,51+2*i))
        a.tsnames.append(name)
    a.tsnames=[]
    def delay(n):
        for _ in range(n//4): e('v_mov_b32 v34, v35')
    if ts or cnt or trace: e('s_mov_b32 s48, 0\ns_mov_b32 s49, 0\ns_mov_b32 s94, 0')
    FRB=[KXR,QF,KF,AF]
    def fr(j): return FRB[j>>2]+4*(j&3)
    def rdF(j):
        e('ds_read_b128 %s, %s offset:%d'%(v(fr(j),4),v(aMb[j>>2]),L_M+(j&3)*512)); lg.issue(('A',j))
    SMF=lambda acc,A,B: e('v_smfmac_f32_16x16x64_bf16 %s, %s, %s, %s'%(v(acc,4),A,B,v(IDX)))
    for j in range(4): rdF(j)
    e('s_waitcnt lgkmcnt(0)')
    for j in (8,9,10):
        for hh in range(2): e('ds_read_b128 %s, %s offset:%d'%(v(RING[(j-8)%3]+4*hh,4),v(aWo),(j-8)*2048+hh*1024))
    e('s_waitcnt lgkmcnt(0)'); lg.reset()
    e('s_branch L_c_step')
    NST=12 if ts else 0
    tsn[0]=NST
    a.label('L_c_hops'); a.hist=[]
    for r in range(ACCQ,ACCQ+12,2): e('v_mov_b64 v[%d:%d], 0'%(r,r+1))
    e('v_mov_b64 v[24:25], 0\nv_mov_b64 v[26:27], 0\nv_mov_b64 v[28:29], 0')
    for k,(reg,val) in enumerate(((26,'0x3f80'),(26,'0x3f800000'),(27,'0x3f80'),(27,'0x3f800000'))):
        m='0x%x'%(0x11111111<<k)
        e('s_mov_b32 exec_lo, %s\ns_mov_b32 exec_hi, %s\nv_mov_b32 v%d, %s'%(m,m,reg,val))
    e('s_mov_b64 exec, -1')
    e('s_mov_b32 m0, s43')
    if sA:
        e('s_bitcmp1_b32 s5, 2\ns_cbranch_scc0 L_c_skipdA')
        delay(sA)
        a.label('L_c_skipdA')
    delay(max(0,dA-104-sA))
    def xdelay(tag):
        if not big: return
        e('s_cmp_lt_u32 s28, %d\ns_cbranch_scc0 L_c_nox%s'%(nbig,tag))
        delay(big)
        a.label('L_c_nox%s'%tag)
    xdelay('A')
    R0=AF; R1=AF+4; DA=AF+8; DB=AF+12; S0=QF; S1=QF+4
    def ldA(r0,r1):
        e('global_load_dwordx4 %s, %s, s[16:17] sc1'%(v(r0,4),v(gAr)))
        e('global_load_dwordx4 %s, %s, s[16:17] offset:1024 sc1'%(v(r1,4),v(gAr)))
    def redA(r0,r1,n0,n1,ok,inv=False):
        e('s_waitcnt vmcnt(%d)'%n0)
        e('v_mfma_f32_16x16x32_bf16 %s, %s, %s, 0'%(v(DA,4),v(r0,4),v(BSEL+2,4)))
        e('v_mfma_f32_16x16x32_bf16 %s, %s, %s, 0'%(v(DB,4),v(r0,4),v(BSEL,4)))
        e('v_xor_b32 v80, s29, v%d'%r0)
        e('v_bitop3_b32 v80, v80, v%d, s29 bitop3:0xf6'%(r0+3))
        e('s_waitcnt vmcnt(%d)'%n1)
        e('v_mfma_f32_16x16x32_bf16 %s, %s, %s, %s'%(v(DA,4),v(r1,4),v(BSEL+2,4),v(DA,4)))
        e('v_mfma_f32_16x16x32_bf16 %s, %s, %s, %s'%(v(DB,4),v(r1,4),v(BSEL,4),v(DB,4)))
        e('v_bitop3_b32 v80, v80, v%d, s29 bitop3:0xf6'%r1)
        e('v_bitop3_b32 v80, v80, v%d, s29 bitop3:0xf6'%(r1+3))
        e('v_and_b32 v80, 1, v80')
        e('v_cmp_ne_u32 vcc, 0, v80')
        if ts or cnt or trace: e('s_add_u32 s48, s48, 1')
        e(('s_cbranch_vccnz %s' if inv else 's_cbranch_vccz %s')%ok)
    preA=[(R0,R1),(QF,QF+4),(QF+8,QF+12)][:nA]
    for i,(r0,r1) in enumerate(preA):
        ldA(r0,r1)
        if i+1<len(preA): delay(pA)
    rem=2*(len(preA)-1)
    redA(R0,R1,rem+1,rem,'L_c_failA',inv=True)
    a.label('L_c_okA')
    TS('pollA')
    if XB: e('s_memtime s[88:89]')
    e('s_nop 2')
    e('v_pk_add_f32 v[%d:%d], v[%d:%d], v[%d:%d]'%(DA,DA+1,DA,DA+1,DA+2,DA+3))
    e('v_pk_add_f32 v[%d:%d], v[%d:%d], v[%d:%d]'%(DB,DB+1,DB,DB+1,DB+2,DB+3))
    e('v_add_f32 v%d, v%d, v%d'%(DA,DA,DA+1))
    e('v_add_f32 v%d, v%d, v%d'%(DB,DB,DB+1))
    e('v_cvt_pk_bf16_f32 v%d, v%d, v%d'%(DA,DA,DB))
    e('v_and_or_b32 v%d, v%d, -2, s29'%(DA,DA))
    e('s_mov_b64 exec, s[38:39]')
    e('global_store_dword %s, v%d, s[18:19]%s'%(v(gBw),DA,st))
    e('s_mov_b64 exec, -1')
    TS('HA')
    lg.reset()
    for j in (8,9,10):
        for hh in range(2): e('ds_read_b128 %s, %s offset:%d'%(v(RING[(j-8)%3]+4*hh,4),v(aWo),(j-8)*2048+hh*1024))
    e('''s_mov_b64 s[92:93], s[18:19]
s_mov_b32 s30, s29
s_mov_b32 s31, 1
s_add_u32 s28, s28, 1
s_and_b32 s40, s28, 1
s_lshl_b32 s41, s40, 18
s_add_u32 s16, s8, s41
s_addc_u32 s17, s9, 0
s_add_u32 s46, s16, 0x8000
s_addc_u32 s47, s17, 0
s_lshl_b32 s41, s40, 13
s_add_u32 s41, s41, %d
s_add_u32 s18, s8, s41
s_addc_u32 s19, s9, 0
s_lshr_b32 s29, s28, 1
s_and_b32 s29, s29, 1
s_add_u32 s24, s24, 0x10000
s_addc_u32 s25, s25, 0
s_add_u32 s26, s26, 0x10000
s_addc_u32 s27, s27, 0
v_xor_b32 %s, 0x6000, %s'''%(WS_HOPB,v(aKr),v(aKr)))
    if XB:
        e('s_waitcnt lgkmcnt(0)\ns_sub_u32 s40, s88, s90\ns_sub_u32 s40, %d, s40\ns_cbranch_scc1 L_c_nodB\ns_mul_i32 s40, s40, 37\ns_lshr_b32 s40, s40, 10'%(XB))
        a.label('L_c_dBl')
        e('s_sub_u32 s40, s40, 1\ns_cbranch_scc0 L_c_dBl')
        a.label('L_c_nodB')
    else:
        delay(max(0,dB-80))
    xdelay('B')
    def dmaB():
        e('global_load_lds_dwordx4 %s, s[92:93] sc1'%v(gB0))
        e('global_load_lds_dwordx4 %s, s[92:93] offset:1024 sc1'%v(gB0))
    CK=VX1
    dmaB()
    delay(pB)
    dmaB()
    a.label('L_c_loopB')
    e('s_waitcnt vmcnt(2)')
    lg.reset()
    for j in range(4): rdF(j)
    first=True
    for j in range(4):
        lg.wait(('A',j))
        for r in range(4):
            if first: e('v_xor_b32 v%d, s30, v%d'%(CK,fr(j)+r)); first=False
            else: e('v_bitop3_b32 v%d, v%d, v%d, s30 bitop3:0xf6'%(CK,CK,fr(j)+r))
    e('v_and_b32 v%d, 1, v%d'%(CK,CK))
    e('v_cmp_ne_u32 vcc, 0, v%d'%CK)
    if ts or cnt or trace: e('s_add_u32 s49, s49, 1')
    e('s_cbranch_vccnz L_c_failB')
    TS('pollB')
    if ts:
        e('s_and_b32 s40, s28, 7\ns_cmp_eq_u32 s40, 5\ns_cbranch_scc0 L_c_nodump')
        e('s_waitcnt lgkmcnt(0)')
        e('s_lshl_b32 s40, s5, 6\ns_add_u32 s40, s40, s28\ns_lshl_b32 s40, s40, 2\ns_add_u32 s40, s40, s4\ns_lshl_b32 s40, s40, 7\ns_add_u32 s40, s40, %d'%(WS_O))
        e('v_mov_b32 v34, s40\ns_mov_b64 exec, 1')
        n=tsn[0]
        for i in range(n):
            e('v_mov_b32 v35, s%d'%(50+2*i)); e('global_store_dword v34, v35, s[8:9] offset:%d'%(4*i))
        e('v_mov_b32 v35, s48\nglobal_store_dword v34, v35, s[8:9] offset:120\nv_mov_b32 v35, s49\nglobal_store_dword v34, v35, s[8:9] offset:124')
        e('s_mov_b64 exec, -1')
        a.label('L_c_nodump')
    a.fence()
    hop_names=list(a.tsnames); a.tsnames=[]; tsn[0]=0
    a.label('L_c_step')
    TS('top')
    if trace:
        e('s_mov_b32 m0, s28\nv_writelane_b32 v7, s94, m0\nv_writelane_b32 v11, s48, m0\nv_writelane_b32 v15, s49, m0\ns_memtime s[94:95]')
    if stub:
        delay(stub)
        e('s_cmp_eq_u32 s28, %d\ns_cbranch_scc1 L_c_done'%(nsteps-1))
        e('s_mov_b32 s41, 0')
    def QKs(j):
        lg.wait(('A',j))
        SMF(ACCQ,v(fr(j),4),WQ(j))
    if stub:
        e('s_barrier'); e('s_branch L_c_stub')
    seq0=[(ACCQ,0,WQ),(ACCK,0,WK),(ACCQ,1,WQ),(ACCK,1,WK)]
    for i,(acc,j,W) in enumerate(seq0):
        if i==barpos:
            e('s_barrier')
            TS('bar')
            for jj in (4,5,6,7): rdF(jj)
        SMF(acc,v(fr(j),4),W(j))
    if barpos>=4:
        e('s_barrier')
        TS('bar')
        for jj in (4,5,6,7): rdF(jj)
    if sync:
        e('v_readfirstlane_b32 s40, v%d'%KVF)
    def rdW(j,hh):
        e('ds_read_b128 %s, %s offset:%d'%(v(RING[(j-8)%3]+4*hh,4),v(aWo),(j-8)*2048+hh*1024)); lg.issue(('Q',j,hh))
    QP=SX1; KP=SX1+2
    def Qs(j):
        lg.wait(('A',j))
        if j>=8: lg.wait(('Q',j,1))
        SMF(ACCQ,v(fr(j),4),WQ(j) if j<8 else v(RING[(j-8)%3],8))
        if j<6:
            rdF(4+2*j); rdF(5+2*j)
        if 8<=j<13: rdW(j+3,0); rdW(j+3,1)
    def Ks(j):
        SMF(ACCK,v(fr(j),4),WK(j))
        if j==2:
            e('s_and_b32 s41, s28, 1\ns_lshl_b32 s41, s41, 13\ns_sub_u32 s41, %d, s41\ns_add_u32 m0, s43, s41'%L_K1)
            if sync:
                e('s_cmp_ge_u32 s40, 128\ns_cbranch_scc0 L_c_kvspin')
                a.label('L_c_kvgo')
        if j==5: e('global_load_dwordx4 %s, %s, s[22:23] sc1'%(v(VX1,4),v(gV)))
        if j==6: e('global_load_dwordx4 %s, %s, s[22:23] offset:64 sc1'%(v(VX2,4),v(gV)))
        if j==7: e('global_load_lds_dwordx4 %s, s[20:21] sc1'%v(gB0))
        if j==8: e('global_load_lds_dwordx4 %s, s[20:21] offset:1024 sc1'%v(gB0))
        if j==9: e('s_add_u32 s20, s20, 0x40000\ns_addc_u32 s21, s21, 0')
        if j==10: e('s_add_u32 s22, s22, 0x40000\ns_addc_u32 s23, s23, 0')
        if sync and j==11:
            e('v_mov_b32 v%d, s28'%KVF)
            e('s_mov_b64 exec, 1\nglobal_store_dword %s, v%d, s[86:87] sc1'%(v(gB0),KVF))
            e('s_add_u32 s41, s28, 2\ns_lshr_b32 s41, s41, 2\ns_min_u32 s41, s41, 15\ns_lshl_b32 s41, s41, 7\ns_add_u32 s82, s84, s41\ns_addc_u32 s83, s85, 0')
            e('global_load_dword v%d, %s, s[82:83] sc1\ns_mov_b64 exec, -1'%(KVF,v(gB0)))
    for j in range(2,16):
        Qs(j); Ks(j)
    TS('QK')
    def Vs(j): SMF(ACCV,v(fr(j),4),WV(j))
    def rdQ1(base,off,ks,hh,tag):
        e('ds_read_b64_tr_b16 %s, %s offset:%d'%(v(base+4*ks+2*hh,2),v(aQr),off+ks*544+hh*16)); lg.issue((tag,ks,hh))
    def rdQ(base,off,ks,tag):
        rdQ1(base,off,ks,0,tag); rdQ1(base,off,ks,1,tag)
    kreg={0:KXR,4:KXR+4,1:KXR+8,5:KXR+12,2:AF,6:AF+4,3:AF+8,7:AF+12}
    def rdK(f):
        e('ds_read_b128 %s, %s offset:%d'%(v(kreg[f],4),v(aKr),f*1024)); lg.issue(('K',f))
    def Sx(f,first):
        ks=f&3; tau=f>>2
        lg.wait(('K',f)); lg.wait(('q',ks,1))
        acc=SX0 if tau==0 else SX1
        e('v_mfma_f32_16x16x32_bf16 %s, %s, %s, %s'%(v(acc,4),v(kreg[f],4),v(QF+4*ks,4),'0' if first else v(acc,4)))
    def Sm(ks):
        lg.wait(('k',ks,1))
        e('v_mfma_f32_16x16x32_bf16 %s, %s, %s, %s'%(v(SM,4),v(KF+4*ks,4),v(QF+4*ks,4),'0' if ks==0 else v(SM,4)))
    Vs(0)
    e('v_cvt_pk_bf16_f32 %s, %s, %s'%(v(QP),v(ACCQ),v(ACCQ+1)))
    e('v_cvt_pk_bf16_f32 %s, %s, %s'%(v(QP+1),v(ACCQ+2),v(ACCQ+3)))
    e('ds_write_b64 %s, %s'%(v(aQw),v(QP,2))); lg.issue('qw')
    Vs(1)
    e('v_cvt_pk_bf16_f32 %s, %s, %s'%(v(KP),v(ACCK),v(ACCK+1)))
    e('v_cvt_pk_bf16_f32 %s, %s, %s'%(v(KP+1),v(ACCK+2),v(ACCK+3)))
    e('ds_write_b64 %s, %s offset:2176'%(v(aQw),v(KP,2))); lg.issue('kw')
    Vs(2)
    e('global_store_dwordx2 %s, %s, s[24:25] sc1'%(v(gVM),v(KP,2)))
    Vs(3); rdK(0); rdK(4)
    Vs(4); rdK(1); rdK(5)
    Vs(5); Vs(6); Vs(7)
    lg.wait('kw')
    e('s_waitcnt vmcnt(%d)'%(32+(7 if sync else 5)))
    TS('prebar')
    e('s_barrier')
    rdQ(QF,0,0,'q')
    Vs(8); rdQ(QF,0,1,'q')
    Vs(9); rdQ(QF,0,2,'q')
    Vs(10); rdQ(QF,0,3,'q')
    Vs(11); rdQ(KF,2176,0,'k')
    Vs(12); rdQ(KF,2176,1,'k'); rdK(2)
    Vs(13); rdQ(KF,2176,2,'k'); rdK(6)
    Vs(14); rdQ(KF,2176,3,'k'); rdK(3)
    Vs(15); rdK(7)
    TS('preS')
    seq=SEQ
    bslot={}
    def rdB1(i,slot,hh):
        t,b=seq[i]; bslot[i]=slot
        e('ds_read_b128 %s, %s offset:%d'%(v(slot+4*hh,4),v(aWo),16384+LSET.index(i)*2048+hh*1024)); lg.issue(('W',i,hh))
    def rdB(i,slot): rdB1(i,slot,0); rdB1(i,slot,1)
    pre=[(0,KXR),(1,KXR+8),(2,KF),(3,KF+8),(4,AF),(5,AF+8)]+([(6,QF),(7,QF+8)] if 6 in LSET else [])
    pl=[]
    for i,sl in pre: pl+= [(i,sl,0),(i,sl,1)]
    def fill(n=1):
        for _ in range(n):
            if pl: rdB1(*pl.pop(0))
    M_=ACCQ; T_=ACCQ+1; NMC=ACCQ+2
    Sx(0,True); Sx(4,True); Sx(1,False); Sx(5,False)
    Sm(0); fill(2); Sm(1); fill(2); Sm(2); Sm(3)
    Sx(2,False); fill(2); Sx(6,False); fill(2)
    Sx(3,False)
    e('v_max3_f32 v%d, v%d, v%d, v%d'%(T_,SM,SM+1,SM+2))
    Sx(7,False)
    e('v_max_f32 v%d, v%d, v%d'%(T_,T_,SM+3))
    TS('VS')
    e('v_max3_f32 v%d, v%d, v%d, v%d'%(M_,SX0,SX0+1,SX0+2))
    e('v_max3_f32 v%d, v%d, v%d, v%d'%(T_,T_,SX0+3,M_))
    e('v_max3_f32 v%d, v%d, v%d, v%d'%(M_,SX1,SX1+1,SX1+2))
    e('v_max3_f32 v%d, v%d, v%d, v%d'%(M_,M_,SX1+3,T_))
    e('v_mov_b32 v%d, v%d'%(T_,M_))
    e('v_permlane32_swap_b32 v%d, v%d'%(M_,T_))
    e('v_max_f32 v%d, v%d, v%d'%(M_,M_,T_))
    e('v_mov_b32 v%d, v%d'%(T_,M_))
    e('v_permlane16_swap_b32 v%d, v%d'%(M_,T_))
    e('v_max_f32 v%d, v%d, v%d'%(M_,M_,T_))
    e('v_mul_f32 v%d, s32, v%d'%(NMC,M_))
    TS('max')
    pkf=lambda r: e('v_pk_fma_f32 v[%d:%d], v[%d:%d], s[32:33], v[%d:%d] op_sel_hi:[1,1,0] neg_lo:[0,0,1] neg_hi:[0,0,1]'%(r,r+1,r,r+1,NMC,NMC+1))
    for r in (SX0,SX0+2,SX1,SX1+2): pkf(r)
    for r in range(SX0,SX0+8): e('v_exp_f32 v%d, v%d'%(r,r))
    PX=ACCK
    pkf(SM); pkf(SM+2)
    e('v_cvt_pk_bf16_f32 v%d, v%d, v%d'%(PX,SX0,SX0+1))
    e('v_cvt_pk_bf16_f32 v%d, v%d, v%d'%(PX+1,SX0+2,SX0+3))
    e('v_cvt_pk_bf16_f32 v%d, v%d, v%d'%(PX+2,SX1,SX1+1))
    e('v_cvt_pk_bf16_f32 v%d, v%d, v%d'%(PX+3,SX1+2,SX1+3))
    TS('expx')
    e('s_waitcnt vmcnt(%d)'%(5 if sync else 3))
    T1=SX0; T2=SX1; L_=VX2
    e('v_exp_f32 v%d, v%d'%(SM,SM))
    e('v_mfma_f32_16x16x32_bf16 %s, %s, %s, 0'%(v(T2,4),v(VX2,4),v(PX,4)))
    fill()
    e('v_exp_f32 v%d, v%d'%(SM+1,SM+1))
    e('v_mfma_f32_16x16x32_bf16 %s, %s, %s, 0'%(v(T1,4),v(VX1,4),v(PX,4)))
    fill()
    e('v_exp_f32 v%d, v%d'%(SM+2,SM+2))
    e('v_mfma_f32_16x16x32_bf16 %s, %s, %s, 0'%(v(L_,4),v(ONES,4),v(PX,4)))
    fill()
    e('v_exp_f32 v%d, v%d'%(SM+3,SM+3))
    VP=ACCV
    e('v_cvt_pk_bf16_f32 v%d, v%d, v%d'%(VP,ACCV,ACCV+1))
    PM1=ACCQ; PM2=ACCQ+2
    e('v_cvt_pk_bf16_f32 v%d, v%d, v%d'%(PM2,SM,SM+1))
    e('v_cvt_pk_bf16_f32 v%d, v%d, v%d'%(PM2+1,SM+2,SM+3))
    e('v_cvt_pk_bf16_f32 v%d, v%d, v%d'%(VP+1,ACCV+2,ACCV+3))
    e('v_cndmask_b32 v%d, 0, v%d, s[34:35]'%(PM1,PM2))
    e('v_cndmask_b32 v%d, 0, v%d, s[34:35]'%(PM1+1,PM2+1))
    e('v_mfma_f32_16x16x16_bf16 %s, %s, %s, %s'%(v(L_,4),v(ONES,2),v(PM1,2),v(L_,4)))
    e('v_cndmask_b32 v%d, 0, v%d, s[36:37]'%(PM2,PM2))
    e('v_cndmask_b32 v%d, 0, v%d, s[36:37]'%(PM2+1,PM2+1))
    e('v_mfma_f32_16x16x16_bf16 %s, %s, %s, %s'%(v(T1,4),v(VP,2),v(PM1,2),v(T1,4)))
    fill(1)
    WA=[ACCQ,ACCK,ACCV,VX1]
    e('v_mfma_f32_16x16x16_bf16 %s, %s, %s, %s'%(v(T2,4),v(VP,2),v(PM2,2),v(T2,4)))
    fill(1)
    e('global_store_dwordx2 %s, %s, s[26:27] sc1'%(v(gVM),v(VP,2)))
    e('v_mov_b64 v[%d:%d], 0\nv_mov_b64 v[%d:%d], 0'%(WA[1],WA[1]+1,WA[1]+2,WA[1]+3))
    TS('pv')
    e('s_cmp_eq_u32 s28, %d\ns_cbranch_scc1 L_c_done'%(nsteps-1))
    fill(16)
    for t in (3,0):
        e('v_mov_b64 v[%d:%d], 0\nv_mov_b64 v[%d:%d], 0'%(WA[t],WA[t]+1,WA[t]+2,WA[t]+3))
    e('v_rcp_f32 v%d, v%d'%(L_,L_))
    e('v_mov_b64 v[%d:%d], 0\nv_mov_b64 v[%d:%d], 0'%(WA[2],WA[2]+1,WA[2]+2,WA[2]+3))
    for r in (T1,T1+2,T2,T2+2):
        e('v_pk_mul_f32 v[%d:%d], v[%d:%d], v[%d:%d] op_sel_hi:[1,0]'%(r,r+1,r,r+1,L_,L_+1))
    O4=SM
    for r in range(4):
        e('v_cvt_pk_bf16_f32 v%d, v%d, v%d'%(O4+r,T1+r,T2+r))
    if ob64:
        e('v_cndmask_b32 v%d, v%d, v%d, s[80:81]'%(T1,O4,O4+2))
        e('v_cndmask_b32 v%d, v%d, v%d, s[80:81]'%(T1+1,O4+1,O4+3))
        e('ds_write_b64 v%d, %s offset:%d'%(16+0, v(T1,2), L_M)) if False else None
        e('v_add_u32 v%d, %s, v%d'%(T1+2,v(aMb[0]),T1+3)) if False else None
        e('ds_write_b64 %s, %s offset:%d'%(v(aOw8),v(T1,2),L_M)); lg.issue('ow')
    else:
        e('ds_write_b128 %s, %s offset:%d'%(v(aMb[0]),v(O4,4),L_M)); lg.issue('ow')
    TS('SMX')
    def Wm(i,areg):
        t,b=seq[i]
        if i in LSET:
            lg.wait(('W',i,1))
            SMF(WA[t],v(areg,4),v(bslot[i],8))
        else: SMF(WA[t],v(areg,4),WOR(i))
    Wm(0,O4); Wm(1,O4); Wm(2,O4)
    lg.wait('ow')
    TS('ow')
    e('s_barrier')
    OF={1:SX0,2:SX1,3:OF3}
    for b in (1,2,3):
        e('ds_read_b128 %s, %s offset:%d'%(v(OF[b],4),v(aMb[b]),L_M)); lg.issue(('o',b))
    Wm(3,O4)
    if 14 in LSET: rdB(14,QF); rdB(15,QF+8)
    G0=KXR; G1=KXR+4
    for i in range(4,16):
        t,b=seq[i]
        lg.wait(('o',b))
        Wm(i,OF[b])
        if early:
            if i==10:
                e('v_cvt_pk_bf16_f32 v%d, v%d, v%d'%(G0,WA[0],WA[0]+1))
                e('v_cvt_pk_bf16_f32 v%d, v%d, v%d'%(G0+1,WA[0]+2,WA[0]+3))
            if i==11:
                e('v_cvt_pk_bf16_f32 v%d, v%d, v%d'%(G0+2,WA[1],WA[1]+1))
                e('v_cvt_pk_bf16_f32 v%d, v%d, v%d'%(G0+3,WA[1]+2,WA[1]+3))
                e('v_and_or_b32 v%d, v%d, -2, s29'%(G0,G0))
                e('v_and_or_b32 v%d, v%d, -2, s29'%(G0+3,G0+3))
                e('global_store_dwordx4 %s, %s, s[16:17]%s'%(v(gA0),v(G0,4),st))
            continue
        if i==11:
            e('v_cvt_pk_bf16_f32 v%d, v%d, v%d'%(G0,WA[0],WA[0]+1))
        if i==12:
            e('v_cvt_pk_bf16_f32 v%d, v%d, v%d'%(G0+1,WA[0]+2,WA[0]+3))
        if i==13:
            e('v_cvt_pk_bf16_f32 v%d, v%d, v%d'%(G0+2,WA[1],WA[1]+1))
            e('v_cvt_pk_bf16_f32 v%d, v%d, v%d'%(G0+3,WA[1]+2,WA[1]+3))
        if i==14:
            e('v_and_or_b32 v%d, v%d, -2, s29'%(G0,G0))
            e('global_store_dwordx4 %s, %s, s[16:17]%s'%(v(gA0),v(G0,4),st))
    a.label('L_c_stub')
    if stub:
        e('v_and_or_b32 v%d, v%d, -2, s29'%(G0,G0))
        e('global_store_dwordx4 %s, %s, s[16:17]%s'%(v(gA0),v(G0,4),st))
        delay(64)
    e('v_cvt_pk_bf16_f32 v%d, v%d, v%d'%(G1,WA[2],WA[2]+1))
    e('v_cvt_pk_bf16_f32 v%d, v%d, v%d'%(G1+1,WA[2]+2,WA[2]+3))
    e('v_cvt_pk_bf16_f32 v%d, v%d, v%d'%(G1+2,WA[3],WA[3]+1))
    e('v_cvt_pk_bf16_f32 v%d, v%d, v%d'%(G1+3,WA[3]+2,WA[3]+3))
    e('v_and_or_b32 v%d, v%d, -2, s29'%(G1,G1))
    e('v_and_or_b32 v%d, v%d, -2, s29'%(G1+3,G1+3))
    e('global_store_dwordx4 %s, %s, s[46:47]%s'%(v(gA0),v(G1,4),st))
    TS('WO')
    if XB: e('s_memtime s[90:91]')
    assert (not ts) or tsn[0]==NST, tsn[0]
    a.tsnames=a.tsnames+hop_names
    e('s_branch L_c_hops')
    a.label('L_c_failA'); a.hist=[]
    e('s_nop 3')
    for i,(r0,r1) in enumerate(preA[1:]):
        rem=2*(len(preA)-2-i)
        redA(r0,r1,rem+1,rem,'L_c_okA')
        a.fence()
    a.label('L_c_pollA')
    ldA(R0,R1)
    redA(R0,R1,1,0,'L_c_okA')
    e('s_add_u32 s44, s44, 1\ns_cmp_gt_u32 s44, 200000\ns_cbranch_scc1 L_c_done\ns_branch L_c_pollA')
    a.label('L_c_failB'); a.hist=[]
    e('global_load_lds_dwordx4 %s, s[92:93] sc1'%v(gB0))
    e('global_load_lds_dwordx4 %s, s[92:93] offset:1024 sc1'%v(gB0))
    e('s_add_u32 s44, s44, 1\ns_cmp_gt_u32 s44, 200000\ns_cbranch_scc1 L_c_done\ns_branch L_c_loopB')
    if sync:
        a.label('L_c_kvspin'); a.hist=[]
        e('s_add_u32 s41, s28, 1\ns_lshr_b32 s41, s41, 2\ns_min_u32 s41, s41, 15\ns_lshl_b32 s41, s41, 7\ns_add_u32 s82, s84, s41\ns_addc_u32 s83, s85, 0')
        e('s_mov_b64 exec, 1\nglobal_load_dword v%d, %s, s[82:83] sc1\ns_mov_b64 exec, -1\ns_waitcnt vmcnt(0)\nv_readfirstlane_b32 s40, v%d'%(KVF,v(gB0),KVF))
        e('s_add_u32 s44, s44, 1\ns_cmp_gt_u32 s44, 200000\ns_cbranch_scc1 L_c_done\ns_cmp_ge_u32 s40, 128\ns_cbranch_scc0 L_c_kvspin\ns_branch L_c_kvgo')
    a.label('L_c_done'); a.hist=[]
    e('s_waitcnt vmcnt(0)')
    if sync:
        e('s_barrier')
        e('s_lshl_b32 s41, s5, 7\ns_add_u32 s41, s41, %d\nv_mov_b32 v34, s41\nv_mov_b32 v35, 64'%FL_PROG)
        e('s_mov_b64 exec, 1\nglobal_store_dword v34, v35, s[8:9] sc1\ns_mov_b64 exec, -1\ns_waitcnt vmcnt(0)')
    if trace:
        e('s_lshl_b32 s40, s5, 2\ns_add_u32 s40, s40, s4\ns_mul_i32 s40, s40, 768\ns_add_u32 s40, s40, %d'%(WS_O))
        e('v_mbcnt_lo_u32_b32 v64, -1, 0\nv_mbcnt_hi_u32_b32 v64, -1, v64\nv_lshlrev_b32 v64, 2, v64\nv_add_u32 v64, s40, v64')
        e('global_store_dword v64, v7, s[8:9]\nglobal_store_dword v64, v11, s[8:9] offset:256\nglobal_store_dword v64, v15, s[8:9] offset:512\ns_waitcnt vmcnt(0)')
    if cnt:
        e('s_lshl_b32 s40, s5, 2\ns_add_u32 s40, s40, s4\ns_lshl_b32 s40, s40, 3\ns_add_u32 s40, s40, %d'%(WS_G))
        e('v_mov_b32 v64, s40\nv_mov_b32 v66, s48\nv_mov_b32 v67, s49\ns_mov_b64 exec, 1\nglobal_store_dwordx2 v64, v[66:67], s[8:9]\ns_mov_b64 exec, -1\ns_waitcnt vmcnt(0)')
```

```python
from asmgen import Asm
from layout import *
import struct, math

L_M=0; L_K0=8192; L_K1=16384; L_Q=24576; L_KT=L_Q+2176; L_TMP=30976; L_WO=32768

class Q:
    def __init__(s, asm, name, maxv): s.a=asm; s.name=name; s.q=[]; s.maxv=maxv
    def issue(s, tag): s.q.append(tag)
    def wait(s, tag):
        if tag not in s.q: return
        i=s.q.index(tag); n=len(s.q)-1-i
        n=min(n,s.maxv)
        s.a.e('s_waitcnt %s(%d)'%(s.name,n)); s.q=s.q[len(s.q)-n:] if n>0 else []
    def waitall(s):
        s.a.e('s_waitcnt %s(0)'%s.name); s.q=[]
    def reset(s): s.q=[]

def f2u(x): return struct.unpack('<I',struct.pack('<f',x))[0]

def rowconst(kb,m):
    rho=2*kb+(m>>2); u=rho&3
    return 128*(rho>>3)+64*((rho>>2)&1)+32*(m&1)+16*(u&1)+(u>>1)+2*((m&3)>>1)
for kb in range(16):
    for m in range(8):
        for gb in range(4):
            assert pi_pos(32*kb+16*(m>>2)+4*gb+(m&3))==rowconst(kb,m)+4*gb
def rowrest(j,m): return rowconst(j&3,m)
for w in range(4):
    for j in range(16):
        for m in range(8):
            assert rowconst((4*w+j)&15,m)==128*((w+(j>>2))&3)+rowrest(j,m)

def v(a,n=1): return 'v%d'%a if n==1 else 'v[%d:%d]'%(a,a+n-1)
def ag(a,n=1): return 'a%d'%a if n==1 else 'a[%d:%d]'%(a,a+n-1)

aMb=[3,0,1,9]
IDX=2; aWo=4; aQw=5; aQr=6; aKr=8
gA0=10; gAr=12; gBw=13; gB0=14; gV=7; KVF=11; gVM=15
ONES=20; BSEL=24; TAGB=30; MASKB=31
VX1=32; AF=36; ACCQ=52; ACCK=56; ACCV=60; QF=64; KF=80; KXR=96; SX0=112; SX1=116; SM=120; VX2=16; OF3=124
RING=[120,24,112]
SEQ=[(0,0),(1,0),(2,0),(3,0),(0,1),(1,1),(0,2),(1,2),(0,3),(1,3),(2,1),(3,1),(2,2),(3,2),(2,3),(3,3)]
LSET=[0,1,2,3,4,5,14,15]
ASET=[i for i in range(16) if i not in LSET]
def set_lset(l):
    LSET[:]=l; ASET[:]=[i for i in range(16) if i not in l]
WOR=lambda i: ag(64+8*ASET.index(i),8)
WQ=lambda j: ag(8*j,8)
WK=lambda j: ag(128+8*j,8)
WV=lambda j: v(128+8*j,8)

def chain_setup(a, st, sync=False, dbgfn=None):
    e=a.e
    e('''
v_and_b32 v1, 63, v0
v_and_b32 v32, 15, v1          ; j / n / i
v_lshrrev_b32 v33, 4, v1       ; g
v_bfe_u32 v34, v1, 4, 1        ; rh
v_lshrrev_b32 v35, 5, v1       ; half
v_lshlrev_b32 v36, 4, v0       ; tid*16
s_lshl_b32 s40, s5, 13
v_add_u32 v37, s40, v36
v_mov_b32 v40, -1
v_mov_b32 v41, -1
v_mov_b32 v42, -1
v_mov_b32 v43, -1
v_add_u32 v38, 0x1000, v37
v_add_u32 v39, 0x40000, v37
v_add_u32 v44, 0x41000, v37
global_store_dwordx4 v37, v[40:43], s[8:9]{st}
global_store_dwordx4 v38, v[40:43], s[8:9]{st}
global_store_dwordx4 v39, v[40:43], s[8:9]{st}
global_store_dwordx4 v44, v[40:43], s[8:9]{st}
s_lshl_b32 s40, s5, 8
s_add_u32 s40, s40, {hb}
v_lshlrev_b32 v45, 2, v1
v_add_u32 v45, s40, v45
v_add_u32 v46, 0x2000, v45
global_store_dword v45, v40, s[8:9]{st}
global_store_dword v46, v40, s[8:9]{st}
; zero the flags area: 1 KB per chain WG (256 threads x 4 B)
s_lshl_b32 s40, s5, 10
s_add_u32 s40, s40, {fl}
v_lshlrev_b32 v45, 2, v0
v_add_u32 v45, s40, v45
v_mov_b32 v46, 0
global_store_dword v45, v46, s[8:9] sc1
'''.format(st=st,hb=WS_HOPB,fl=WS_FLAGS))
    e('s_waitcnt vmcnt(0)')
    e('''s_barrier
s_cmp_eq_u32 s4, 0
s_cbranch_scc0 L_c_noready
v_mov_b32 v38, {rdy}
v_mov_b32 v39, 1
s_mov_b64 exec, 1
global_atomic_add v38, v39, s[10:11] sc1
s_mov_b64 exec, -1
L_c_noready:'''.format(rdy=DBG_READY))
    e('s_load_dwordx2 s[88:89], s[0:1], %d'%KA_MEM0)
    e('''
v_and_b32 v64, 7, v0           ; row
v_lshrrev_b32 v65, 3, v0       ; q8 (0..31)
v_and_b32 v66, 1, v65          ; oct
v_lshrrev_b32 v67, 1, v65      ; rho (0..15)
v_lshrrev_b32 v68, 3, v67
v_lshlrev_b32 v68, 7, v68
v_bfe_u32 v69, v67, 2, 1
v_lshlrev_b32 v69, 6, v69
v_add_u32 v68, v68, v69
v_and_b32 v69, 1, v67
v_lshlrev_b32 v69, 4, v69
v_add_u32 v68, v68, v69
v_lshlrev_b32 v69, 3, v66
v_add_u32 v68, v68, v69
v_bfe_u32 v69, v67, 1, 1
v_add_u32 v68, v68, v69        ; D0
v_lshlrev_b32 v68, 1, v68
v_lshlrev_b32 v64, 10, v64
v_add_u32 v68, v68, v64
s_waitcnt lgkmcnt(0)
s_mov_b32 s90, 8192
s_mov_b32 s91, 0x00020000
''')
    for hlf in range(2):
        for n in range(8):
            e('buffer_load_ushort v%d, v68, s[88:91], 0 offen offset:%d'%(72+8*hlf+n, hlf*512+(32*(n&1)+2*(n>>1))*2))
    e('s_load_dwordx2 s[12:13], s[0:1], %d\ns_load_dwordx2 s[82:83], s[0:1], %d\ns_load_dwordx2 s[84:85], s[0:1], %d\ns_load_dwordx2 s[86:87], s[0:1], %d'%(KA_WO,KA_WQ,KA_WK,KA_WV))
    e('''
s_lshl_b32 s40, s5, 17         ; h*131072
s_lshl_b32 s41, s4, 8          ; 128*w*2
s_add_u32 s40, s40, s41
v_lshlrev_b32 v37, 2, v32      ; 4j
v_lshlrev_b32 v38, 12, v33     ; gb*4*1024
v_add3_u32 v37, v37, v38, s40
v_lshlrev_b32 {aWo}, 4, v1
s_lshl_b32 s41, s4, 15
s_add_u32 s41, s41, {lwo}
v_add_u32 {aWo}, s41, {aWo}
s_lshl_b32 s40, s5, 8          ; h*256
s_lshl_b32 s41, s4, 6          ; 64*w
s_add_u32 s40, s40, s41
v_lshlrev_b32 v36, 2, v32      ; 4j
v_lshlrev_b32 v38, 15, v33     ; gb*32768
v_add3_u32 v36, v36, v38, s40  ; voffset for Wq/Wk/Wv
s_waitcnt lgkmcnt(0)
s_mov_b32 s14, 0x400000
s_mov_b32 s15, 0x00020000
'''.format(aWo=v(aWo),lwo=L_WO))
    for b_ in range(4):
        e('s_add_u32 s41, s4, %d\ns_and_b32 s41, s41, 3\ns_lshl_b32 s%d, s41, 15'%(b_,44+b_))
    for jj in range(4):
        for m in range(8): e('s_mov_b32 s%d, %d'%(50+8*jj+m,rowrest(jj,m)*8192))
    st_list=[]
    nld=0
    e('s_mov_b64 s[100:101], s[12:13]')
    for i,(t,b_) in enumerate(SEQ):
        if i in ASET[4:]: continue
        for hh in range(2):
            for mm in range(4):
                e('s_add_u32 s41, s%d, %d'%(44+b_,(16*hh+mm)*1024+t*64))
                dst=('v%d'%(128+8*LSET.index(i)+4*hh+mm)) if i in LSET else ('a%d'%(64+8*ASET.index(i)+4*hh+mm))
                e('buffer_load_dword %s, v37, s[12:15], s41 offen'%dst)
                nld+=1
                if nld==40:
                    e('s_waitcnt vmcnt(40)')
                    for hlf in range(2):
                        for d in range(4):
                            e('v_lshl_or_b32 v%d, v%d, 16, v%d'%(96+4*hlf+d, 72+8*hlf+2*d+1, 72+8*hlf+2*d))
                    e('v_lshlrev_b32 v64, 4, v0\nv_add_u32 v65, 0x1000, v64\nds_write_b128 v64, v[96:99]\nds_write_b128 v65, v[100:103]')

            if i in LSET: st_list.append((128+8*LSET.index(i)+4*hh,16384+LSET.index(i)*2048+hh*1024))
    for j in range(8,16):
        for hh in range(2): st_list.append((192+8*(j-8)+4*hh,(j-8)*2048+hh*1024))
    def dq(r,j,m): return ('a%d'%(8*j+m)) if j<8 else ('v%d'%(192+8*(j-8)+m))
    for w in range(4):
        if w>0: a.label('L_c_wl%d'%w)
        if w<3: e('s_cmp_eq_u32 s4, %d\ns_cbranch_scc0 L_c_wl%d'%(w,w+1))
        if w>0: e('s_nop 0')
        for mat in range(3):
            e('s_mov_b64 s[12:13], s[%d:%d]'%(82+2*mat,83+2*mat))
            n=0
            for kb in range(16):
                j=(kb-4*w)&15
                if kb>0 and kb%4==0: e('s_add_u32 s12, s12, 0x100000\ns_addc_u32 s13, s13, 0\ns_sub_u32 s14, s14, 0x100000')
                for m in range(8):
                    dst=dq(0,j,m) if mat==0 else ('a%d'%(128+8*j+m) if mat==1 else 'v%d'%(128+8*j+m))
                    e('buffer_load_dword %s, v36, s[12:15], s%d offen'%(dst,50+8*(kb&3)+m))
                    n+=1
                    if mat==1 and n%2==0 and n>64:
                        k=(n-66)//2
                        if n==66: e('s_waitcnt vmcnt(60)')
                        base,off=st_list[k]
                        e('ds_write_b128 %s, %s offset:%d'%(v(aWo),v(base,4),off))
            e('s_mov_b32 s14, 0x400000')
            if mat==1: e('s_waitcnt lgkmcnt(0)')
            if mat==2:
                e('v_mov_b32 v104, %d\nv_mov_b32 v105, %d\nglobal_load_dword v106, v104, s[10:11] sc1\nglobal_load_dword v107, v105, s[8:9] sc1'%(DBG_READY,FL_P))
        if w<3: e('s_branch L_c_wld')
    a.label('L_c_wld')
    if dbgfn: dbgfn(3)
    e('''
; gB0 = w*2048 + lane*16  (hop-B DMA offset, K DMA offset)
s_lshl_b32 s43, s4, 11
v_lshlrev_b32 v64, 4, v1
v_add_u32 {gB0}, s43, v64
; idx
v_mov_b32 {IDX}, 0x8888
v_mov_b32 v64, 0xdddd
v_cmp_le_u32 vcc, 8, v32
v_cndmask_b32 {IDX}, {IDX}, v64, vcc
; lanepart = g*128 + (i&7)*16
v_and_b32 v64, 7, v32
v_lshlrev_b32 v64, 4, v64
v_lshlrev_b32 v65, 7, v33
v_add_u32 v70, v64, v65
; aQw = L_Q + w*544 + half*272 + rh*128 + j*8
s_mul_i32 s40, s4, 544
s_add_u32 s40, s40, {lq}
v_mul_u32_u24 v64, 272, v35
v_lshlrev_b32 v65, 7, v34
v_lshlrev_b32 v66, 3, v32
v_add3_u32 v64, v64, v65, v66
v_add_u32 {aQw}, s40, v64
; aQr
v_bfe_u32 v64, v1, 2, 1
v_mul_u32_u24 v64, 272, v64
v_and_b32 v65, 1, v1
v_lshlrev_b32 v65, 7, v65
v_bfe_u32 v66, v1, 3, 1
v_lshl_add_u32 v66, v33, 2, v66
v_lshlrev_b32 v66, 3, v66
v_add3_u32 v64, v64, v65, v66
v_add_u32 {aQr}, {lq}, v64
; aKr = L_K0 + lane*16
v_lshlrev_b32 v64, 4, v1
v_add_u32 {aKr}, {lk0}, v64
; gA0 = (8w + 2*half + (j>>3))*8192 + (2rh+oct)*2048 + h*64 + (j&3)*16
v_lshrrev_b32 v64, 3, v32
v_lshl_add_u32 v64, v35, 1, v64
s_lshl_b32 s40, s4, 3
v_add_u32 v64, s40, v64
v_lshlrev_b32 v64, 13, v64
v_bfe_u32 v65, v32, 2, 1
v_lshl_add_u32 v65, v34, 1, v65
v_lshlrev_b32 v65, 11, v65
v_and_b32 v66, 3, v32
v_lshlrev_b32 v66, 4, v66
v_add3_u32 v64, v64, v65, v66
s_lshl_b32 s40, s5, 6
v_add_u32 {gA0}, s40, v64
; gAr = h*8192 + w*2048 + g*256 + (i&3)*64 + (i>>2)*16
v_lshlrev_b32 v64, 8, v33
v_and_b32 v65, 3, v32
v_lshlrev_b32 v65, 6, v65
v_lshrrev_b32 v66, 2, v32
v_lshlrev_b32 v66, 4, v66
v_add3_u32 v64, v64, v65, v66
s_lshl_b32 s40, s5, 13
s_add_u32 s40, s40, s43
v_add_u32 {gAr}, s40, v64
; gBw = h*256 + (w&1)*128 + (w>>1)*64 + n*16 + g*4
s_lshl_b32 s40, s5, 8
s_and_b32 s41, s4, 1
s_lshl_b32 s41, s41, 7
s_add_u32 s40, s40, s41
s_lshr_b32 s41, s4, 1
s_lshl_b32 s41, s41, 6
s_add_u32 s40, s40, s41
v_lshlrev_b32 v64, 4, v32
v_lshl_add_u32 v64, v33, 2, v64
v_add_u32 {gBw}, s40, v64
; gV = w*2048 + j*128 + g*16
v_lshlrev_b32 v64, 7, v32
v_lshl_add_u32 v64, v33, 4, v64
v_add_u32 {gV}, s43, v64
; gVM = w*512 + lane*8
s_lshl_b32 s40, s4, 9
v_lshlrev_b32 v64, 3, v1
v_add_u32 {gVM}, s40, v64
v_mov_b32 v20, 0x3f803f80
v_mov_b32 v21, 0x3f803f80
v_mov_b32 v22, 0x3f803f80
v_mov_b32 v23, 0x3f803f80
v_mov_b32 v24, 0
v_mov_b32 v25, 0
v_mov_b32 v28, 0
v_mov_b32 v29, 0
v_and_b32 v64, 3, v32
v_mov_b32 v65, 0x3f80
v_mov_b32 v66, 0x3f800000
v_mov_b32 v26, 0
v_mov_b32 v27, 0
v_cmp_eq_u32 vcc, 0, v64
v_cndmask_b32 v26, v26, v65, vcc
v_cmp_eq_u32 vcc, 1, v64
v_cndmask_b32 v26, v26, v66, vcc
v_cmp_eq_u32 vcc, 2, v64
v_cndmask_b32 v27, v27, v65, vcc
v_cmp_eq_u32 vcc, 3, v64
v_cndmask_b32 v27, v27, v66, vcc
v_mov_b32 {MASKB}, -1
v_mov_b32 v64, -2
v_cmp_eq_u32 vcc, 0, v33
v_cndmask_b32 {MASKB}, {MASKB}, v64, vcc
'''.format(gB0=v(gB0),IDX=v(IDX),aQw=v(aQw),aQr=v(aQr),aKr=v(aKr),gA0=v(gA0),
           gAr=v(gAr),gBw=v(gBw),gV=v(gV),gVM=v(gVM),MASKB=v(MASKB),aWo=v(aWo),lq=L_Q,lk0=L_K0))
    for b in (3,2,1,0):
        e('s_add_u32 s40, s4, %d\ns_and_b32 s40, s40, 3\ns_lshl_b32 s40, s40, 11\nv_add_u32 %s, s40, v70'%(b,v(aMb[b])))
    c=(128**-0.5)*math.log2(math.e)
    e('''
s_add_u32 s16, s8, {ha}
s_addc_u32 s17, s9, 0
s_add_u32 s18, s8, {hb}
s_addc_u32 s19, s9, 0
s_lshl_b32 s40, s5, 13
s_add_u32 s20, s8, {kx}
s_addc_u32 s21, s9, 0
s_add_u32 s20, s20, s40
s_addc_u32 s21, s21, 0
s_add_u32 s22, s8, {vx}
s_addc_u32 s23, s9, 0
s_add_u32 s22, s22, s40
s_addc_u32 s23, s23, 0
s_lshl_b32 s40, s5, 11
s_add_u32 s24, s8, {km}
s_addc_u32 s25, s9, 0
s_add_u32 s24, s24, s40
s_addc_u32 s25, s25, 0
s_add_u32 s26, s8, {vm}
s_addc_u32 s27, s9, 0
s_add_u32 s26, s26, s40
s_addc_u32 s27, s27, 0
s_mov_b32 s28, 0
s_mov_b32 s29, 0
s_mov_b32 s30, 0               ; expected tag of the M image (previous step)
s_mov_b32 s31, 0               ; tag check enable
s_mov_b32 s32, {c}
s_mov_b32 s33, {c}
s_mov_b32 s34, -1
s_mov_b32 s35, 0
s_mov_b32 s36, 0
s_mov_b32 s37, -1
s_mov_b32 s38, 0x000f000f
s_mov_b32 s39, 0x000f000f
s_add_u32 s46, s16, 0x8000     ; second A-store base
s_addc_u32 s47, s17, 0
s_mov_b64 s[92:93], s[18:19]
s_mov_b32 s45, 0
s_lshl_b32 s40, s5, 7
s_add_u32 s40, s40, {prog}
s_sub_u32 s40, s40, s43
s_add_u32 s86, s8, s40
s_addc_u32 s87, s9, 0          ; PROG[h] - w*2048
s_sub_u32 s40, {flp}, s43
s_add_u32 s84, s8, s40
s_addc_u32 s85, s9, 0          ; FL_P - w*2048
'''.format(ha=WS_HOPA,hb=WS_HOPB,kx=WS_KX,vx=WS_VX,km=WS_KM,vm=WS_VM,c=f2u(c),prog=FL_PROG,flp=FL_P))
    if dbgfn:
        e('s_waitcnt vmcnt(0)'); dbgfn(2)
    for r in range(ACCQ,ACCQ+12): e('v_mov_b32 v%d, 0'%r)
    e('''
s_mov_b32 s44, 0
s_waitcnt vmcnt(0)
v_readfirstlane_b32 s40, v106
v_readfirstlane_b32 s41, v107
s_cmp_ge_u32 s40, 32
s_cselect_b32 s40, s41, 0
s_cmp_ge_u32 s40, {kvneed}
s_cbranch_scc1 L_c_kvok
L_c_waitready:
v_mov_b32 v64, {rdy}
global_load_dword v65, v64, s[10:11] sc1
s_waitcnt vmcnt(0)
v_readfirstlane_b32 s40, v65
s_cmp_ge_u32 s40, 32
s_cbranch_scc1 L_c_ready
s_add_u32 s44, s44, 1
s_cmp_gt_u32 s44, 200000
s_cbranch_scc1 L_c_done
s_sleep 4
s_branch L_c_waitready
L_c_ready:
'''.format(rdy=DBG_READY,kvneed=(128 if sync else 0x7fffffff)))
    if not sync: a.raw('s_branch L_c_kvok')
    if sync:
        e('''
L_c_waitkv:
v_mov_b32 v64, {f}
global_load_dword v65, v64, s[8:9] sc1
s_waitcnt vmcnt(0)
v_readfirstlane_b32 s40, v65
s_cmp_ge_u32 s40, 128
s_cbranch_scc1 L_c_kvok
s_add_u32 s44, s44, 1
s_cmp_gt_u32 s44, 200000
s_cbranch_scc1 L_c_done
s_sleep 4
s_branch L_c_waitkv
'''.format(f=FL_P))
    a.label('L_c_kvok')
    e('''
s_add_u32 m0, s43, {k0}
s_nop 0
global_load_lds_dwordx4 {gK}, s[20:21] sc1
global_load_lds_dwordx4 {gK}, s[20:21] offset:1024 sc1
s_add_u32 s20, s20, 0x40000
s_addc_u32 s21, s21, 0
v_mov_b32 v{kvf}, 128
s_mov_b64 s[12:13], s[100:101]
s_mov_b32 s14, 0x400000
'''.format(k0=L_K0,gK=v(gB0),kvf=KVF))
    for b_ in range(4):
        e('s_add_u32 s41, s4, %d\ns_and_b32 s41, s41, 3\ns_lshl_b32 s%d, s41, 15'%(b_,50+b_))
    for i in ASET[4:]:
        t,b_=SEQ[i]
        for hh in range(2):
            for mm in range(4):
                e('s_add_u32 s41, s%d, %d'%(50+b_,(16*hh+mm)*1024+t*64))
                e('buffer_load_dword a%d, v37, s[12:15], s41 offen'%(64+8*ASET.index(i)+4*hh+mm))
    e('s_waitcnt vmcnt(32) lgkmcnt(0)\ns_barrier')


def chain_loop(a, st, nsteps=64, ts=False, dA=0, dB=0, stub=0, dA2=0, dB2=0, cnt=False, sync=False, fp=48, fpB=40, nA=1, pA=120, nB=1, pB=120, trace=False, big=0, nbig=4, XB=0, sh=4, ob64=False, barpos=1, early=True, hafast=False, sA=0):
    e=a.e
    lg=Q(a,'lgkmcnt',15)
    tsn=[0]
    def TS(name=None):
        if not ts: return
        i=tsn[0]; tsn[0]+=1
        assert i<22
        e('s_memtime s[%d:%d]'%(50+2*i,51+2*i))
        a.tsnames.append(name)
    a.tsnames=[]
    def delay(n):
        for _ in range(n//4): e('v_mov_b32 v34, v35')
    if ts or cnt or trace: e('s_mov_b32 s48, 0\ns_mov_b32 s49, 0\ns_mov_b32 s94, 0')
    FRB=[KXR,QF,KF,AF]
    def fr(j): return FRB[j>>2]+4*(j&3)
    def rdF(j):
        e('ds_read_b128 %s, %s offset:%d'%(v(fr(j),4),v(aMb[j>>2]),L_M+(j&3)*512)); lg.issue(('A',j))
    SMF=lambda acc,A,B: e('v_smfmac_f32_16x16x64_bf16 %s, %s, %s, %s'%(v(acc,4),A,B,v(IDX)))
    for j in range(4): rdF(j)
    e('s_waitcnt lgkmcnt(0)')
    for j in (8,9,10):
        for hh in range(2): e('ds_read_b128 %s, %s offset:%d'%(v(RING[(j-8)%3]+4*hh,4),v(aWo),(j-8)*2048+hh*1024))
    e('s_waitcnt lgkmcnt(0)'); lg.reset()
    e('s_branch L_c_step')
    NST=12 if ts else 0
    tsn[0]=NST
    a.label('L_c_hops'); a.hist=[]
    for r in range(ACCQ,ACCQ+12,2): e('v_mov_b64 v[%d:%d], 0'%(r,r+1))
    e('v_mov_b64 v[24:25], 0\nv_mov_b64 v[26:27], 0\nv_mov_b64 v[28:29], 0')
    for k,(reg,val) in enumerate(((26,'0x3f80'),(26,'0x3f800000'),(27,'0x3f80'),(27,'0x3f800000'))):
        m='0x%x'%(0x11111111<<k)
        e('s_mov_b32 exec_lo, %s\ns_mov_b32 exec_hi, %s\nv_mov_b32 v%d, %s'%(m,m,reg,val))
    e('s_mov_b64 exec, -1')
    e('s_mov_b32 m0, s43')
    if sA:
        e('s_bitcmp1_b32 s5, 2\ns_cbranch_scc0 L_c_skipdA')
        delay(sA)
        a.label('L_c_skipdA')
    delay(max(0,dA-104-sA))
    def xdelay(tag):
        if not big: return
        e('s_cmp_lt_u32 s28, %d\ns_cbranch_scc0 L_c_nox%s'%(nbig,tag))
        delay(big)
        a.label('L_c_nox%s'%tag)
    xdelay('A')
    R0=AF; R1=AF+4; DA=AF+8; DB=AF+12; S0=QF; S1=QF+4
    def ldA(r0,r1):
        e('global_load_dwordx4 %s, %s, s[16:17] sc1'%(v(r0,4),v(gAr)))
        e('global_load_dwordx4 %s, %s, s[16:17] offset:1024 sc1'%(v(r1,4),v(gAr)))
    def redA(r0,r1,n0,n1,ok,inv=False):
        e('s_waitcnt vmcnt(%d)'%n0)
        e('v_mfma_f32_16x16x32_bf16 %s, %s, %s, 0'%(v(DA,4),v(r0,4),v(BSEL+2,4)))
        e('v_mfma_f32_16x16x32_bf16 %s, %s, %s, 0'%(v(DB,4),v(r0,4),v(BSEL,4)))
        e('v_xor_b32 v80, s29, v%d'%r0)
        e('v_bitop3_b32 v80, v80, v%d, s29 bitop3:0xf6'%(r0+3))
        e('s_waitcnt vmcnt(%d)'%n1)
        e('v_mfma_f32_16x16x32_bf16 %s, %s, %s, %s'%(v(DA,4),v(r1,4),v(BSEL+2,4),v(DA,4)))
        e('v_mfma_f32_16x16x32_bf16 %s, %s, %s, %s'%(v(DB,4),v(r1,4),v(BSEL,4),v(DB,4)))
        e('v_bitop3_b32 v80, v80, v%d, s29 bitop3:0xf6'%r1)
        e('v_bitop3_b32 v80, v80, v%d, s29 bitop3:0xf6'%(r1+3))
        e('v_and_b32 v80, 1, v80')
        e('v_cmp_ne_u32 vcc, 0, v80')
        if ts or cnt or trace: e('s_add_u32 s48, s48, 1')
        e(('s_cbranch_vccnz %s' if inv else 's_cbranch_vccz %s')%ok)
    preA=[(R0,R1),(QF,QF+4),(QF+8,QF+12)][:nA]
    for i,(r0,r1) in enumerate(preA):
        ldA(r0,r1)
        if i+1<len(preA): delay(pA)
    rem=2*(len(preA)-1)
    redA(R0,R1,rem+1,rem,'L_c_failA',inv=True)
    a.label('L_c_okA')
    TS('pollA')
    if XB: e('s_memtime s[88:89]')
    e('s_nop 2')
    e('v_pk_add_f32 v[%d:%d], v[%d:%d], v[%d:%d]'%(DA,DA+1,DA,DA+1,DA+2,DA+3))
    e('v_pk_add_f32 v[%d:%d], v[%d:%d], v[%d:%d]'%(DB,DB+1,DB,DB+1,DB+2,DB+3))
    e('v_add_f32 v%d, v%d, v%d'%(DA,DA,DA+1))
    e('v_add_f32 v%d, v%d, v%d'%(DB,DB,DB+1))
    e('v_cvt_pk_bf16_f32 v%d, v%d, v%d'%(DA,DA,DB))
    e('v_and_or_b32 v%d, v%d, -2, s29'%(DA,DA))
    e('s_mov_b64 exec, s[38:39]')
    e('global_store_dword %s, v%d, s[18:19]%s'%(v(gBw),DA,st))
    e('s_mov_b64 exec, -1')
    TS('HA')
    lg.reset()
    for j in (8,9,10):
        for hh in range(2): e('ds_read_b128 %s, %s offset:%d'%(v(RING[(j-8)%3]+4*hh,4),v(aWo),(j-8)*2048+hh*1024))
    e('''s_mov_b64 s[92:93], s[18:19]
s_mov_b32 s30, s29
s_mov_b32 s31, 1
s_add_u32 s28, s28, 1
s_and_b32 s40, s28, 1
s_lshl_b32 s41, s40, 18
s_add_u32 s16, s8, s41
s_addc_u32 s17, s9, 0
s_add_u32 s46, s16, 0x8000
s_addc_u32 s47, s17, 0
s_lshl_b32 s41, s40, 13
s_add_u32 s41, s41, %d
s_add_u32 s18, s8, s41
s_addc_u32 s19, s9, 0
s_lshr_b32 s29, s28, 1
s_and_b32 s29, s29, 1
s_add_u32 s24, s24, 0x10000
s_addc_u32 s25, s25, 0
s_add_u32 s26, s26, 0x10000
s_addc_u32 s27, s27, 0
v_xor_b32 %s, 0x6000, %s'''%(WS_HOPB,v(aKr),v(aKr)))
    if XB:
        e('s_waitcnt lgkmcnt(0)\ns_sub_u32 s40, s88, s90\ns_sub_u32 s40, %d, s40\ns_cbranch_scc1 L_c_nodB\ns_mul_i32 s40, s40, 37\ns_lshr_b32 s40, s40, 10'%(XB))
        a.label('L_c_dBl')
        e('s_sub_u32 s40, s40, 1\ns_cbranch_scc0 L_c_dBl')
        a.label('L_c_nodB')
    else:
        delay(max(0,dB-80))
    xdelay('B')
    def dmaB():
        e('global_load_lds_dwordx4 %s, s[92:93] sc1'%v(gB0))
        e('global_load_lds_dwordx4 %s, s[92:93] offset:1024 sc1'%v(gB0))
    CK=VX1
    dmaB()
    delay(pB)
    dmaB()
    a.label('L_c_loopB')
    e('s_waitcnt vmcnt(2)')
    lg.reset()
    for j in range(4): rdF(j)
    first=True
    for j in range(4):
        lg.wait(('A',j))
        for r in range(4):
            if first: e('v_xor_b32 v%d, s30, v%d'%(CK,fr(j)+r)); first=False
            else: e('v_bitop3_b32 v%d, v%d, v%d, s30 bitop3:0xf6'%(CK,CK,fr(j)+r))
    e('v_and_b32 v%d, 1, v%d'%(CK,CK))
    e('v_cmp_ne_u32 vcc, 0, v%d'%CK)
    if ts or cnt or trace: e('s_add_u32 s49, s49, 1')
    e('s_cbranch_vccnz L_c_failB')
    TS('pollB')
    if ts:
        e('s_and_b32 s40, s28, 7\ns_cmp_eq_u32 s40, 5\ns_cbranch_scc0 L_c_nodump')
        e('s_waitcnt lgkmcnt(0)')
        e('s_lshl_b32 s40, s5, 6\ns_add_u32 s40, s40, s28\ns_lshl_b32 s40, s40, 2\ns_add_u32 s40, s40, s4\ns_lshl_b32 s40, s40, 7\ns_add_u32 s40, s40, %d'%(WS_O))
        e('v_mov_b32 v34, s40\ns_mov_b64 exec, 1')
        n=tsn[0]
        for i in range(n):
            e('v_mov_b32 v35, s%d'%(50+2*i)); e('global_store_dword v34, v35, s[8:9] offset:%d'%(4*i))
        e('v_mov_b32 v35, s48\nglobal_store_dword v34, v35, s[8:9] offset:120\nv_mov_b32 v35, s49\nglobal_store_dword v34, v35, s[8:9] offset:124')
        e('s_mov_b64 exec, -1')
        a.label('L_c_nodump')
    a.fence()
    hop_names=list(a.tsnames); a.tsnames=[]; tsn[0]=0
    a.label('L_c_step')
    TS('top')
    if trace:
        e('s_mov_b32 m0, s28\nv_writelane_b32 v7, s94, m0\nv_writelane_b32 v11, s48, m0\nv_writelane_b32 v15, s49, m0\ns_memtime s[94:95]')
    if stub:
        delay(stub)
        e('s_cmp_eq_u32 s28, %d\ns_cbranch_scc1 L_c_done'%(nsteps-1))
        e('s_mov_b32 s41, 0')
    def QKs(j):
        lg.wait(('A',j))
        SMF(ACCQ,v(fr(j),4),WQ(j))
    if stub:
        e('s_barrier'); e('s_branch L_c_stub')
    seq0=[(ACCQ,0,WQ),(ACCK,0,WK),(ACCQ,1,WQ),(ACCK,1,WK)]
    for i,(acc,j,W) in enumerate(seq0):
        if i==barpos:
            e('s_barrier')
            TS('bar')
            for jj in (4,5,6,7): rdF(jj)
        SMF(acc,v(fr(j),4),W(j))
    if barpos>=4:
        e('s_barrier')
        TS('bar')
        for jj in (4,5,6,7): rdF(jj)
    if sync:
        e('v_readfirstlane_b32 s40, v%d'%KVF)
    def rdW(j,hh):
        e('ds_read_b128 %s, %s offset:%d'%(v(RING[(j-8)%3]+4*hh,4),v(aWo),(j-8)*2048+hh*1024)); lg.issue(('Q',j,hh))
    QP=SX1; KP=SX1+2
    def Qs(j):
        lg.wait(('A',j))
        if j>=8: lg.wait(('Q',j,1))
        SMF(ACCQ,v(fr(j),4),WQ(j) if j<8 else v(RING[(j-8)%3],8))
        if j<6:
            rdF(4+2*j); rdF(5+2*j)
        if 8<=j<13: rdW(j+3,0); rdW(j+3,1)
    def Ks(j):
        SMF(ACCK,v(fr(j),4),WK(j))
        if j==2:
            e('s_and_b32 s41, s28, 1\ns_lshl_b32 s41, s41, 13\ns_sub_u32 s41, %d, s41\ns_add_u32 m0, s43, s41'%L_K1)
            if sync:
                e('s_cmp_ge_u32 s40, 128\ns_cbranch_scc0 L_c_kvspin')
                a.label('L_c_kvgo')
        if j==4 and sync:
            e('s_cmp_eq_u32 s28, 0\ns_cbranch_scc1 L_c_nodrain\ns_waitcnt vmcnt(0)')
            a.label('L_c_nodrain')
        if j==5: e('global_load_dwordx4 %s, %s, s[22:23] sc1'%(v(VX1,4),v(gV)))
        if j==6: e('global_load_dwordx4 %s, %s, s[22:23] offset:64 sc1'%(v(VX2,4),v(gV)))
        if j==7: e('global_load_lds_dwordx4 %s, s[20:21] sc1'%v(gB0))
        if j==8: e('global_load_lds_dwordx4 %s, s[20:21] offset:1024 sc1'%v(gB0))
        if j==9: e('s_add_u32 s20, s20, 0x40000\ns_addc_u32 s21, s21, 0')
        if j==10: e('s_add_u32 s22, s22, 0x40000\ns_addc_u32 s23, s23, 0')
        if sync and j==11:
            e('s_mov_b64 exec, 1')
            e('s_add_u32 s41, s28, 2\ns_lshr_b32 s41, s41, 2\ns_min_u32 s41, s41, 15\ns_lshl_b32 s41, s41, 7\ns_add_u32 s82, s84, s41\ns_addc_u32 s83, s85, 0')
            e('global_load_dword v%d, %s, s[82:83] sc1\ns_mov_b64 exec, -1'%(KVF,v(gB0)))
    for j in range(2,16):
        Qs(j); Ks(j)
    TS('QK')
    def Vs(j): SMF(ACCV,v(fr(j),4),WV(j))
    def rdQ1(base,off,ks,hh,tag):
        e('ds_read_b64_tr_b16 %s, %s offset:%d'%(v(base+4*ks+2*hh,2),v(aQr),off+ks*544+hh*16)); lg.issue((tag,ks,hh))
    def rdQ(base,off,ks,tag):
        rdQ1(base,off,ks,0,tag); rdQ1(base,off,ks,1,tag)
    kreg={0:KXR,4:KXR+4,1:KXR+8,5:KXR+12,2:AF,6:AF+4,3:AF+8,7:AF+12}
    def rdK(f):
        e('ds_read_b128 %s, %s offset:%d'%(v(kreg[f],4),v(aKr),f*1024)); lg.issue(('K',f))
    def Sx(f,first):
        ks=f&3; tau=f>>2
        lg.wait(('K',f)); lg.wait(('q',ks,1))
        acc=SX0 if tau==0 else SX1
        e('v_mfma_f32_16x16x32_bf16 %s, %s, %s, %s'%(v(acc,4),v(kreg[f],4),v(QF+4*ks,4),'0' if first else v(acc,4)))
    def Sm(ks):
        lg.wait(('k',ks,1))
        e('v_mfma_f32_16x16x32_bf16 %s, %s, %s, %s'%(v(SM,4),v(KF+4*ks,4),v(QF+4*ks,4),'0' if ks==0 else v(SM,4)))
    Vs(0)
    e('v_cvt_pk_bf16_f32 %s, %s, %s'%(v(QP),v(ACCQ),v(ACCQ+1)))
    e('v_cvt_pk_bf16_f32 %s, %s, %s'%(v(QP+1),v(ACCQ+2),v(ACCQ+3)))
    e('ds_write_b64 %s, %s'%(v(aQw),v(QP,2))); lg.issue('qw')
    Vs(1)
    e('v_cvt_pk_bf16_f32 %s, %s, %s'%(v(KP),v(ACCK),v(ACCK+1)))
    e('v_cvt_pk_bf16_f32 %s, %s, %s'%(v(KP+1),v(ACCK+2),v(ACCK+3)))
    e('ds_write_b64 %s, %s offset:2176'%(v(aQw),v(KP,2))); lg.issue('kw')
    Vs(2)
    e('global_store_dwordx2 %s, %s, s[24:25] sc1'%(v(gVM),v(KP,2)))
    Vs(3); rdK(0); rdK(4)
    Vs(4); rdK(1); rdK(5)
    Vs(5); Vs(6); Vs(7)
    lg.wait('kw')
    TS('prebar')
    e('s_barrier')
    rdQ(QF,0,0,'q')
    Vs(8); rdQ(QF,0,1,'q')
    Vs(9); rdQ(QF,0,2,'q')
    if sync:
        e('v_mov_b32 v%d, s28\ns_mov_b64 exec, 1\nglobal_store_dword %s, v%d, s[86:87] sc1\ns_mov_b64 exec, -1'%(ACCQ,v(gB0),ACCQ))
    Vs(10); rdQ(QF,0,3,'q')
    Vs(11); rdQ(KF,2176,0,'k')
    Vs(12); rdQ(KF,2176,1,'k'); rdK(2)
    Vs(13); rdQ(KF,2176,2,'k'); rdK(6)
    Vs(14); rdQ(KF,2176,3,'k'); rdK(3)
    Vs(15); rdK(7)
    TS('preS')
    seq=SEQ
    bslot={}
    def rdB1(i,slot,hh):
        t,b=seq[i]; bslot[i]=slot
        e('ds_read_b128 %s, %s offset:%d'%(v(slot+4*hh,4),v(aWo),16384+LSET.index(i)*2048+hh*1024)); lg.issue(('W',i,hh))
    def rdB(i,slot): rdB1(i,slot,0); rdB1(i,slot,1)
    pre=[(0,KXR),(1,KXR+8),(2,KF),(3,KF+8),(4,AF),(5,AF+8)]+([(6,QF),(7,QF+8)] if 6 in LSET else [])
    pl=[]
    for i,sl in pre: pl+= [(i,sl,0),(i,sl,1)]
    def fill(n=1):
        for _ in range(n):
            if pl: rdB1(*pl.pop(0))
    M_=ACCQ; T_=ACCQ+1; NMC=ACCQ+2
    Sx(0,True); Sx(4,True); Sx(1,False); Sx(5,False)
    Sm(0); fill(2); Sm(1); fill(2); Sm(2); Sm(3)
    Sx(2,False); fill(2); Sx(6,False); fill(2)
    Sx(3,False)
    e('v_max3_f32 v%d, v%d, v%d, v%d'%(T_,SM,SM+1,SM+2))
    Sx(7,False)
    e('v_max_f32 v%d, v%d, v%d'%(T_,T_,SM+3))
    TS('VS')
    e('v_max3_f32 v%d, v%d, v%d, v%d'%(M_,SX0,SX0+1,SX0+2))
    e('v_max3_f32 v%d, v%d, v%d, v%d'%(T_,T_,SX0+3,M_))
    e('v_max3_f32 v%d, v%d, v%d, v%d'%(M_,SX1,SX1+1,SX1+2))
    e('v_max3_f32 v%d, v%d, v%d, v%d'%(M_,M_,SX1+3,T_))
    e('v_mov_b32 v%d, v%d'%(T_,M_))
    e('v_permlane32_swap_b32 v%d, v%d'%(M_,T_))
    e('v_max_f32 v%d, v%d, v%d'%(M_,M_,T_))
    e('v_mov_b32 v%d, v%d'%(T_,M_))
    e('v_permlane16_swap_b32 v%d, v%d'%(M_,T_))
    e('v_max_f32 v%d, v%d, v%d'%(M_,M_,T_))
    e('v_mul_f32 v%d, s32, v%d'%(NMC,M_))
    TS('max')
    pkf=lambda r: e('v_pk_fma_f32 v[%d:%d], v[%d:%d], s[32:33], v[%d:%d] op_sel_hi:[1,1,0] neg_lo:[0,0,1] neg_hi:[0,0,1]'%(r,r+1,r,r+1,NMC,NMC+1))
    for r in (SX0,SX0+2,SX1,SX1+2): pkf(r)
    for r in range(SX0,SX0+8): e('v_exp_f32 v%d, v%d'%(r,r))
    PX=ACCK
    pkf(SM); pkf(SM+2)
    e('v_cvt_pk_bf16_f32 v%d, v%d, v%d'%(PX,SX0,SX0+1))
    e('v_cvt_pk_bf16_f32 v%d, v%d, v%d'%(PX+1,SX0+2,SX0+3))
    e('v_cvt_pk_bf16_f32 v%d, v%d, v%d'%(PX+2,SX1,SX1+1))
    e('v_cvt_pk_bf16_f32 v%d, v%d, v%d'%(PX+3,SX1+2,SX1+3))
    TS('expx')
    e('s_waitcnt vmcnt(%d)'%(3 if sync else 2))
    T1=SX0; T2=SX1; L_=VX2
    e('v_exp_f32 v%d, v%d'%(SM,SM))
    e('v_mfma_f32_16x16x32_bf16 %s, %s, %s, 0'%(v(T2,4),v(VX2,4),v(PX,4)))
    fill()
    e('v_exp_f32 v%d, v%d'%(SM+1,SM+1))
    e('v_mfma_f32_16x16x32_bf16 %s, %s, %s, 0'%(v(T1,4),v(VX1,4),v(PX,4)))
    fill()
    e('v_exp_f32 v%d, v%d'%(SM+2,SM+2))
    e('v_mfma_f32_16x16x32_bf16 %s, %s, %s, 0'%(v(L_,4),v(ONES,4),v(PX,4)))
    fill()
    e('v_exp_f32 v%d, v%d'%(SM+3,SM+3))
    VP=ACCV
    e('v_cvt_pk_bf16_f32 v%d, v%d, v%d'%(VP,ACCV,ACCV+1))
    PM1=ACCQ; PM2=ACCQ+2
    e('v_cvt_pk_bf16_f32 v%d, v%d, v%d'%(PM2,SM,SM+1))
    e('v_cvt_pk_bf16_f32 v%d, v%d, v%d'%(PM2+1,SM+2,SM+3))
    e('v_cvt_pk_bf16_f32 v%d, v%d, v%d'%(VP+1,ACCV+2,ACCV+3))
    e('v_cndmask_b32 v%d, 0, v%d, s[34:35]'%(PM1,PM2))
    e('v_cndmask_b32 v%d, 0, v%d, s[34:35]'%(PM1+1,PM2+1))
    e('v_mfma_f32_16x16x16_bf16 %s, %s, %s, %s'%(v(L_,4),v(ONES,2),v(PM1,2),v(L_,4)))
    e('v_cndmask_b32 v%d, 0, v%d, s[36:37]'%(PM2,PM2))
    e('v_cndmask_b32 v%d, 0, v%d, s[36:37]'%(PM2+1,PM2+1))
    e('v_mfma_f32_16x16x16_bf16 %s, %s, %s, %s'%(v(T1,4),v(VP,2),v(PM1,2),v(T1,4)))
    fill(1)
    WA=[ACCQ,ACCK,ACCV,VX1]
    e('v_mfma_f32_16x16x16_bf16 %s, %s, %s, %s'%(v(T2,4),v(VP,2),v(PM2,2),v(T2,4)))
    fill(1)
    e('global_store_dwordx2 %s, %s, s[26:27] sc1'%(v(gVM),v(VP,2)))
    e('v_mov_b64 v[%d:%d], 0\nv_mov_b64 v[%d:%d], 0'%(WA[1],WA[1]+1,WA[1]+2,WA[1]+3))
    TS('pv')
    e('s_cmp_eq_u32 s28, %d\ns_cbranch_scc1 L_c_done'%(nsteps-1))
    fill(16)
    for t in (3,0):
        e('v_mov_b64 v[%d:%d], 0\nv_mov_b64 v[%d:%d], 0'%(WA[t],WA[t]+1,WA[t]+2,WA[t]+3))
    e('v_rcp_f32 v%d, v%d'%(L_,L_))
    e('v_mov_b64 v[%d:%d], 0\nv_mov_b64 v[%d:%d], 0'%(WA[2],WA[2]+1,WA[2]+2,WA[2]+3))
    for r in (T1,T1+2,T2,T2+2):
        e('v_pk_mul_f32 v[%d:%d], v[%d:%d], v[%d:%d] op_sel_hi:[1,0]'%(r,r+1,r,r+1,L_,L_+1))
    O4=SM
    for r in range(4):
        e('v_cvt_pk_bf16_f32 v%d, v%d, v%d'%(O4+r,T1+r,T2+r))
    if ob64:
        e('v_cndmask_b32 v%d, v%d, v%d, s[80:81]'%(T1,O4,O4+2))
        e('v_cndmask_b32 v%d, v%d, v%d, s[80:81]'%(T1+1,O4+1,O4+3))
        e('ds_write_b64 v%d, %s offset:%d'%(16+0, v(T1,2), L_M)) if False else None
        e('v_add_u32 v%d, %s, v%d'%(T1+2,v(aMb[0]),T1+3)) if False else None
        e('ds_write_b64 %s, %s offset:%d'%(v(aOw8),v(T1,2),L_M)); lg.issue('ow')
    else:
        e('ds_write_b128 %s, %s offset:%d'%(v(aMb[0]),v(O4,4),L_M)); lg.issue('ow')
    TS('SMX')
    def Wm(i,areg):
        t,b=seq[i]
        if i in LSET:
            lg.wait(('W',i,1))
            SMF(WA[t],v(areg,4),v(bslot[i],8))
        else: SMF(WA[t],v(areg,4),WOR(i))
    Wm(0,O4); Wm(1,O4); Wm(2,O4)
    lg.wait('ow')
    TS('ow')
    e('s_barrier')
    OF={1:SX0,2:SX1,3:OF3}
    for b in (1,2,3):
        e('ds_read_b128 %s, %s offset:%d'%(v(OF[b],4),v(aMb[b]),L_M)); lg.issue(('o',b))
    Wm(3,O4)
    if 14 in LSET: rdB(14,QF); rdB(15,QF+8)
    G0=KXR; G1=KXR+4
    for i in range(4,16):
        t,b=seq[i]
        lg.wait(('o',b))
        Wm(i,OF[b])
        if early:
            if i==10:
                e('v_cvt_pk_bf16_f32 v%d, v%d, v%d'%(G0,WA[0],WA[0]+1))
                e('v_cvt_pk_bf16_f32 v%d, v%d, v%d'%(G0+1,WA[0]+2,WA[0]+3))
            if i==11:
                e('v_cvt_pk_bf16_f32 v%d, v%d, v%d'%(G0+2,WA[1],WA[1]+1))
                e('v_cvt_pk_bf16_f32 v%d, v%d, v%d'%(G0+3,WA[1]+2,WA[1]+3))
                e('v_and_or_b32 v%d, v%d, -2, s29'%(G0,G0))
                e('v_and_or_b32 v%d, v%d, -2, s29'%(G0+3,G0+3))
                e('global_store_dwordx4 %s, %s, s[16:17]%s'%(v(gA0),v(G0,4),st))
            continue
        if i==11:
            e('v_cvt_pk_bf16_f32 v%d, v%d, v%d'%(G0,WA[0],WA[0]+1))
        if i==12:
            e('v_cvt_pk_bf16_f32 v%d, v%d, v%d'%(G0+1,WA[0]+2,WA[0]+3))
        if i==13:
            e('v_cvt_pk_bf16_f32 v%d, v%d, v%d'%(G0+2,WA[1],WA[1]+1))
            e('v_cvt_pk_bf16_f32 v%d, v%d, v%d'%(G0+3,WA[1]+2,WA[1]+3))
        if i==14:
            e('v_and_or_b32 v%d, v%d, -2, s29'%(G0,G0))
            e('global_store_dwordx4 %s, %s, s[16:17]%s'%(v(gA0),v(G0,4),st))
    a.label('L_c_stub')
    if stub:
        e('v_and_or_b32 v%d, v%d, -2, s29'%(G0,G0))
        e('global_store_dwordx4 %s, %s, s[16:17]%s'%(v(gA0),v(G0,4),st))
        delay(64)
    e('v_cvt_pk_bf16_f32 v%d, v%d, v%d'%(G1,WA[2],WA[2]+1))
    e('v_cvt_pk_bf16_f32 v%d, v%d, v%d'%(G1+1,WA[2]+2,WA[2]+3))
    e('v_cvt_pk_bf16_f32 v%d, v%d, v%d'%(G1+2,WA[3],WA[3]+1))
    e('v_cvt_pk_bf16_f32 v%d, v%d, v%d'%(G1+3,WA[3]+2,WA[3]+3))
    e('v_and_or_b32 v%d, v%d, -2, s29'%(G1,G1))
    e('v_and_or_b32 v%d, v%d, -2, s29'%(G1+3,G1+3))
    e('global_store_dwordx4 %s, %s, s[46:47]%s'%(v(gA0),v(G1,4),st))
    TS('WO')
    if XB: e('s_memtime s[90:91]')
    assert (not ts) or tsn[0]==NST, tsn[0]
    a.tsnames=a.tsnames+hop_names
    e('s_branch L_c_hops')
    a.label('L_c_failA'); a.hist=[]
    e('s_nop 3')
    for i,(r0,r1) in enumerate(preA[1:]):
        rem=2*(len(preA)-2-i)
        redA(r0,r1,rem+1,rem,'L_c_okA')
        a.fence()
    a.label('L_c_pollA')
    ldA(R0,R1)
    redA(R0,R1,1,0,'L_c_okA')
    e('s_add_u32 s44, s44, 1\ns_cmp_gt_u32 s44, 200000\ns_cbranch_scc1 L_c_done\ns_branch L_c_pollA')
    a.label('L_c_failB'); a.hist=[]
    e('global_load_lds_dwordx4 %s, s[92:93] sc1'%v(gB0))
    e('global_load_lds_dwordx4 %s, s[92:93] offset:1024 sc1'%v(gB0))
    e('s_add_u32 s44, s44, 1\ns_cmp_gt_u32 s44, 200000\ns_cbranch_scc1 L_c_done\ns_branch L_c_loopB')
    if sync:
        a.label('L_c_kvspin'); a.hist=[]
        e('s_add_u32 s41, s28, 1\ns_lshr_b32 s41, s41, 2\ns_min_u32 s41, s41, 15\ns_lshl_b32 s41, s41, 7\ns_add_u32 s82, s84, s41\ns_addc_u32 s83, s85, 0')
        e('s_mov_b64 exec, 1\nglobal_load_dword v%d, %s, s[82:83] sc1\ns_mov_b64 exec, -1\ns_waitcnt vmcnt(0)\nv_readfirstlane_b32 s40, v%d'%(KVF,v(gB0),KVF))
        e('s_add_u32 s44, s44, 1\ns_cmp_gt_u32 s44, 200000\ns_cbranch_scc1 L_c_done\ns_cmp_ge_u32 s40, 128\ns_cbranch_scc0 L_c_kvspin\ns_branch L_c_kvgo')
    a.label('L_c_done'); a.hist=[]
    e('s_waitcnt vmcnt(0)')
    if sync:
        e('s_barrier')
        e('s_lshl_b32 s41, s5, 7\ns_add_u32 s41, s41, %d\nv_mov_b32 v34, s41\nv_mov_b32 v35, 64'%FL_PROG)
        e('s_mov_b64 exec, 1\nglobal_store_dword v34, v35, s[8:9] sc1\ns_mov_b64 exec, -1\ns_waitcnt vmcnt(0)')
    if trace:
        e('s_lshl_b32 s40, s5, 2\ns_add_u32 s40, s40, s4\ns_mul_i32 s40, s40, 768\ns_add_u32 s40, s40, %d'%(WS_O))
        e('v_mbcnt_lo_u32_b32 v64, -1, 0\nv_mbcnt_hi_u32_b32 v64, -1, v64\nv_lshlrev_b32 v64, 2, v64\nv_add_u32 v64, s40, v64')
        e('global_store_dword v64, v7, s[8:9]\nglobal_store_dword v64, v11, s[8:9] offset:256\nglobal_store_dword v64, v15, s[8:9] offset:512\ns_waitcnt vmcnt(0)')
    if cnt:
        e('s_lshl_b32 s40, s5, 2\ns_add_u32 s40, s40, s4\ns_lshl_b32 s40, s40, 3\ns_add_u32 s40, s40, %d'%(WS_G))
        e('v_mov_b32 v64, s40\nv_mov_b32 v66, s48\nv_mov_b32 v67, s49\ns_mov_b64 exec, 1\nglobal_store_dwordx2 v64, v[66:67], s[8:9]\ns_mov_b64 exec, -1\ns_waitcnt vmcnt(0)')
```

```python
from asmgen import Asm
from layout import *
import struct, math

L_M=0; L_K0=8192; L_K1=16384; L_Q=24576; L_KT=L_Q+2176; L_TMP=30976; L_WO=32768

class Q:
    def __init__(s, asm, name, maxv): s.a=asm; s.name=name; s.q=[]; s.maxv=maxv
    def issue(s, tag): s.q.append(tag)
    def wait(s, tag):
        if tag not in s.q: return
        i=s.q.index(tag); n=len(s.q)-1-i
        n=min(n,s.maxv)
        s.a.e('s_waitcnt %s(%d)'%(s.name,n)); s.q=s.q[len(s.q)-n:] if n>0 else []
    def waitall(s):
        s.a.e('s_waitcnt %s(0)'%s.name); s.q=[]
    def reset(s): s.q=[]

def f2u(x): return struct.unpack('<I',struct.pack('<f',x))[0]

def rowconst(kb,m):
    rho=2*kb+(m>>2); u=rho&3
    return 128*(rho>>3)+64*((rho>>2)&1)+32*(m&1)+16*(u&1)+(u>>1)+2*((m&3)>>1)
for kb in range(16):
    for m in range(8):
        for gb in range(4):
            assert pi_pos(32*kb+16*(m>>2)+4*gb+(m&3))==rowconst(kb,m)+4*gb
def rowrest(j,m): return rowconst(j&3,m)
for w in range(4):
    for j in range(16):
        for m in range(8):
            assert rowconst((4*w+j)&15,m)==128*((w+(j>>2))&3)+rowrest(j,m)

def v(a,n=1): return 'v%d'%a if n==1 else 'v[%d:%d]'%(a,a+n-1)
def ag(a,n=1): return 'a%d'%a if n==1 else 'a[%d:%d]'%(a,a+n-1)

aMb=[3,0,1,9]
IDX=2; aWo=4; aQw=5; aQr=6; aKr=8
gA0=10; gAr=12; gBw=13; gB0=14; gV=7; KVF=11; gVM=15
ONES=20; BSEL=24; TAGB=30; MASKB=31
VX1=32; AF=36; ACCQ=52; ACCK=56; ACCV=60; QF=64; KF=80; KXR=96; SX0=112; SX1=116; SM=120; VX2=16; OF3=124
RING=[120,24,112]
SEQ=[(0,0),(1,0),(2,0),(3,0),(0,1),(1,1),(0,2),(1,2),(0,3),(1,3),(2,1),(3,1),(2,2),(3,2),(2,3),(3,3)]
LSET=[0,1,2,3,4,5,14,15]
ASET=[i for i in range(16) if i not in LSET]
def set_lset(l):
    LSET[:]=l; ASET[:]=[i for i in range(16) if i not in l]
WOR=lambda i: ag(64+8*ASET.index(i),8)
WQ=lambda j: ag(8*j,8)
WK=lambda j: ag(128+8*j,8)
WV=lambda j: v(128+8*j,8)

def chain_setup(a, st, sync=False, dbgfn=None):
    e=a.e
    e('''
v_and_b32 v1, 63, v0
v_and_b32 v32, 15, v1          ; j / n / i
v_lshrrev_b32 v33, 4, v1       ; g
v_bfe_u32 v34, v1, 4, 1        ; rh
v_lshrrev_b32 v35, 5, v1       ; half
v_lshlrev_b32 v36, 4, v0       ; tid*16
s_lshl_b32 s40, s5, 13
v_add_u32 v37, s40, v36
v_mov_b32 v40, -1
v_mov_b32 v41, -1
v_mov_b32 v42, -1
v_mov_b32 v43, -1
v_add_u32 v38, 0x1000, v37
v_add_u32 v39, 0x40000, v37
v_add_u32 v44, 0x41000, v37
global_store_dwordx4 v37, v[40:43], s[8:9]{st}
global_store_dwordx4 v38, v[40:43], s[8:9]{st}
global_store_dwordx4 v39, v[40:43], s[8:9]{st}
global_store_dwordx4 v44, v[40:43], s[8:9]{st}
s_lshl_b32 s40, s5, 8
s_add_u32 s40, s40, {hb}
v_lshlrev_b32 v45, 2, v1
v_add_u32 v45, s40, v45
v_add_u32 v46, 0x2000, v45
global_store_dword v45, v40, s[8:9]{st}
global_store_dword v46, v40, s[8:9]{st}
; zero the flags area: 1 KB per chain WG (256 threads x 4 B)
s_lshl_b32 s40, s5, 10
s_add_u32 s40, s40, {fl}
v_lshlrev_b32 v45, 2, v0
v_add_u32 v45, s40, v45
v_mov_b32 v46, 0
global_store_dword v45, v46, s[8:9] sc1
'''.format(st=st,hb=WS_HOPB,fl=WS_FLAGS))
    e('s_waitcnt vmcnt(0)')
    e('''s_barrier
s_cmp_eq_u32 s4, 0
s_cbranch_scc0 L_c_noready
v_mov_b32 v38, {rdy}
v_mov_b32 v39, 1
s_mov_b64 exec, 1
global_atomic_add v38, v39, s[10:11] sc1
s_mov_b64 exec, -1
L_c_noready:'''.format(rdy=DBG_READY))
    e('s_load_dwordx2 s[88:89], s[0:1], %d'%KA_MEM0)
    e('''
v_and_b32 v64, 7, v0           ; row
v_lshrrev_b32 v65, 3, v0       ; q8 (0..31)
v_and_b32 v66, 1, v65          ; oct
v_lshrrev_b32 v67, 1, v65      ; rho (0..15)
v_lshrrev_b32 v68, 3, v67
v_lshlrev_b32 v68, 7, v68
v_bfe_u32 v69, v67, 2, 1
v_lshlrev_b32 v69, 6, v69
v_add_u32 v68, v68, v69
v_and_b32 v69, 1, v67
v_lshlrev_b32 v69, 4, v69
v_add_u32 v68, v68, v69
v_lshlrev_b32 v69, 3, v66
v_add_u32 v68, v68, v69
v_bfe_u32 v69, v67, 1, 1
v_add_u32 v68, v68, v69        ; D0
v_lshlrev_b32 v68, 1, v68
v_lshlrev_b32 v64, 10, v64
v_add_u32 v68, v68, v64
s_waitcnt lgkmcnt(0)
s_mov_b32 s90, 8192
s_mov_b32 s91, 0x00020000
''')
    for hlf in range(2):
        for n in range(8):
            e('buffer_load_ushort v%d, v68, s[88:91], 0 offen offset:%d'%(72+8*hlf+n, hlf*512+(32*(n&1)+2*(n>>1))*2))
    e('s_load_dwordx2 s[12:13], s[0:1], %d\ns_load_dwordx2 s[82:83], s[0:1], %d\ns_load_dwordx2 s[84:85], s[0:1], %d\ns_load_dwordx2 s[86:87], s[0:1], %d'%(KA_WO,KA_WQ,KA_WK,KA_WV))
    e('''
s_lshl_b32 s40, s5, 17         ; h*131072
s_lshl_b32 s41, s4, 8          ; 128*w*2
s_add_u32 s40, s40, s41
v_lshlrev_b32 v37, 2, v32      ; 4j
v_lshlrev_b32 v38, 12, v33     ; gb*4*1024
v_add3_u32 v37, v37, v38, s40
v_lshlrev_b32 {aWo}, 4, v1
s_lshl_b32 s41, s4, 15
s_add_u32 s41, s41, {lwo}
v_add_u32 {aWo}, s41, {aWo}
s_lshl_b32 s40, s5, 8          ; h*256
s_lshl_b32 s41, s4, 6          ; 64*w
s_add_u32 s40, s40, s41
v_lshlrev_b32 v36, 2, v32      ; 4j
v_lshlrev_b32 v38, 15, v33     ; gb*32768
v_add3_u32 v36, v36, v38, s40  ; voffset for Wq/Wk/Wv
s_waitcnt lgkmcnt(0)
s_mov_b32 s14, 0x400000
s_mov_b32 s15, 0x00020000
'''.format(aWo=v(aWo),lwo=L_WO))
    for b_ in range(4):
        e('s_add_u32 s41, s4, %d\ns_and_b32 s41, s41, 3\ns_lshl_b32 s%d, s41, 15'%(b_,44+b_))
    for jj in range(4):
        for m in range(8): e('s_mov_b32 s%d, %d'%(50+8*jj+m,rowrest(jj,m)*8192))
    st_list=[]
    nld=0
    e('s_mov_b64 s[100:101], s[12:13]')
    for i,(t,b_) in enumerate(SEQ):
        if i in ASET[4:]: continue
        for hh in range(2):
            for mm in range(4):
                e('s_add_u32 s41, s%d, %d'%(44+b_,(16*hh+mm)*1024+t*64))
                dst=('v%d'%(128+8*LSET.index(i)+4*hh+mm)) if i in LSET else ('a%d'%(64+8*ASET.index(i)+4*hh+mm))
                e('buffer_load_dword %s, v37, s[12:15], s41 offen'%dst)
                nld+=1
                if nld==40:
                    e('s_waitcnt vmcnt(40)')
                    for hlf in range(2):
                        for d in range(4):
                            e('v_lshl_or_b32 v%d, v%d, 16, v%d'%(96+4*hlf+d, 72+8*hlf+2*d+1, 72+8*hlf+2*d))
                    e('v_lshlrev_b32 v64, 4, v0\nv_add_u32 v65, 0x1000, v64\nds_write_b128 v64, v[96:99]\nds_write_b128 v65, v[100:103]')

            if i in LSET: st_list.append((128+8*LSET.index(i)+4*hh,16384+LSET.index(i)*2048+hh*1024))
    for j in range(8,16):
        for hh in range(2): st_list.append((192+8*(j-8)+4*hh,(j-8)*2048+hh*1024))
    def dq(r,j,m): return ('a%d'%(8*j+m)) if j<8 else ('v%d'%(192+8*(j-8)+m))
    for w in range(4):
        if w>0: a.label('L_c_wl%d'%w)
        if w<3: e('s_cmp_eq_u32 s4, %d\ns_cbranch_scc0 L_c_wl%d'%(w,w+1))
        if w>0: e('s_nop 0')
        for mat in range(3):
            e('s_mov_b64 s[12:13], s[%d:%d]'%(82+2*mat,83+2*mat))
            n=0
            for kb in range(16):
                j=(kb-4*w)&15
                if kb>0 and kb%4==0: e('s_add_u32 s12, s12, 0x100000\ns_addc_u32 s13, s13, 0\ns_sub_u32 s14, s14, 0x100000')
                for m in range(8):
                    dst=dq(0,j,m) if mat==0 else ('a%d'%(128+8*j+m) if mat==1 else 'v%d'%(128+8*j+m))
                    e('buffer_load_dword %s, v36, s[12:15], s%d offen'%(dst,50+8*(kb&3)+m))
                    n+=1
                    if mat==1 and n%2==0 and n>64:
                        k=(n-66)//2
                        if n==66: e('s_waitcnt vmcnt(60)')
                        base,off=st_list[k]
                        e('ds_write_b128 %s, %s offset:%d'%(v(aWo),v(base,4),off))
            e('s_mov_b32 s14, 0x400000')
            if mat==1: e('s_waitcnt lgkmcnt(0)')
            if mat==2:
                e('v_mov_b32 v104, %d\nv_mov_b32 v105, %d\nglobal_load_dword v106, v104, s[10:11] sc1\nglobal_load_dword v107, v105, s[8:9] sc1'%(DBG_READY,FL_P))
        if w<3: e('s_branch L_c_wld')
    a.label('L_c_wld')
    if dbgfn: dbgfn(3)
    e('''
; gB0 = w*2048 + lane*16  (hop-B DMA offset, K DMA offset)
s_lshl_b32 s43, s4, 11
v_lshlrev_b32 v64, 4, v1
v_add_u32 {gB0}, s43, v64
; idx
v_mov_b32 {IDX}, 0x8888
v_mov_b32 v64, 0xdddd
v_cmp_le_u32 vcc, 8, v32
v_cndmask_b32 {IDX}, {IDX}, v64, vcc
; lanepart = g*128 + (i&7)*16
v_and_b32 v64, 7, v32
v_lshlrev_b32 v64, 4, v64
v_lshlrev_b32 v65, 7, v33
v_add_u32 v70, v64, v65
; aQw = L_Q + w*544 + half*272 + rh*128 + j*8
s_mul_i32 s40, s4, 544
s_add_u32 s40, s40, {lq}
v_mul_u32_u24 v64, 272, v35
v_lshlrev_b32 v65, 7, v34
v_lshlrev_b32 v66, 3, v32
v_add3_u32 v64, v64, v65, v66
v_add_u32 {aQw}, s40, v64
; aQr
v_bfe_u32 v64, v1, 2, 1
v_mul_u32_u24 v64, 272, v64
v_and_b32 v65, 1, v1
v_lshlrev_b32 v65, 7, v65
v_bfe_u32 v66, v1, 3, 1
v_lshl_add_u32 v66, v33, 2, v66
v_lshlrev_b32 v66, 3, v66
v_add3_u32 v64, v64, v65, v66
v_add_u32 {aQr}, {lq}, v64
; aKr = L_K0 + lane*16
v_lshlrev_b32 v64, 4, v1
v_add_u32 {aKr}, {lk0}, v64
; gA0 = (8w + 2*half + (j>>3))*8192 + (2rh+oct)*2048 + h*64 + (j&3)*16
v_lshrrev_b32 v64, 3, v32
v_lshl_add_u32 v64, v35, 1, v64
s_lshl_b32 s40, s4, 3
v_add_u32 v64, s40, v64
v_lshlrev_b32 v64, 13, v64
v_bfe_u32 v65, v32, 2, 1
v_lshl_add_u32 v65, v34, 1, v65
v_lshlrev_b32 v65, 11, v65
v_and_b32 v66, 3, v32
v_lshlrev_b32 v66, 4, v66
v_add3_u32 v64, v64, v65, v66
s_lshl_b32 s40, s5, 6
v_add_u32 {gA0}, s40, v64
; gAr = h*8192 + w*2048 + g*256 + (i&3)*64 + (i>>2)*16
v_lshlrev_b32 v64, 8, v33
v_and_b32 v65, 3, v32
v_lshlrev_b32 v65, 6, v65
v_lshrrev_b32 v66, 2, v32
v_lshlrev_b32 v66, 4, v66
v_add3_u32 v64, v64, v65, v66
s_lshl_b32 s40, s5, 13
s_add_u32 s40, s40, s43
v_add_u32 {gAr}, s40, v64
; gBw = h*256 + (w&1)*128 + (w>>1)*64 + n*16 + g*4
s_lshl_b32 s40, s5, 8
s_and_b32 s41, s4, 1
s_lshl_b32 s41, s41, 7
s_add_u32 s40, s40, s41
s_lshr_b32 s41, s4, 1
s_lshl_b32 s41, s41, 6
s_add_u32 s40, s40, s41
v_lshlrev_b32 v64, 4, v32
v_lshl_add_u32 v64, v33, 2, v64
v_add_u32 {gBw}, s40, v64
; gV = w*2048 + j*128 + g*16
v_lshlrev_b32 v64, 7, v32
v_lshl_add_u32 v64, v33, 4, v64
v_add_u32 {gV}, s43, v64
; gVM = w*512 + lane*8
s_lshl_b32 s40, s4, 9
v_lshlrev_b32 v64, 3, v1
v_add_u32 {gVM}, s40, v64
v_mov_b32 v20, 0x3f803f80
v_mov_b32 v21, 0x3f803f80
v_mov_b32 v22, 0x3f803f80
v_mov_b32 v23, 0x3f803f80
v_mov_b32 v24, 0
v_mov_b32 v25, 0
v_mov_b32 v28, 0
v_mov_b32 v29, 0
v_and_b32 v64, 3, v32
v_mov_b32 v65, 0x3f80
v_mov_b32 v66, 0x3f800000
v_mov_b32 v26, 0
v_mov_b32 v27, 0
v_cmp_eq_u32 vcc, 0, v64
v_cndmask_b32 v26, v26, v65, vcc
v_cmp_eq_u32 vcc, 1, v64
v_cndmask_b32 v26, v26, v66, vcc
v_cmp_eq_u32 vcc, 2, v64
v_cndmask_b32 v27, v27, v65, vcc
v_cmp_eq_u32 vcc, 3, v64
v_cndmask_b32 v27, v27, v66, vcc
v_mov_b32 {MASKB}, -1
v_mov_b32 v64, -2
v_cmp_eq_u32 vcc, 0, v33
v_cndmask_b32 {MASKB}, {MASKB}, v64, vcc
'''.format(gB0=v(gB0),IDX=v(IDX),aQw=v(aQw),aQr=v(aQr),aKr=v(aKr),gA0=v(gA0),
           gAr=v(gAr),gBw=v(gBw),gV=v(gV),gVM=v(gVM),MASKB=v(MASKB),aWo=v(aWo),lq=L_Q,lk0=L_K0))
    for b in (3,2,1,0):
        e('s_add_u32 s40, s4, %d\ns_and_b32 s40, s40, 3\ns_lshl_b32 s40, s40, 11\nv_add_u32 %s, s40, v70'%(b,v(aMb[b])))
    c=(128**-0.5)*math.log2(math.e)
    e('''
s_add_u32 s16, s8, {ha}
s_addc_u32 s17, s9, 0
s_add_u32 s18, s8, {hb}
s_addc_u32 s19, s9, 0
s_lshl_b32 s40, s5, 13
s_add_u32 s20, s8, {kx}
s_addc_u32 s21, s9, 0
s_add_u32 s20, s20, s40
s_addc_u32 s21, s21, 0
s_add_u32 s22, s8, {vx}
s_addc_u32 s23, s9, 0
s_add_u32 s22, s22, s40
s_addc_u32 s23, s23, 0
s_lshl_b32 s40, s5, 11
s_add_u32 s24, s8, {km}
s_addc_u32 s25, s9, 0
s_add_u32 s24, s24, s40
s_addc_u32 s25, s25, 0
s_add_u32 s26, s8, {vm}
s_addc_u32 s27, s9, 0
s_add_u32 s26, s26, s40
s_addc_u32 s27, s27, 0
s_mov_b32 s28, 0
s_mov_b32 s29, 0
s_mov_b32 s30, 0               ; expected tag of the M image (previous step)
s_mov_b32 s31, 0               ; tag check enable
s_mov_b32 s32, {c}
s_mov_b32 s33, {c}
s_mov_b32 s34, -1
s_mov_b32 s35, 0
s_mov_b32 s36, 0
s_mov_b32 s37, -1
s_mov_b32 s38, 0x000f000f
s_mov_b32 s39, 0x000f000f
s_add_u32 s46, s16, 0x8000     ; second A-store base
s_addc_u32 s47, s17, 0
s_mov_b64 s[92:93], s[18:19]
s_mov_b32 s45, 0
s_lshl_b32 s40, s5, 7
s_add_u32 s40, s40, {prog}
s_sub_u32 s40, s40, s43
s_add_u32 s86, s8, s40
s_addc_u32 s87, s9, 0          ; PROG[h] - w*2048
s_sub_u32 s40, {flp}, s43
s_add_u32 s84, s8, s40
s_addc_u32 s85, s9, 0          ; FL_P - w*2048
'''.format(ha=WS_HOPA,hb=WS_HOPB,kx=WS_KX,vx=WS_VX,km=WS_KM,vm=WS_VM,c=f2u(c),prog=FL_PROG,flp=FL_P))
    if dbgfn:
        e('s_waitcnt vmcnt(0)'); dbgfn(2)
    for r in range(ACCQ,ACCQ+12): e('v_mov_b32 v%d, 0'%r)
    e('''
s_mov_b32 s44, 0
s_waitcnt vmcnt(0)
v_readfirstlane_b32 s40, v106
v_readfirstlane_b32 s41, v107
s_cmp_ge_u32 s40, 32
s_cselect_b32 s40, s41, 0
s_cmp_ge_u32 s40, {kvneed}
s_cbranch_scc1 L_c_kvok
L_c_waitready:
v_mov_b32 v64, {rdy}
global_load_dword v65, v64, s[10:11] sc1
s_waitcnt vmcnt(0)
v_readfirstlane_b32 s40, v65
s_cmp_ge_u32 s40, 32
s_cbranch_scc1 L_c_ready
s_add_u32 s44, s44, 1
s_cmp_gt_u32 s44, 200000
s_cbranch_scc1 L_c_done
s_sleep 4
s_branch L_c_waitready
L_c_ready:
'''.format(rdy=DBG_READY,kvneed=(128 if sync else 0x7fffffff)))
    if not sync: a.raw('s_branch L_c_kvok')
    if sync:
        e('''
L_c_waitkv:
v_mov_b32 v64, {f}
global_load_dword v65, v64, s[8:9] sc1
s_waitcnt vmcnt(0)
v_readfirstlane_b32 s40, v65
s_cmp_ge_u32 s40, 128
s_cbranch_scc1 L_c_kvok
s_add_u32 s44, s44, 1
s_cmp_gt_u32 s44, 200000
s_cbranch_scc1 L_c_done
s_sleep 4
s_branch L_c_waitkv
'''.format(f=FL_P))
    a.label('L_c_kvok')
    e('''
s_add_u32 m0, s43, {k0}
s_nop 0
global_load_lds_dwordx4 {gK}, s[20:21] sc1
global_load_lds_dwordx4 {gK}, s[20:21] offset:1024 sc1
s_add_u32 s20, s20, 0x40000
s_addc_u32 s21, s21, 0
v_mov_b32 v{kvf}, 128
s_mov_b64 s[12:13], s[100:101]
s_mov_b32 s14, 0x400000
'''.format(k0=L_K0,gK=v(gB0),kvf=KVF))
    for b_ in range(4):
        e('s_add_u32 s41, s4, %d\ns_and_b32 s41, s41, 3\ns_lshl_b32 s%d, s41, 15'%(b_,50+b_))
    for i in ASET[4:]:
        t,b_=SEQ[i]
        for hh in range(2):
            for mm in range(4):
                e('s_add_u32 s41, s%d, %d'%(50+b_,(16*hh+mm)*1024+t*64))
                e('buffer_load_dword a%d, v37, s[12:15], s41 offen'%(64+8*ASET.index(i)+4*hh+mm))
    e('s_waitcnt vmcnt(32) lgkmcnt(0)\ns_barrier')


def chain_loop(a, st, nsteps=64, ts=False, dA=0, dB=0, stub=0, dA2=0, dB2=0, cnt=False, sync=False, fp=48, fpB=40, nA=1, pA=120, nB=1, pB=120, trace=False, big=0, nbig=4, XB=0, sh=4, ob64=False, barpos=1, early=True, hafast=False, sA=0, btag='last'):
    e=a.e
    lg=Q(a,'lgkmcnt',15)
    tsn=[0]
    def TS(name=None):
        if not ts: return
        i=tsn[0]; tsn[0]+=1
        assert i<22
        e('s_memtime s[%d:%d]'%(50+2*i,51+2*i))
        a.tsnames.append(name)
    a.tsnames=[]
    def delay(n):
        for _ in range(n//4): e('v_mov_b32 v34, v35')
    if ts or cnt or trace: e('s_mov_b32 s48, 0\ns_mov_b32 s49, 0\ns_mov_b32 s94, 0')
    FRB=[KXR,QF,KF,AF]
    def fr(j): return FRB[j>>2]+4*(j&3)
    def rdF(j):
        e('ds_read_b128 %s, %s offset:%d'%(v(fr(j),4),v(aMb[j>>2]),L_M+(j&3)*512)); lg.issue(('A',j))
    SMF=lambda acc,A,B: e('v_smfmac_f32_16x16x64_bf16 %s, %s, %s, %s'%(v(acc,4),A,B,v(IDX)))
    for j in range(4): rdF(j)
    e('s_waitcnt lgkmcnt(0)')
    for j in (8,9,10):
        for hh in range(2): e('ds_read_b128 %s, %s offset:%d'%(v(RING[(j-8)%3]+4*hh,4),v(aWo),(j-8)*2048+hh*1024))
    e('s_waitcnt lgkmcnt(0)'); lg.reset()
    e('s_branch L_c_step')
    NST=12 if ts else 0
    tsn[0]=NST
    a.label('L_c_hops'); a.hist=[]
    for r in range(ACCQ,ACCQ+12,2): e('v_mov_b64 v[%d:%d], 0'%(r,r+1))
    e('v_mov_b64 v[24:25], 0\nv_mov_b64 v[26:27], 0\nv_mov_b64 v[28:29], 0')
    for k,(reg,val) in enumerate(((26,'0x3f80'),(26,'0x3f800000'),(27,'0x3f80'),(27,'0x3f800000'))):
        m='0x%x'%(0x11111111<<k)
        e('s_mov_b32 exec_lo, %s\ns_mov_b32 exec_hi, %s\nv_mov_b32 v%d, %s'%(m,m,reg,val))
    e('s_mov_b64 exec, -1')
    e('s_mov_b32 m0, s43')
    if sA:
        e('s_bitcmp1_b32 s5, 2\ns_cbranch_scc0 L_c_skipdA')
        delay(sA)
        a.label('L_c_skipdA')
    delay(max(0,dA-104-sA))
    def xdelay(tag):
        if not big: return
        e('s_cmp_lt_u32 s28, %d\ns_cbranch_scc0 L_c_nox%s'%(nbig,tag))
        delay(big)
        a.label('L_c_nox%s'%tag)
    xdelay('A')
    R0=AF; R1=AF+4; DA=AF+8; DB=AF+12; S0=QF; S1=QF+4
    def ldA(r0,r1):
        e('global_load_dwordx4 %s, %s, s[16:17] sc1'%(v(r0,4),v(gAr)))
        e('global_load_dwordx4 %s, %s, s[16:17] offset:1024 sc1'%(v(r1,4),v(gAr)))
    def redA(r0,r1,n0,n1,ok,inv=False):
        e('s_waitcnt vmcnt(%d)'%n0)
        e('v_mfma_f32_16x16x32_bf16 %s, %s, %s, 0'%(v(DA,4),v(r0,4),v(BSEL+2,4)))
        e('v_mfma_f32_16x16x32_bf16 %s, %s, %s, 0'%(v(DB,4),v(r0,4),v(BSEL,4)))
        e('v_xor_b32 v80, s29, v%d'%r0)
        e('s_waitcnt vmcnt(%d)'%n1)
        e('v_mfma_f32_16x16x32_bf16 %s, %s, %s, %s'%(v(DA,4),v(r1,4),v(BSEL+2,4),v(DA,4)))
        e('v_mfma_f32_16x16x32_bf16 %s, %s, %s, %s'%(v(DB,4),v(r1,4),v(BSEL,4),v(DB,4)))
        e('v_bitop3_b32 v80, v80, v%d, s29 bitop3:0xf6'%r1)
        e('v_and_b32 v80, 1, v80')
        e('v_cmp_ne_u32 vcc, 0, v80')
        if ts or cnt or trace: e('s_add_u32 s48, s48, 1')
        e(('s_cbranch_vccnz %s' if inv else 's_cbranch_vccz %s')%ok)
    preA=[(R0,R1),(QF,QF+4),(QF+8,QF+12)][:nA]
    for i,(r0,r1) in enumerate(preA):
        ldA(r0,r1)
        if i+1<len(preA): delay(pA)
    rem=2*(len(preA)-1)
    redA(R0,R1,rem+1,rem,'L_c_failA',inv=True)
    a.label('L_c_okA')
    TS('pollA')
    if XB: e('s_memtime s[88:89]')
    e('s_nop 3')
    e('v_pk_add_f32 v[%d:%d], v[%d:%d], v[%d:%d]'%(DA,DA+1,DA,DA+1,DA+2,DA+3))
    e('v_pk_add_f32 v[%d:%d], v[%d:%d], v[%d:%d]'%(DB,DB+1,DB,DB+1,DB+2,DB+3))
    e('v_add_f32 v%d, v%d, v%d'%(DA,DA,DA+1))
    e('v_add_f32 v%d, v%d, v%d'%(DB,DB,DB+1))
    e('v_cvt_pk_bf16_f32 v%d, v%d, v%d'%(DA,DA,DB))
    e('v_and_or_b32 v%d, v%d, -2, s29'%(DA,DA))
    e('s_mov_b64 exec, s[38:39]')
    e('global_store_dword %s, v%d, s[18:19]%s'%(v(gBw),DA,st))
    e('s_mov_b64 exec, -1')
    TS('HA')
    lg.reset()
    for j in (8,9,10):
        for hh in range(2): e('ds_read_b128 %s, %s offset:%d'%(v(RING[(j-8)%3]+4*hh,4),v(aWo),(j-8)*2048+hh*1024))
    e('''s_mov_b64 s[92:93], s[18:19]
s_mov_b32 s30, s29
s_mov_b32 s31, 1
s_add_u32 s28, s28, 1
s_and_b32 s40, s28, 1
s_lshl_b32 s41, s40, 18
s_add_u32 s16, s8, s41
s_addc_u32 s17, s9, 0
s_add_u32 s46, s16, 0x8000
s_addc_u32 s47, s17, 0
s_lshl_b32 s41, s40, 13
s_add_u32 s41, s41, %d
s_add_u32 s18, s8, s41
s_addc_u32 s19, s9, 0
s_lshr_b32 s29, s28, 1
s_and_b32 s29, s29, 1
s_add_u32 s24, s24, 0x10000
s_addc_u32 s25, s25, 0
s_add_u32 s26, s26, 0x10000
s_addc_u32 s27, s27, 0
v_xor_b32 %s, 0x6000, %s'''%(WS_HOPB,v(aKr),v(aKr)))
    if XB:
        e('s_waitcnt lgkmcnt(0)\ns_sub_u32 s40, s88, s90\ns_sub_u32 s40, %d, s40\ns_cbranch_scc1 L_c_nodB\ns_mul_i32 s40, s40, 37\ns_lshr_b32 s40, s40, 10'%(XB))
        a.label('L_c_dBl')
        e('s_sub_u32 s40, s40, 1\ns_cbranch_scc0 L_c_dBl')
        a.label('L_c_nodB')
    else:
        delay(max(0,dB-80))
    xdelay('B')
    def dmaB():
        e('global_load_lds_dwordx4 %s, s[92:93] sc1'%v(gB0))
        e('global_load_lds_dwordx4 %s, s[92:93] offset:1024 sc1'%v(gB0))
    CK=VX1
    dmaB()
    delay(pB)
    dmaB()
    a.label('L_c_loopB')
    e('s_waitcnt vmcnt(2)')
    lg.reset()
    for j in range(4): rdF(j)
    first=True
    for j in range(4):
        lg.wait(('A',j))
        for r in (range(4) if btag=='all' else ((0,3) if btag=='ends' else (3,))):
            if first: e('v_xor_b32 v%d, s30, v%d'%(CK,fr(j)+r)); first=False
            else: e('v_bitop3_b32 v%d, v%d, v%d, s30 bitop3:0xf6'%(CK,CK,fr(j)+r))
    e('v_and_b32 v%d, 1, v%d'%(CK,CK))
    e('v_cmp_ne_u32 vcc, 0, v%d'%CK)
    if ts or cnt or trace: e('s_add_u32 s49, s49, 1')
    e('s_cbranch_vccnz L_c_failB')
    TS('pollB')
    if ts:
        e('s_and_b32 s40, s28, 7\ns_cmp_eq_u32 s40, 5\ns_cbranch_scc0 L_c_nodump')
        e('s_waitcnt lgkmcnt(0)')
        e('s_lshl_b32 s40, s5, 6\ns_add_u32 s40, s40, s28\ns_lshl_b32 s40, s40, 2\ns_add_u32 s40, s40, s4\ns_lshl_b32 s40, s40, 7\ns_add_u32 s40, s40, %d'%(WS_O))
        e('v_mov_b32 v34, s40\ns_mov_b64 exec, 1')
        n=tsn[0]
        for i in range(n):
            e('v_mov_b32 v35, s%d'%(50+2*i)); e('global_store_dword v34, v35, s[8:9] offset:%d'%(4*i))
        e('v_mov_b32 v35, s48\nglobal_store_dword v34, v35, s[8:9] offset:120\nv_mov_b32 v35, s49\nglobal_store_dword v34, v35, s[8:9] offset:124')
        e('s_mov_b64 exec, -1')
        a.label('L_c_nodump')
    a.fence()
    hop_names=list(a.tsnames); a.tsnames=[]; tsn[0]=0
    a.label('L_c_step')
    TS('top')
    if trace:
        e('s_mov_b32 m0, s28\nv_writelane_b32 v7, s94, m0\nv_writelane_b32 v11, s48, m0\nv_writelane_b32 v15, s49, m0\ns_memtime s[94:95]')
    if stub:
        delay(stub)
        e('s_cmp_eq_u32 s28, %d\ns_cbranch_scc1 L_c_done'%(nsteps-1))
        e('s_mov_b32 s41, 0')
    def QKs(j):
        lg.wait(('A',j))
        SMF(ACCQ,v(fr(j),4),WQ(j))
    if stub:
        e('s_barrier'); e('s_branch L_c_stub')
    seq0=[(ACCQ,0,WQ),(ACCK,0,WK),(ACCQ,1,WQ),(ACCK,1,WK)]
    for i,(acc,j,W) in enumerate(seq0):
        if i==barpos:
            e('s_barrier')
            TS('bar')
            for jj in (4,5,6,7): rdF(jj)
        SMF(acc,v(fr(j),4),W(j))
    if barpos>=4:
        e('s_barrier')
        TS('bar')
        for jj in (4,5,6,7): rdF(jj)
    if sync:
        e('v_readfirstlane_b32 s40, v%d'%KVF)
    def rdW(j,hh):
        e('ds_read_b128 %s, %s offset:%d'%(v(RING[(j-8)%3]+4*hh,4),v(aWo),(j-8)*2048+hh*1024)); lg.issue(('Q',j,hh))
    QP=SX1; KP=SX1+2
    def Qs(j):
        lg.wait(('A',j))
        if j>=8: lg.wait(('Q',j,1))
        SMF(ACCQ,v(fr(j),4),WQ(j) if j<8 else v(RING[(j-8)%3],8))
        if j<6:
            rdF(4+2*j); rdF(5+2*j)
        if 8<=j<13: rdW(j+3,0); rdW(j+3,1)
    def Ks(j):
        SMF(ACCK,v(fr(j),4),WK(j))
        if j==2:
            e('s_and_b32 s41, s28, 1\ns_lshl_b32 s41, s41, 13\ns_sub_u32 s41, %d, s41\ns_add_u32 m0, s43, s41'%L_K1)
            if sync:
                e('s_cmp_ge_u32 s40, 128\ns_cbranch_scc0 L_c_kvspin')
                a.label('L_c_kvgo')
        if j==5: e('global_load_dwordx4 %s, %s, s[22:23] sc1'%(v(VX1,4),v(gV)))
        if j==6: e('global_load_dwordx4 %s, %s, s[22:23] offset:64 sc1'%(v(VX2,4),v(gV)))
        if j==7: e('global_load_lds_dwordx4 %s, s[20:21] sc1'%v(gB0))
        if j==8: e('global_load_lds_dwordx4 %s, s[20:21] offset:1024 sc1'%v(gB0))
        if j==9: e('s_add_u32 s20, s20, 0x40000\ns_addc_u32 s21, s21, 0')
        if j==10: e('s_add_u32 s22, s22, 0x40000\ns_addc_u32 s23, s23, 0')
        if sync and j==11:
            e('v_mov_b32 v%d, s28'%KVF)
            e('s_mov_b64 exec, 1\nglobal_store_dword %s, v%d, s[86:87] sc1'%(v(gB0),KVF))
            e('s_add_u32 s41, s28, 2\ns_lshr_b32 s41, s41, 2\ns_min_u32 s41, s41, 15\ns_lshl_b32 s41, s41, 7\ns_add_u32 s82, s84, s41\ns_addc_u32 s83, s85, 0')
            e('global_load_dword v%d, %s, s[82:83] sc1\ns_mov_b64 exec, -1'%(KVF,v(gB0)))
    for j in range(2,16):
        Qs(j); Ks(j)
    TS('QK')
    def Vs(j): SMF(ACCV,v(fr(j),4),WV(j))
    def rdQ1(base,off,ks,hh,tag):
        e('ds_read_b64_tr_b16 %s, %s offset:%d'%(v(base+4*ks+2*hh,2),v(aQr),off+ks*544+hh*16)); lg.issue((tag,ks,hh))
    def rdQ(base,off,ks,tag):
        rdQ1(base,off,ks,0,tag); rdQ1(base,off,ks,1,tag)
    kreg={0:KXR,4:KXR+4,1:KXR+8,5:KXR+12,2:AF,6:AF+4,3:AF+8,7:AF+12}
    def rdK(f):
        e('ds_read_b128 %s, %s offset:%d'%(v(kreg[f],4),v(aKr),f*1024)); lg.issue(('K',f))
    def Sx(f,first):
        ks=f&3; tau=f>>2
        lg.wait(('K',f)); lg.wait(('q',ks,1))
        acc=SX0 if tau==0 else SX1
        e('v_mfma_f32_16x16x32_bf16 %s, %s, %s, %s'%(v(acc,4),v(kreg[f],4),v(QF+4*ks,4),'0' if first else v(acc,4)))
    def Sm(ks):
        lg.wait(('k',ks,1))
        e('v_mfma_f32_16x16x32_bf16 %s, %s, %s, %s'%(v(SM,4),v(KF+4*ks,4),v(QF+4*ks,4),'0' if ks==0 else v(SM,4)))
    Vs(0)
    e('v_cvt_pk_bf16_f32 %s, %s, %s'%(v(QP),v(ACCQ),v(ACCQ+1)))
    e('v_cvt_pk_bf16_f32 %s, %s, %s'%(v(QP+1),v(ACCQ+2),v(ACCQ+3)))
    e('ds_write_b64 %s, %s'%(v(aQw),v(QP,2))); lg.issue('qw')
    Vs(1)
    e('v_cvt_pk_bf16_f32 %s, %s, %s'%(v(KP),v(ACCK),v(ACCK+1)))
    e('v_cvt_pk_bf16_f32 %s, %s, %s'%(v(KP+1),v(ACCK+2),v(ACCK+3)))
    e('ds_write_b64 %s, %s offset:2176'%(v(aQw),v(KP,2))); lg.issue('kw')
    Vs(2)
    e('global_store_dwordx2 %s, %s, s[24:25] sc1'%(v(gVM),v(KP,2)))
    Vs(3); rdK(0); rdK(4)
    Vs(4); rdK(1); rdK(5)
    Vs(5); Vs(6); Vs(7)
    lg.wait('kw')
    TS('prebar')
    e('s_barrier')
    rdQ(QF,0,0,'q')
    Vs(8); rdQ(QF,0,1,'q')
    Vs(9); rdQ(QF,0,2,'q')
    Vs(10); rdQ(QF,0,3,'q')
    Vs(11); rdQ(KF,2176,0,'k')
    Vs(12); rdQ(KF,2176,1,'k'); rdK(2)
    Vs(13); rdQ(KF,2176,2,'k'); rdK(6)
    Vs(14); rdQ(KF,2176,3,'k'); rdK(3)
    Vs(15); rdK(7)
    TS('preS')
    seq=SEQ
    bslot={}
    def rdB1(i,slot,hh):
        t,b=seq[i]; bslot[i]=slot
        e('ds_read_b128 %s, %s offset:%d'%(v(slot+4*hh,4),v(aWo),16384+LSET.index(i)*2048+hh*1024)); lg.issue(('W',i,hh))
    def rdB(i,slot): rdB1(i,slot,0); rdB1(i,slot,1)
    pre=[(0,KXR),(1,KXR+8),(2,KF),(3,KF+8),(4,AF),(5,AF+8)]+([(6,QF),(7,QF+8)] if 6 in LSET else [])
    pl=[]
    for i,sl in pre: pl+= [(i,sl,0),(i,sl,1)]
    def fill(n=1):
        for _ in range(n):
            if pl: rdB1(*pl.pop(0))
    M_=ACCQ; T_=ACCQ+1; NMC=ACCQ+2
    Sx(0,True); Sx(4,True); Sx(1,False); Sx(5,False)
    Sm(0); fill(2); Sm(1); fill(2); Sm(2); Sm(3)
    Sx(2,False); fill(2); Sx(6,False); fill(2)
    Sx(3,False)
    e('v_max3_f32 v%d, v%d, v%d, v%d'%(T_,SM,SM+1,SM+2))
    Sx(7,False)
    e('v_max_f32 v%d, v%d, v%d'%(T_,T_,SM+3))
    TS('VS')
    e('v_max3_f32 v%d, v%d, v%d, v%d'%(M_,SX0,SX0+1,SX0+2))
    e('v_max3_f32 v%d, v%d, v%d, v%d'%(T_,T_,SX0+3,M_))
    e('v_max3_f32 v%d, v%d, v%d, v%d'%(M_,SX1,SX1+1,SX1+2))
    e('v_max3_f32 v%d, v%d, v%d, v%d'%(M_,M_,SX1+3,T_))
    e('v_mov_b32 v%d, v%d'%(T_,M_))
    e('v_permlane32_swap_b32 v%d, v%d'%(M_,T_))
    e('v_max_f32 v%d, v%d, v%d'%(M_,M_,T_))
    e('v_mov_b32 v%d, v%d'%(T_,M_))
    e('v_permlane16_swap_b32 v%d, v%d'%(M_,T_))
    e('v_max_f32 v%d, v%d, v%d'%(M_,M_,T_))
    e('v_mul_f32 v%d, s32, v%d'%(NMC,M_))
    TS('max')
    pkf=lambda r: e('v_pk_fma_f32 v[%d:%d], v[%d:%d], s[32:33], v[%d:%d] op_sel_hi:[1,1,0] neg_lo:[0,0,1] neg_hi:[0,0,1]'%(r,r+1,r,r+1,NMC,NMC+1))
    for r in (SX0,SX0+2,SX1,SX1+2): pkf(r)
    for r in range(SX0,SX0+8): e('v_exp_f32 v%d, v%d'%(r,r))
    PX=ACCK
    pkf(SM); pkf(SM+2)
    e('v_cvt_pk_bf16_f32 v%d, v%d, v%d'%(PX,SX0,SX0+1))
    e('v_cvt_pk_bf16_f32 v%d, v%d, v%d'%(PX+1,SX0+2,SX0+3))
    e('v_cvt_pk_bf16_f32 v%d, v%d, v%d'%(PX+2,SX1,SX1+1))
    e('v_cvt_pk_bf16_f32 v%d, v%d, v%d'%(PX+3,SX1+2,SX1+3))
    TS('expx')
    e('s_waitcnt vmcnt(%d)'%(5 if sync else 3))
    T1=SX0; T2=SX1; L_=VX2
    e('v_exp_f32 v%d, v%d'%(SM,SM))
    e('v_mfma_f32_16x16x32_bf16 %s, %s, %s, 0'%(v(T2,4),v(VX2,4),v(PX,4)))
    fill()
    e('v_exp_f32 v%d, v%d'%(SM+1,SM+1))
    e('v_mfma_f32_16x16x32_bf16 %s, %s, %s, 0'%(v(T1,4),v(VX1,4),v(PX,4)))
    fill()
    e('v_exp_f32 v%d, v%d'%(SM+2,SM+2))
    e('v_mfma_f32_16x16x32_bf16 %s, %s, %s, 0'%(v(L_,4),v(ONES,4),v(PX,4)))
    fill()
    e('v_exp_f32 v%d, v%d'%(SM+3,SM+3))
    VP=ACCV
    e('v_cvt_pk_bf16_f32 v%d, v%d, v%d'%(VP,ACCV,ACCV+1))
    PM1=ACCQ; PM2=ACCQ+2
    e('v_cvt_pk_bf16_f32 v%d, v%d, v%d'%(PM2,SM,SM+1))
    e('v_cvt_pk_bf16_f32 v%d, v%d, v%d'%(PM2+1,SM+2,SM+3))
    e('v_cvt_pk_bf16_f32 v%d, v%d, v%d'%(VP+1,ACCV+2,ACCV+3))
    e('v_cndmask_b32 v%d, 0, v%d, s[34:35]'%(PM1,PM2))
    e('v_cndmask_b32 v%d, 0, v%d, s[34:35]'%(PM1+1,PM2+1))
    e('v_mfma_f32_16x16x16_bf16 %s, %s, %s, %s'%(v(L_,4),v(ONES,2),v(PM1,2),v(L_,4)))
    e('v_cndmask_b32 v%d, 0, v%d, s[36:37]'%(PM2,PM2))
    e('v_cndmask_b32 v%d, 0, v%d, s[36:37]'%(PM2+1,PM2+1))
    e('v_mfma_f32_16x16x16_bf16 %s, %s, %s, %s'%(v(T1,4),v(VP,2),v(PM1,2),v(T1,4)))
    fill(1)
    WA=[ACCQ,ACCK,ACCV,VX1]
    e('v_mfma_f32_16x16x16_bf16 %s, %s, %s, %s'%(v(T2,4),v(VP,2),v(PM2,2),v(T2,4)))
    fill(1)
    e('global_store_dwordx2 %s, %s, s[26:27] sc1'%(v(gVM),v(VP,2)))
    e('v_mov_b64 v[%d:%d], 0\nv_mov_b64 v[%d:%d], 0'%(WA[1],WA[1]+1,WA[1]+2,WA[1]+3))
    TS('pv')
    e('s_cmp_eq_u32 s28, %d\ns_cbranch_scc1 L_c_done'%(nsteps-1))
    fill(16)
    for t in (3,0):
        e('v_mov_b64 v[%d:%d], 0\nv_mov_b64 v[%d:%d], 0'%(WA[t],WA[t]+1,WA[t]+2,WA[t]+3))
    e('v_rcp_f32 v%d, v%d'%(L_,L_))
    e('v_mov_b64 v[%d:%d], 0\nv_mov_b64 v[%d:%d], 0'%(WA[2],WA[2]+1,WA[2]+2,WA[2]+3))
    for r in (T1,T1+2,T2,T2+2):
        e('v_pk_mul_f32 v[%d:%d], v[%d:%d], v[%d:%d] op_sel_hi:[1,0]'%(r,r+1,r,r+1,L_,L_+1))
    O4=SM
    for r in range(4):
        e('v_cvt_pk_bf16_f32 v%d, v%d, v%d'%(O4+r,T1+r,T2+r))
    if ob64:
        e('v_cndmask_b32 v%d, v%d, v%d, s[80:81]'%(T1,O4,O4+2))
        e('v_cndmask_b32 v%d, v%d, v%d, s[80:81]'%(T1+1,O4+1,O4+3))
        e('ds_write_b64 v%d, %s offset:%d'%(16+0, v(T1,2), L_M)) if False else None
        e('v_add_u32 v%d, %s, v%d'%(T1+2,v(aMb[0]),T1+3)) if False else None
        e('ds_write_b64 %s, %s offset:%d'%(v(aOw8),v(T1,2),L_M)); lg.issue('ow')
    else:
        e('ds_write_b128 %s, %s offset:%d'%(v(aMb[0]),v(O4,4),L_M)); lg.issue('ow')
    TS('SMX')
    def Wm(i,areg):
        t,b=seq[i]
        if i in LSET:
            lg.wait(('W',i,1))
            SMF(WA[t],v(areg,4),v(bslot[i],8))
        else: SMF(WA[t],v(areg,4),WOR(i))
    Wm(0,O4); Wm(1,O4); Wm(2,O4)
    lg.wait('ow')
    TS('ow')
    e('s_barrier')
    OF={1:SX0,2:SX1,3:OF3}
    for b in (1,2,3):
        e('ds_read_b128 %s, %s offset:%d'%(v(OF[b],4),v(aMb[b]),L_M)); lg.issue(('o',b))
    Wm(3,O4)
    if 14 in LSET: rdB(14,QF); rdB(15,QF+8)
    G0=KXR; G1=KXR+4
    for i in range(4,16):
        t,b=seq[i]
        lg.wait(('o',b))
        Wm(i,OF[b])
        if early:
            if i==10:
                e('v_cvt_pk_bf16_f32 v%d, v%d, v%d'%(G0,WA[0],WA[0]+1))
                e('v_cvt_pk_bf16_f32 v%d, v%d, v%d'%(G0+1,WA[0]+2,WA[0]+3))
            if i==11:
                e('v_cvt_pk_bf16_f32 v%d, v%d, v%d'%(G0+2,WA[1],WA[1]+1))
                e('v_cvt_pk_bf16_f32 v%d, v%d, v%d'%(G0+3,WA[1]+2,WA[1]+3))
                e('v_and_or_b32 v%d, v%d, -2, s29'%(G0,G0))
                e('global_store_dwordx4 %s, %s, s[16:17]%s'%(v(gA0),v(G0,4),st))
            continue
        if i==11:
            e('v_cvt_pk_bf16_f32 v%d, v%d, v%d'%(G0,WA[0],WA[0]+1))
        if i==12:
            e('v_cvt_pk_bf16_f32 v%d, v%d, v%d'%(G0+1,WA[0]+2,WA[0]+3))
        if i==13:
            e('v_cvt_pk_bf16_f32 v%d, v%d, v%d'%(G0+2,WA[1],WA[1]+1))
            e('v_cvt_pk_bf16_f32 v%d, v%d, v%d'%(G0+3,WA[1]+2,WA[1]+3))
        if i==14:
            e('v_and_or_b32 v%d, v%d, -2, s29'%(G0,G0))
            e('global_store_dwordx4 %s, %s, s[16:17]%s'%(v(gA0),v(G0,4),st))
    a.label('L_c_stub')
    if stub:
        e('v_and_or_b32 v%d, v%d, -2, s29'%(G0,G0))
        e('global_store_dwordx4 %s, %s, s[16:17]%s'%(v(gA0),v(G0,4),st))
        delay(64)
    e('v_cvt_pk_bf16_f32 v%d, v%d, v%d'%(G1,WA[2],WA[2]+1))
    e('v_cvt_pk_bf16_f32 v%d, v%d, v%d'%(G1+1,WA[2]+2,WA[2]+3))
    e('v_cvt_pk_bf16_f32 v%d, v%d, v%d'%(G1+2,WA[3],WA[3]+1))
    e('v_cvt_pk_bf16_f32 v%d, v%d, v%d'%(G1+3,WA[3]+2,WA[3]+3))
    e('v_and_or_b32 v%d, v%d, -2, s29'%(G1,G1))
    e('global_store_dwordx4 %s, %s, s[46:47]%s'%(v(gA0),v(G1,4),st))
    TS('WO')
    if XB: e('s_memtime s[90:91]')
    assert (not ts) or tsn[0]==NST, tsn[0]
    a.tsnames=a.tsnames+hop_names
    e('s_branch L_c_hops')
    a.label('L_c_failA'); a.hist=[]
    e('s_nop 3')
    for i,(r0,r1) in enumerate(preA[1:]):
        rem=2*(len(preA)-2-i)
        redA(r0,r1,rem+1,rem,'L_c_okA')
        a.fence()
    a.label('L_c_pollA')
    ldA(R0,R1)
    redA(R0,R1,1,0,'L_c_okA')
    e('s_add_u32 s44, s44, 1\ns_cmp_gt_u32 s44, 200000\ns_cbranch_scc1 L_c_done\ns_branch L_c_pollA')
    a.label('L_c_failB'); a.hist=[]
    e('global_load_lds_dwordx4 %s, s[92:93] sc1'%v(gB0))
    e('global_load_lds_dwordx4 %s, s[92:93] offset:1024 sc1'%v(gB0))
    e('s_add_u32 s44, s44, 1\ns_cmp_gt_u32 s44, 200000\ns_cbranch_scc1 L_c_done\ns_branch L_c_loopB')
    if sync:
        a.label('L_c_kvspin'); a.hist=[]
        e('s_add_u32 s41, s28, 1\ns_lshr_b32 s41, s41, 2\ns_min_u32 s41, s41, 15\ns_lshl_b32 s41, s41, 7\ns_add_u32 s82, s84, s41\ns_addc_u32 s83, s85, 0')
        e('s_mov_b64 exec, 1\nglobal_load_dword v%d, %s, s[82:83] sc1\ns_mov_b64 exec, -1\ns_waitcnt vmcnt(0)\nv_readfirstlane_b32 s40, v%d'%(KVF,v(gB0),KVF))
        e('s_add_u32 s44, s44, 1\ns_cmp_gt_u32 s44, 200000\ns_cbranch_scc1 L_c_done\ns_cmp_ge_u32 s40, 128\ns_cbranch_scc0 L_c_kvspin\ns_branch L_c_kvgo')
    a.label('L_c_done'); a.hist=[]
    e('s_waitcnt vmcnt(0)')
    if sync:
        e('s_barrier')
        e('s_lshl_b32 s41, s5, 7\ns_add_u32 s41, s41, %d\nv_mov_b32 v34, s41\nv_mov_b32 v35, 64'%FL_PROG)
        e('s_mov_b64 exec, 1\nglobal_store_dword v34, v35, s[8:9] sc1\ns_mov_b64 exec, -1\ns_waitcnt vmcnt(0)')
    if trace:
        e('s_lshl_b32 s40, s5, 2\ns_add_u32 s40, s40, s4\ns_mul_i32 s40, s40, 768\ns_add_u32 s40, s40, %d'%(WS_O))
        e('v_mbcnt_lo_u32_b32 v64, -1, 0\nv_mbcnt_hi_u32_b32 v64, -1, v64\nv_lshlrev_b32 v64, 2, v64\nv_add_u32 v64, s40, v64')
        e('global_store_dword v64, v7, s[8:9]\nglobal_store_dword v64, v11, s[8:9] offset:256\nglobal_store_dword v64, v15, s[8:9] offset:512\ns_waitcnt vmcnt(0)')
    if cnt:
        e('s_lshl_b32 s40, s5, 2\ns_add_u32 s40, s40, s4\ns_lshl_b32 s40, s40, 3\ns_add_u32 s40, s40, %d'%(WS_G))
        e('v_mov_b32 v64, s40\nv_mov_b32 v66, s48\nv_mov_b32 v67, s49\ns_mov_b64 exec, 1\nglobal_store_dwordx2 v64, v[66:67], s[8:9]\ns_mov_b64 exec, -1\ns_waitcnt vmcnt(0)')
```

```python
from asmgen import Asm
from layout import *
import struct, math

L_M=0; L_K0=8192; L_K1=16384; L_Q=24576; L_KT=L_Q+2176; L_TMP=30976; L_WO=32768

class Q:
    def __init__(s, asm, name, maxv): s.a=asm; s.name=name; s.q=[]; s.maxv=maxv
    def issue(s, tag): s.q.append(tag)
    def wait(s, tag):
        if tag not in s.q: return
        i=s.q.index(tag); n=len(s.q)-1-i
        n=min(n,s.maxv)
        s.a.e('s_waitcnt %s(%d)'%(s.name,n)); s.q=s.q[len(s.q)-n:] if n>0 else []
    def waitall(s):
        s.a.e('s_waitcnt %s(0)'%s.name); s.q=[]
    def reset(s): s.q=[]

def f2u(x): return struct.unpack('<I',struct.pack('<f',x))[0]

def rowconst(kb,m):
    rho=2*kb+(m>>2); u=rho&3
    return 128*(rho>>3)+64*((rho>>2)&1)+32*(m&1)+16*(u&1)+(u>>1)+2*((m&3)>>1)
for kb in range(16):
    for m in range(8):
        for gb in range(4):
            assert pi_pos(32*kb+16*(m>>2)+4*gb+(m&3))==rowconst(kb,m)+4*gb
def rowrest(j,m): return rowconst(j&3,m)
for w in range(4):
    for j in range(16):
        for m in range(8):
            assert rowconst((4*w+j)&15,m)==128*((w+(j>>2))&3)+rowrest(j,m)

def v(a,n=1): return 'v%d'%a if n==1 else 'v[%d:%d]'%(a,a+n-1)
def ag(a,n=1): return 'a%d'%a if n==1 else 'a[%d:%d]'%(a,a+n-1)

aMb=[3,0,1,9]
IDX=2; aWo=4; aQw=5; aQr=6; aKr=8
gA0=10; gAr=12; gBw=13; gB0=14; gV=7; KVF=11; gVM=15
ONES=20; BSEL=24; TAGB=30; MASKB=31
VX1=32; AF=36; ACCQ=52; ACCK=56; ACCV=60; QF=64; KF=80; KXR=96; SX0=112; SX1=116; SM=120; VX2=16; OF3=124
RING=[120,24,112]
SEQ=[(0,0),(1,0),(2,0),(3,0),(0,1),(1,1),(0,2),(1,2),(0,3),(1,3),(2,1),(3,1),(2,2),(3,2),(2,3),(3,3)]
LSET=[0,1,2,3,4,5,14,15]
ASET=[i for i in range(16) if i not in LSET]
def set_lset(l):
    LSET[:]=l; ASET[:]=[i for i in range(16) if i not in l]
WOR=lambda i: ag(64+8*ASET.index(i),8)
WQ=lambda j: ag(8*j,8)
WK=lambda j: ag(128+8*j,8)
WV=lambda j: v(128+8*j,8)

def chain_setup(a, st, sync=False, dbgfn=None):
    e=a.e
    e('''
v_and_b32 v1, 63, v0
v_and_b32 v32, 15, v1          ; j / n / i
v_lshrrev_b32 v33, 4, v1       ; g
v_bfe_u32 v34, v1, 4, 1        ; rh
v_lshrrev_b32 v35, 5, v1       ; half
v_lshlrev_b32 v36, 4, v0       ; tid*16
s_lshl_b32 s40, s5, 13
v_add_u32 v37, s40, v36
v_mov_b32 v40, -1
v_mov_b32 v41, -1
v_mov_b32 v42, -1
v_mov_b32 v43, -1
v_add_u32 v38, 0x1000, v37
v_add_u32 v39, 0x40000, v37
v_add_u32 v44, 0x41000, v37
global_store_dwordx4 v37, v[40:43], s[8:9]{st}
global_store_dwordx4 v38, v[40:43], s[8:9]{st}
global_store_dwordx4 v39, v[40:43], s[8:9]{st}
global_store_dwordx4 v44, v[40:43], s[8:9]{st}
s_lshl_b32 s40, s5, 8
s_add_u32 s40, s40, {hb}
v_lshlrev_b32 v45, 2, v1
v_add_u32 v45, s40, v45
v_add_u32 v46, 0x2000, v45
global_store_dword v45, v40, s[8:9]{st}
global_store_dword v46, v40, s[8:9]{st}
; zero the flags area: 1 KB per chain WG (256 threads x 4 B)
s_lshl_b32 s40, s5, 10
s_add_u32 s40, s40, {fl}
v_lshlrev_b32 v45, 2, v0
v_add_u32 v45, s40, v45
v_mov_b32 v46, 0
global_store_dword v45, v46, s[8:9] sc1
'''.format(st=st,hb=WS_HOPB,fl=WS_FLAGS))
    e('s_load_dwordx2 s[88:89], s[0:1], %d'%KA_MEM0)
    e('''
v_and_b32 v64, 7, v0           ; row
v_lshrrev_b32 v65, 3, v0       ; q8 (0..31)
v_and_b32 v66, 1, v65          ; oct
v_lshrrev_b32 v67, 1, v65      ; rho (0..15)
v_lshrrev_b32 v68, 3, v67
v_lshlrev_b32 v68, 7, v68
v_bfe_u32 v69, v67, 2, 1
v_lshlrev_b32 v69, 6, v69
v_add_u32 v68, v68, v69
v_and_b32 v69, 1, v67
v_lshlrev_b32 v69, 4, v69
v_add_u32 v68, v68, v69
v_lshlrev_b32 v69, 3, v66
v_add_u32 v68, v68, v69
v_bfe_u32 v69, v67, 1, 1
v_add_u32 v68, v68, v69        ; D0
v_lshlrev_b32 v68, 1, v68
v_lshlrev_b32 v64, 10, v64
v_add_u32 v68, v68, v64
s_waitcnt lgkmcnt(0)
s_mov_b32 s90, 8192
s_mov_b32 s91, 0x00020000
''')
    for hlf in range(2):
        for n in range(8):
            e('buffer_load_ushort v%d, v68, s[88:91], 0 offen offset:%d'%(72+8*hlf+n, hlf*512+(32*(n&1)+2*(n>>1))*2))
    e('s_load_dwordx2 s[12:13], s[0:1], %d\ns_load_dwordx2 s[82:83], s[0:1], %d\ns_load_dwordx2 s[84:85], s[0:1], %d\ns_load_dwordx2 s[86:87], s[0:1], %d'%(KA_WO,KA_WQ,KA_WK,KA_WV))
    e('''
s_lshl_b32 s40, s5, 17         ; h*131072
s_lshl_b32 s41, s4, 8          ; 128*w*2
s_add_u32 s40, s40, s41
v_lshlrev_b32 v37, 2, v32      ; 4j
v_lshlrev_b32 v38, 12, v33     ; gb*4*1024
v_add3_u32 v37, v37, v38, s40
v_lshlrev_b32 {aWo}, 4, v1
s_lshl_b32 s41, s4, 15
s_add_u32 s41, s41, {lwo}
v_add_u32 {aWo}, s41, {aWo}
s_lshl_b32 s40, s5, 8          ; h*256
s_lshl_b32 s41, s4, 6          ; 64*w
s_add_u32 s40, s40, s41
v_lshlrev_b32 v36, 2, v32      ; 4j
v_lshlrev_b32 v38, 15, v33     ; gb*32768
v_add3_u32 v36, v36, v38, s40  ; voffset for Wq/Wk/Wv
s_waitcnt lgkmcnt(0)
s_mov_b32 s14, 0x400000
s_mov_b32 s15, 0x00020000
'''.format(aWo=v(aWo),lwo=L_WO))
    for b_ in range(4):
        e('s_add_u32 s41, s4, %d\ns_and_b32 s41, s41, 3\ns_lshl_b32 s%d, s41, 15'%(b_,44+b_))
    e('''
s_lshl_b32 s43, s4, 11
v_lshlrev_b32 v64, 4, v1
v_add_u32 {gB0}, s43, v64
s_lshl_b32 s40, s5, 13
s_add_u32 s20, s8, {kx}
s_addc_u32 s21, s9, 0
s_add_u32 s20, s20, s40
s_addc_u32 s21, s21, 0
s_mov_b32 s42, 0               ; first K tile already requested?
'''.format(gB0=v(gB0),kx=WS_KX))
    for jj in range(4):
        for m in range(8): e('s_mov_b32 s%d, %d'%(50+8*jj+m,rowrest(jj,m)*8192))
    st_list=[]
    nld=0
    e('s_mov_b64 s[100:101], s[12:13]')
    for i,(t,b_) in enumerate(SEQ):
        if i in ASET[4:]: continue
        for hh in range(2):
            for mm in range(4):
                e('s_add_u32 s41, s%d, %d'%(44+b_,(16*hh+mm)*1024+t*64))
                dst=('v%d'%(128+8*LSET.index(i)+4*hh+mm)) if i in LSET else ('a%d'%(64+8*ASET.index(i)+4*hh+mm))
                e('buffer_load_dword %s, v37, s[12:15], s41 offen'%dst)
                nld+=1
                if nld==40:
                    e('s_waitcnt vmcnt(40)')
                    for hlf in range(2):
                        for d in range(4):
                            e('v_lshl_or_b32 v%d, v%d, 16, v%d'%(96+4*hlf+d, 72+8*hlf+2*d+1, 72+8*hlf+2*d))
                    e('v_lshlrev_b32 v64, 4, v0\nv_add_u32 v65, 0x1000, v64\nds_write_b128 v64, v[96:99]\nds_write_b128 v65, v[100:103]')
                    e('''s_barrier
s_cmp_eq_u32 s4, 0
s_cbranch_scc0 L_c_noready
v_mov_b32 v38, {rdy}
v_mov_b32 v39, 1
s_mov_b64 exec, 1
global_atomic_add v38, v39, s[10:11] sc1
s_mov_b64 exec, -1
L_c_noready:'''.format(rdy=DBG_READY))

            if i in LSET: st_list.append((128+8*LSET.index(i)+4*hh,16384+LSET.index(i)*2048+hh*1024))
    for j in range(8,16):
        for hh in range(2): st_list.append((192+8*(j-8)+4*hh,(j-8)*2048+hh*1024))
    def dq(r,j,m): return ('a%d'%(8*j+m)) if j<8 else ('v%d'%(192+8*(j-8)+m))
    for w in range(4):
        if w>0: a.label('L_c_wl%d'%w)
        if w<3: e('s_cmp_eq_u32 s4, %d\ns_cbranch_scc0 L_c_wl%d'%(w,w+1))
        if w>0: e('s_nop 0')
        for mat in range(3):
            e('s_mov_b64 s[12:13], s[%d:%d]'%(82+2*mat,83+2*mat))
            n=0
            for kb in range(16):
                j=(kb-4*w)&15
                if kb>0 and kb%4==0: e('s_add_u32 s12, s12, 0x100000\ns_addc_u32 s13, s13, 0\ns_sub_u32 s14, s14, 0x100000')
                for m in range(8):
                    dst=dq(0,j,m) if mat==0 else ('a%d'%(128+8*j+m) if mat==1 else 'v%d'%(128+8*j+m))
                    e('buffer_load_dword %s, v36, s[12:15], s%d offen'%(dst,50+8*(kb&3)+m))
                    n+=1
                    if mat==2 and n==72 and sync:
                        e('s_waitcnt vmcnt(60)\nv_readfirstlane_b32 s40, v106\nv_readfirstlane_b32 s41, v107\ns_cmp_ge_u32 s40, 32\ns_cselect_b32 s40, s41, 0\ns_cmp_ge_u32 s40, 128\ns_cbranch_scc0 L_c_nok0_%d'%w)
                        e('s_add_u32 m0, s43, %d\ns_mov_b32 s42, 1\nglobal_load_lds_dwordx4 %s, s[20:21] sc1\nglobal_load_lds_dwordx4 %s, s[20:21] offset:1024 sc1'%(L_K0,v(gB0),v(gB0)))
                        a.label('L_c_nok0_%d'%w)
                    if mat==1 and n%2==0 and n>64:
                        k=(n-66)//2
                        if n==66: e('s_waitcnt vmcnt(60)')
                        base,off=st_list[k]
                        e('ds_write_b128 %s, %s offset:%d'%(v(aWo),v(base,4),off))
            e('s_mov_b32 s14, 0x400000')
            if mat==1: e('s_waitcnt lgkmcnt(0)')
            if mat==1:
                e('v_mov_b32 v104, %d\nv_mov_b32 v105, %d\nglobal_load_dword v106, v104, s[10:11] sc1\nglobal_load_dword v107, v105, s[8:9] sc1'%(DBG_READY,FL_P))
        if w<3: e('s_branch L_c_wld')
    a.label('L_c_wld')
    if dbgfn: dbgfn(3)
    e('''
; idx
v_mov_b32 {IDX}, 0x8888
v_mov_b32 v64, 0xdddd
v_cmp_le_u32 vcc, 8, v32
v_cndmask_b32 {IDX}, {IDX}, v64, vcc
; lanepart = g*128 + (i&7)*16
v_and_b32 v64, 7, v32
v_lshlrev_b32 v64, 4, v64
v_lshlrev_b32 v65, 7, v33
v_add_u32 v70, v64, v65
; aQw = L_Q + w*544 + half*272 + rh*128 + j*8
s_mul_i32 s40, s4, 544
s_add_u32 s40, s40, {lq}
v_mul_u32_u24 v64, 272, v35
v_lshlrev_b32 v65, 7, v34
v_lshlrev_b32 v66, 3, v32
v_add3_u32 v64, v64, v65, v66
v_add_u32 {aQw}, s40, v64
; aQr
v_bfe_u32 v64, v1, 2, 1
v_mul_u32_u24 v64, 272, v64
v_and_b32 v65, 1, v1
v_lshlrev_b32 v65, 7, v65
v_bfe_u32 v66, v1, 3, 1
v_lshl_add_u32 v66, v33, 2, v66
v_lshlrev_b32 v66, 3, v66
v_add3_u32 v64, v64, v65, v66
v_add_u32 {aQr}, {lq}, v64
; aKr = L_K0 + lane*16
v_lshlrev_b32 v64, 4, v1
v_add_u32 {aKr}, {lk0}, v64
; gA0 = (8w + 2*half + (j>>3))*8192 + (2rh+oct)*2048 + h*64 + (j&3)*16
v_lshrrev_b32 v64, 3, v32
v_lshl_add_u32 v64, v35, 1, v64
s_lshl_b32 s40, s4, 3
v_add_u32 v64, s40, v64
v_lshlrev_b32 v64, 13, v64
v_bfe_u32 v65, v32, 2, 1
v_lshl_add_u32 v65, v34, 1, v65
v_lshlrev_b32 v65, 11, v65
v_and_b32 v66, 3, v32
v_lshlrev_b32 v66, 4, v66
v_add3_u32 v64, v64, v65, v66
s_lshl_b32 s40, s5, 6
v_add_u32 {gA0}, s40, v64
; gAr = h*8192 + w*2048 + g*256 + (i&3)*64 + (i>>2)*16
v_lshlrev_b32 v64, 8, v33
v_and_b32 v65, 3, v32
v_lshlrev_b32 v65, 6, v65
v_lshrrev_b32 v66, 2, v32
v_lshlrev_b32 v66, 4, v66
v_add3_u32 v64, v64, v65, v66
s_lshl_b32 s40, s5, 13
s_add_u32 s40, s40, s43
v_add_u32 {gAr}, s40, v64
; gBw = h*256 + (w&1)*128 + (w>>1)*64 + n*16 + g*4
s_lshl_b32 s40, s5, 8
s_and_b32 s41, s4, 1
s_lshl_b32 s41, s41, 7
s_add_u32 s40, s40, s41
s_lshr_b32 s41, s4, 1
s_lshl_b32 s41, s41, 6
s_add_u32 s40, s40, s41
v_lshlrev_b32 v64, 4, v32
v_lshl_add_u32 v64, v33, 2, v64
v_add_u32 {gBw}, s40, v64
; gV = w*2048 + j*128 + g*16
v_lshlrev_b32 v64, 7, v32
v_lshl_add_u32 v64, v33, 4, v64
v_add_u32 {gV}, s43, v64
; gVM = w*512 + lane*8
s_lshl_b32 s40, s4, 9
v_lshlrev_b32 v64, 3, v1
v_add_u32 {gVM}, s40, v64
v_mov_b32 v20, 0x3f803f80
v_mov_b32 v21, 0x3f803f80
v_mov_b32 v22, 0x3f803f80
v_mov_b32 v23, 0x3f803f80
v_mov_b32 v24, 0
v_mov_b32 v25, 0
v_mov_b32 v28, 0
v_mov_b32 v29, 0
v_and_b32 v64, 3, v32
v_mov_b32 v65, 0x3f80
v_mov_b32 v66, 0x3f800000
v_mov_b32 v26, 0
v_mov_b32 v27, 0
v_cmp_eq_u32 vcc, 0, v64
v_cndmask_b32 v26, v26, v65, vcc
v_cmp_eq_u32 vcc, 1, v64
v_cndmask_b32 v26, v26, v66, vcc
v_cmp_eq_u32 vcc, 2, v64
v_cndmask_b32 v27, v27, v65, vcc
v_cmp_eq_u32 vcc, 3, v64
v_cndmask_b32 v27, v27, v66, vcc
v_mov_b32 {MASKB}, -1
v_mov_b32 v64, -2
v_cmp_eq_u32 vcc, 0, v33
v_cndmask_b32 {MASKB}, {MASKB}, v64, vcc
'''.format(gB0=v(gB0),IDX=v(IDX),aQw=v(aQw),aQr=v(aQr),aKr=v(aKr),gA0=v(gA0),
           gAr=v(gAr),gBw=v(gBw),gV=v(gV),gVM=v(gVM),MASKB=v(MASKB),aWo=v(aWo),lq=L_Q,lk0=L_K0))
    for b in (3,2,1,0):
        e('s_add_u32 s40, s4, %d\ns_and_b32 s40, s40, 3\ns_lshl_b32 s40, s40, 11\nv_add_u32 %s, s40, v70'%(b,v(aMb[b])))
    c=(128**-0.5)*math.log2(math.e)
    e('''
s_add_u32 s16, s8, {ha}
s_addc_u32 s17, s9, 0
s_add_u32 s18, s8, {hb}
s_addc_u32 s19, s9, 0
s_lshl_b32 s40, s5, 13
s_add_u32 s22, s8, {vx}
s_addc_u32 s23, s9, 0
s_add_u32 s22, s22, s40
s_addc_u32 s23, s23, 0
s_lshl_b32 s40, s5, 11
s_add_u32 s24, s8, {km}
s_addc_u32 s25, s9, 0
s_add_u32 s24, s24, s40
s_addc_u32 s25, s25, 0
s_add_u32 s26, s8, {vm}
s_addc_u32 s27, s9, 0
s_add_u32 s26, s26, s40
s_addc_u32 s27, s27, 0
s_mov_b32 s28, 0
s_mov_b32 s29, 0
s_mov_b32 s30, 0               ; expected tag of the M image (previous step)
s_mov_b32 s31, 0               ; tag check enable
s_mov_b32 s32, {c}
s_mov_b32 s33, {c}
s_mov_b32 s34, -1
s_mov_b32 s35, 0
s_mov_b32 s36, 0
s_mov_b32 s37, -1
s_mov_b32 s38, 0x000f000f
s_mov_b32 s39, 0x000f000f
s_add_u32 s46, s16, 0x8000     ; second A-store base
s_addc_u32 s47, s17, 0
s_mov_b64 s[92:93], s[18:19]
s_lshl_b32 s40, s5, 7
s_add_u32 s40, s40, {prog}
s_sub_u32 s40, s40, s43
s_add_u32 s86, s8, s40
s_addc_u32 s87, s9, 0          ; PROG[h] - w*2048
s_sub_u32 s40, {flp}, s43
s_add_u32 s84, s8, s40
s_addc_u32 s85, s9, 0          ; FL_P - w*2048
'''.format(ha=WS_HOPA,hb=WS_HOPB,kx=WS_KX,vx=WS_VX,km=WS_KM,vm=WS_VM,c=f2u(c),prog=FL_PROG,flp=FL_P))
    if dbgfn:
        e('s_waitcnt vmcnt(0)'); dbgfn(2)
    for r in range(ACCQ,ACCQ+12): e('v_mov_b32 v%d, 0'%r)
    e('''
s_mov_b32 s44, 0
s_waitcnt vmcnt(0)
s_cmp_eq_u32 s42, 1
s_cbranch_scc1 L_c_k0done
L_c_waitready:
v_mov_b32 v64, {rdy}
global_load_dword v65, v64, s[10:11] sc1
s_waitcnt vmcnt(0)
v_readfirstlane_b32 s40, v65
s_cmp_ge_u32 s40, 32
s_cbranch_scc1 L_c_ready
s_add_u32 s44, s44, 1
s_cmp_gt_u32 s44, 200000
s_cbranch_scc1 L_c_done
s_sleep 4
s_branch L_c_waitready
L_c_ready:
'''.format(rdy=DBG_READY))
    if not sync: a.raw('s_branch L_c_kvok')
    if sync:
        e('''
L_c_waitkv:
v_mov_b32 v64, {f}
global_load_dword v65, v64, s[8:9] sc1
s_waitcnt vmcnt(0)
v_readfirstlane_b32 s40, v65
s_cmp_ge_u32 s40, 128
s_cbranch_scc1 L_c_kvok
s_add_u32 s44, s44, 1
s_cmp_gt_u32 s44, 200000
s_cbranch_scc1 L_c_done
s_sleep 4
s_branch L_c_waitkv
'''.format(f=FL_P))
    a.label('L_c_kvok')
    e('''
s_add_u32 m0, s43, {k0}
s_nop 0
global_load_lds_dwordx4 {gK}, s[20:21] sc1
global_load_lds_dwordx4 {gK}, s[20:21] offset:1024 sc1
L_c_k0done:
s_add_u32 s20, s20, 0x40000
s_addc_u32 s21, s21, 0
v_mov_b32 v{kvf}, 128
s_mov_b64 s[12:13], s[100:101]
s_mov_b32 s14, 0x400000
'''.format(k0=L_K0,gK=v(gB0),kvf=KVF))
    for b_ in range(4):
        e('s_add_u32 s41, s4, %d\ns_and_b32 s41, s41, 3\ns_lshl_b32 s%d, s41, 15'%(b_,50+b_))
    for i in ASET[4:]:
        t,b_=SEQ[i]
        for hh in range(2):
            for mm in range(4):
                e('s_add_u32 s41, s%d, %d'%(50+b_,(16*hh+mm)*1024+t*64))
                e('buffer_load_dword a%d, v37, s[12:15], s41 offen'%(64+8*ASET.index(i)+4*hh+mm))
    e('s_waitcnt vmcnt(32) lgkmcnt(0)\ns_barrier')


def chain_loop(a, st, nsteps=64, ts=False, dA=0, dB=0, stub=0, dA2=0, dB2=0, cnt=False, sync=False, fp=48, fpB=40, nA=1, pA=120, nB=1, pB=120, trace=False, big=0, nbig=4, XB=0, sh=4, ob64=False, barpos=1, early=True, hafast=False, sA=0, btag='last'):
    e=a.e
    lg=Q(a,'lgkmcnt',15)
    tsn=[0]
    def TS(name=None):
        if not ts: return
        i=tsn[0]; tsn[0]+=1
        assert i<22
        e('s_memtime s[%d:%d]'%(50+2*i,51+2*i))
        a.tsnames.append(name)
    a.tsnames=[]
    def delay(n):
        for _ in range(n//4): e('v_mov_b32 v34, v35')
    if ts or cnt or trace: e('s_mov_b32 s48, 0\ns_mov_b32 s49, 0\ns_mov_b32 s94, 0')
    FRB=[KXR,QF,KF,AF]
    def fr(j): return FRB[j>>2]+4*(j&3)
    def rdF(j):
        e('ds_read_b128 %s, %s offset:%d'%(v(fr(j),4),v(aMb[j>>2]),L_M+(j&3)*512)); lg.issue(('A',j))
    SMF=lambda acc,A,B: e('v_smfmac_f32_16x16x64_bf16 %s, %s, %s, %s'%(v(acc,4),A,B,v(IDX)))
    for j in range(4): rdF(j)
    e('s_waitcnt lgkmcnt(0)')
    for j in (8,9,10):
        for hh in range(2): e('ds_read_b128 %s, %s offset:%d'%(v(RING[(j-8)%3]+4*hh,4),v(aWo),(j-8)*2048+hh*1024))
    e('s_waitcnt lgkmcnt(0)'); lg.reset()
    e('s_branch L_c_step')
    NST=12 if ts else 0
    tsn[0]=NST
    a.label('L_c_hops'); a.hist=[]
    for r in range(ACCQ,ACCQ+12,2): e('v_mov_b64 v[%d:%d], 0'%(r,r+1))
    e('v_mov_b64 v[24:25], 0\nv_mov_b64 v[26:27], 0\nv_mov_b64 v[28:29], 0')
    for k,(reg,val) in enumerate(((26,'0x3f80'),(26,'0x3f800000'),(27,'0x3f80'),(27,'0x3f800000'))):
        m='0x%x'%(0x11111111<<k)
        e('s_mov_b32 exec_lo, %s\ns_mov_b32 exec_hi, %s\nv_mov_b32 v%d, %s'%(m,m,reg,val))
    e('s_mov_b64 exec, -1')
    e('s_mov_b32 m0, s43')
    if sA:
        e('s_bitcmp1_b32 s5, 2\ns_cbranch_scc0 L_c_skipdA')
        delay(sA)
        a.label('L_c_skipdA')
    delay(max(0,dA-104-sA))
    def xdelay(tag):
        if not big: return
        e('s_cmp_lt_u32 s28, %d\ns_cbranch_scc0 L_c_nox%s'%(nbig,tag))
        delay(big)
        a.label('L_c_nox%s'%tag)
    xdelay('A')
    R0=AF; R1=AF+4; DA=AF+8; DB=AF+12; S0=QF; S1=QF+4
    def ldA(r0,r1):
        e('global_load_dwordx4 %s, %s, s[16:17] sc1'%(v(r0,4),v(gAr)))
        e('global_load_dwordx4 %s, %s, s[16:17] offset:1024 sc1'%(v(r1,4),v(gAr)))
    def redA(r0,r1,n0,n1,ok,inv=False):
        e('s_waitcnt vmcnt(%d)'%n0)
        e('v_mfma_f32_16x16x32_bf16 %s, %s, %s, 0'%(v(DA,4),v(r0,4),v(BSEL+2,4)))
        e('v_mfma_f32_16x16x32_bf16 %s, %s, %s, 0'%(v(DB,4),v(r0,4),v(BSEL,4)))
        e('v_xor_b32 v80, s29, v%d'%r0)
        e('s_waitcnt vmcnt(%d)'%n1)
        e('v_mfma_f32_16x16x32_bf16 %s, %s, %s, %s'%(v(DA,4),v(r1,4),v(BSEL+2,4),v(DA,4)))
        e('v_mfma_f32_16x16x32_bf16 %s, %s, %s, %s'%(v(DB,4),v(r1,4),v(BSEL,4),v(DB,4)))
        e('v_bitop3_b32 v80, v80, v%d, s29 bitop3:0xf6'%r1)
        e('v_and_b32 v80, 1, v80')
        e('v_cmp_ne_u32 vcc, 0, v80')
        if ts or cnt or trace: e('s_add_u32 s48, s48, 1')
        e(('s_cbranch_vccnz %s' if inv else 's_cbranch_vccz %s')%ok)
    preA=[(R0,R1),(QF,QF+4),(QF+8,QF+12)][:nA]
    for i,(r0,r1) in enumerate(preA):
        ldA(r0,r1)
        if i+1<len(preA): delay(pA)
    rem=2*(len(preA)-1)
    redA(R0,R1,rem+1,rem,'L_c_failA',inv=True)
    a.label('L_c_okA')
    TS('pollA')
    if XB: e('s_memtime s[88:89]')
    e('s_nop 3')
    e('v_pk_add_f32 v[%d:%d], v[%d:%d], v[%d:%d]'%(DA,DA+1,DA,DA+1,DA+2,DA+3))
    e('v_pk_add_f32 v[%d:%d], v[%d:%d], v[%d:%d]'%(DB,DB+1,DB,DB+1,DB+2,DB+3))
    e('v_add_f32 v%d, v%d, v%d'%(DA,DA,DA+1))
    e('v_add_f32 v%d, v%d, v%d'%(DB,DB,DB+1))
    e('v_cvt_pk_bf16_f32 v%d, v%d, v%d'%(DA,DA,DB))
    e('v_and_or_b32 v%d, v%d, -2, s29'%(DA,DA))
    e('s_mov_b64 exec, s[38:39]')
    e('global_store_dword %s, v%d, s[18:19]%s'%(v(gBw),DA,st))
    e('s_mov_b64 exec, -1')
    TS('HA')
    lg.reset()
    for j in (8,9,10):
        for hh in range(2): e('ds_read_b128 %s, %s offset:%d'%(v(RING[(j-8)%3]+4*hh,4),v(aWo),(j-8)*2048+hh*1024))
    e('''s_mov_b64 s[92:93], s[18:19]
s_mov_b32 s30, s29
s_mov_b32 s31, 1
s_add_u32 s28, s28, 1
s_and_b32 s40, s28, 1
s_lshl_b32 s41, s40, 18
s_add_u32 s16, s8, s41
s_addc_u32 s17, s9, 0
s_add_u32 s46, s16, 0x8000
s_addc_u32 s47, s17, 0
s_lshl_b32 s41, s40, 13
s_add_u32 s41, s41, %d
s_add_u32 s18, s8, s41
s_addc_u32 s19, s9, 0
s_lshr_b32 s29, s28, 1
s_and_b32 s29, s29, 1
s_add_u32 s24, s24, 0x10000
s_addc_u32 s25, s25, 0
s_add_u32 s26, s26, 0x10000
s_addc_u32 s27, s27, 0
v_xor_b32 %s, 0x6000, %s'''%(WS_HOPB,v(aKr),v(aKr)))
    if XB:
        e('s_waitcnt lgkmcnt(0)\ns_sub_u32 s40, s88, s90\ns_sub_u32 s40, %d, s40\ns_cbranch_scc1 L_c_nodB\ns_mul_i32 s40, s40, 37\ns_lshr_b32 s40, s40, 10'%(XB))
        a.label('L_c_dBl')
        e('s_sub_u32 s40, s40, 1\ns_cbranch_scc0 L_c_dBl')
        a.label('L_c_nodB')
    else:
        delay(max(0,dB-80))
    xdelay('B')
    def dmaB():
        e('global_load_lds_dwordx4 %s, s[92:93] sc1'%v(gB0))
        e('global_load_lds_dwordx4 %s, s[92:93] offset:1024 sc1'%v(gB0))
    CK=VX1
    dmaB()
    delay(pB)
    dmaB()
    a.label('L_c_loopB')
    e('s_waitcnt vmcnt(2)')
    lg.reset()
    for j in range(4): rdF(j)
    first=True
    for j in range(4):
        lg.wait(('A',j))
        for r in (range(4) if btag=='all' else ((0,3) if btag=='ends' else (3,))):
            if first: e('v_xor_b32 v%d, s30, v%d'%(CK,fr(j)+r)); first=False
            else: e('v_bitop3_b32 v%d, v%d, v%d, s30 bitop3:0xf6'%(CK,CK,fr(j)+r))
    e('v_and_b32 v%d, 1, v%d'%(CK,CK))
    e('v_cmp_ne_u32 vcc, 0, v%d'%CK)
    if ts or cnt or trace: e('s_add_u32 s49, s49, 1')
    e('s_cbranch_vccnz L_c_failB')
    TS('pollB')
    if ts:
        e('s_and_b32 s40, s28, 7\ns_cmp_eq_u32 s40, 5\ns_cbranch_scc0 L_c_nodump')
        e('s_waitcnt lgkmcnt(0)')
        e('s_lshl_b32 s40, s5, 6\ns_add_u32 s40, s40, s28\ns_lshl_b32 s40, s40, 2\ns_add_u32 s40, s40, s4\ns_lshl_b32 s40, s40, 7\ns_add_u32 s40, s40, %d'%(WS_O))
        e('v_mov_b32 v34, s40\ns_mov_b64 exec, 1')
        n=tsn[0]
        for i in range(n):
            e('v_mov_b32 v35, s%d'%(50+2*i)); e('global_store_dword v34, v35, s[8:9] offset:%d'%(4*i))
        e('v_mov_b32 v35, s48\nglobal_store_dword v34, v35, s[8:9] offset:120\nv_mov_b32 v35, s49\nglobal_store_dword v34, v35, s[8:9] offset:124')
        e('s_mov_b64 exec, -1')
        a.label('L_c_nodump')
    a.fence()
    hop_names=list(a.tsnames); a.tsnames=[]; tsn[0]=0
    a.label('L_c_step')
    TS('top')
    if trace:
        e('s_mov_b32 m0, s28\nv_writelane_b32 v7, s94, m0\nv_writelane_b32 v11, s48, m0\nv_writelane_b32 v15, s49, m0\ns_memtime s[94:95]')
    if stub:
        delay(stub)
        e('s_cmp_eq_u32 s28, %d\ns_cbranch_scc1 L_c_done'%(nsteps-1))
        e('s_mov_b32 s41, 0')
    def QKs(j):
        lg.wait(('A',j))
        SMF(ACCQ,v(fr(j),4),WQ(j))
    if stub:
        e('s_barrier'); e('s_branch L_c_stub')
    seq0=[(ACCQ,0,WQ),(ACCK,0,WK),(ACCQ,1,WQ),(ACCK,1,WK)]
    for i,(acc,j,W) in enumerate(seq0):
        if i==barpos:
            e('s_barrier')
            TS('bar')
            for jj in (4,5,6,7): rdF(jj)
        SMF(acc,v(fr(j),4),W(j))
    if barpos>=4:
        e('s_barrier')
        TS('bar')
        for jj in (4,5,6,7): rdF(jj)
    if sync:
        e('v_readfirstlane_b32 s40, v%d'%KVF)
    def rdW(j,hh):
        e('ds_read_b128 %s, %s offset:%d'%(v(RING[(j-8)%3]+4*hh,4),v(aWo),(j-8)*2048+hh*1024)); lg.issue(('Q',j,hh))
    QP=SX1; KP=SX1+2
    def Qs(j):
        lg.wait(('A',j))
        if j>=8: lg.wait(('Q',j,1))
        SMF(ACCQ,v(fr(j),4),WQ(j) if j<8 else v(RING[(j-8)%3],8))
        if j<6:
            rdF(4+2*j); rdF(5+2*j)
        if 8<=j<13: rdW(j+3,0); rdW(j+3,1)
    def Ks(j):
        SMF(ACCK,v(fr(j),4),WK(j))
        if j==2:
            e('s_and_b32 s41, s28, 1\ns_lshl_b32 s41, s41, 13\ns_sub_u32 s41, %d, s41\ns_add_u32 m0, s43, s41'%L_K1)
            if sync:
                e('s_cmp_ge_u32 s40, 128\ns_cbranch_scc0 L_c_kvspin')
                a.label('L_c_kvgo')
        if j==5: e('global_load_dwordx4 %s, %s, s[22:23] sc1'%(v(VX1,4),v(gV)))
        if j==6: e('global_load_dwordx4 %s, %s, s[22:23] offset:64 sc1'%(v(VX2,4),v(gV)))
        if j==7: e('global_load_lds_dwordx4 %s, s[20:21] sc1'%v(gB0))
        if j==8: e('global_load_lds_dwordx4 %s, s[20:21] offset:1024 sc1'%v(gB0))
        if j==9: e('s_add_u32 s20, s20, 0x40000\ns_addc_u32 s21, s21, 0')
        if j==10: e('s_add_u32 s22, s22, 0x40000\ns_addc_u32 s23, s23, 0')
        if sync and j==11:
            e('v_mov_b32 v%d, s28'%KVF)
            e('s_mov_b64 exec, 1\nglobal_store_dword %s, v%d, s[86:87] sc1'%(v(gB0),KVF))
            e('s_add_u32 s41, s28, 2\ns_lshr_b32 s41, s41, 2\ns_min_u32 s41, s41, 15\ns_lshl_b32 s41, s41, 7\ns_add_u32 s82, s84, s41\ns_addc_u32 s83, s85, 0')
            e('global_load_dword v%d, %s, s[82:83] sc1\ns_mov_b64 exec, -1'%(KVF,v(gB0)))
    for j in range(2,16):
        Qs(j); Ks(j)
    TS('QK')
    def Vs(j): SMF(ACCV,v(fr(j),4),WV(j))
    def rdQ1(base,off,ks,hh,tag):
        e('ds_read_b64_tr_b16 %s, %s offset:%d'%(v(base+4*ks+2*hh,2),v(aQr),off+ks*544+hh*16)); lg.issue((tag,ks,hh))
    def rdQ(base,off,ks,tag):
        rdQ1(base,off,ks,0,tag); rdQ1(base,off,ks,1,tag)
    kreg={0:KXR,4:KXR+4,1:KXR+8,5:KXR+12,2:AF,6:AF+4,3:AF+8,7:AF+12}
    def rdK(f):
        e('ds_read_b128 %s, %s offset:%d'%(v(kreg[f],4),v(aKr),f*1024)); lg.issue(('K',f))
    def Sx(f,first):
        ks=f&3; tau=f>>2
        lg.wait(('K',f)); lg.wait(('q',ks,1))
        acc=SX0 if tau==0 else SX1
        e('v_mfma_f32_16x16x32_bf16 %s, %s, %s, %s'%(v(acc,4),v(kreg[f],4),v(QF+4*ks,4),'0' if first else v(acc,4)))
    def Sm(ks):
        lg.wait(('k',ks,1))
        e('v_mfma_f32_16x16x32_bf16 %s, %s, %s, %s'%(v(SM,4),v(KF+4*ks,4),v(QF+4*ks,4),'0' if ks==0 else v(SM,4)))
    Vs(0)
    e('v_cvt_pk_bf16_f32 %s, %s, %s'%(v(QP),v(ACCQ),v(ACCQ+1)))
    e('v_cvt_pk_bf16_f32 %s, %s, %s'%(v(QP+1),v(ACCQ+2),v(ACCQ+3)))
    e('ds_write_b64 %s, %s'%(v(aQw),v(QP,2))); lg.issue('qw')
    Vs(1)
    e('v_cvt_pk_bf16_f32 %s, %s, %s'%(v(KP),v(ACCK),v(ACCK+1)))
    e('v_cvt_pk_bf16_f32 %s, %s, %s'%(v(KP+1),v(ACCK+2),v(ACCK+3)))
    e('ds_write_b64 %s, %s offset:2176'%(v(aQw),v(KP,2))); lg.issue('kw')
    Vs(2)
    e('global_store_dwordx2 %s, %s, s[24:25] sc1'%(v(gVM),v(KP,2)))
    Vs(3); rdK(0); rdK(4)
    Vs(4); rdK(1); rdK(5)
    Vs(5); Vs(6); Vs(7)
    lg.wait('kw')
    TS('prebar')
    e('s_barrier')
    rdQ(QF,0,0,'q')
    Vs(8); rdQ(QF,0,1,'q')
    Vs(9); rdQ(QF,0,2,'q')
    Vs(10); rdQ(QF,0,3,'q')
    Vs(11); rdQ(KF,2176,0,'k')
    Vs(12); rdQ(KF,2176,1,'k'); rdK(2)
    Vs(13); rdQ(KF,2176,2,'k'); rdK(6)
    Vs(14); rdQ(KF,2176,3,'k'); rdK(3)
    Vs(15); rdK(7)
    TS('preS')
    seq=SEQ
    bslot={}
    def rdB1(i,slot,hh):
        t,b=seq[i]; bslot[i]=slot
        e('ds_read_b128 %s, %s offset:%d'%(v(slot+4*hh,4),v(aWo),16384+LSET.index(i)*2048+hh*1024)); lg.issue(('W',i,hh))
    def rdB(i,slot): rdB1(i,slot,0); rdB1(i,slot,1)
    pre=[(0,KXR),(1,KXR+8),(2,KF),(3,KF+8),(4,AF),(5,AF+8)]+([(6,QF),(7,QF+8)] if 6 in LSET else [])
    pl=[]
    for i,sl in pre: pl+= [(i,sl,0),(i,sl,1)]
    def fill(n=1):
        for _ in range(n):
            if pl: rdB1(*pl.pop(0))
    M_=ACCQ; T_=ACCQ+1; NMC=ACCQ+2
    Sx(0,True); Sx(4,True); Sx(1,False); Sx(5,False)
    Sm(0); fill(2); Sm(1); fill(2); Sm(2); Sm(3)
    Sx(2,False); fill(2); Sx(6,False); fill(2)
    Sx(3,False)
    e('v_max3_f32 v%d, v%d, v%d, v%d'%(T_,SM,SM+1,SM+2))
    Sx(7,False)
    e('v_max_f32 v%d, v%d, v%d'%(T_,T_,SM+3))
    TS('VS')
    e('v_max3_f32 v%d, v%d, v%d, v%d'%(M_,SX0,SX0+1,SX0+2))
    e('v_max3_f32 v%d, v%d, v%d, v%d'%(T_,T_,SX0+3,M_))
    e('v_max3_f32 v%d, v%d, v%d, v%d'%(M_,SX1,SX1+1,SX1+2))
    e('v_max3_f32 v%d, v%d, v%d, v%d'%(M_,M_,SX1+3,T_))
    e('v_mov_b32 v%d, v%d'%(T_,M_))
    e('v_permlane32_swap_b32 v%d, v%d'%(M_,T_))
    e('v_max_f32 v%d, v%d, v%d'%(M_,M_,T_))
    e('v_mov_b32 v%d, v%d'%(T_,M_))
    e('v_permlane16_swap_b32 v%d, v%d'%(M_,T_))
    e('v_max_f32 v%d, v%d, v%d'%(M_,M_,T_))
    e('v_mul_f32 v%d, s32, v%d'%(NMC,M_))
    TS('max')
    pkf=lambda r: e('v_pk_fma_f32 v[%d:%d], v[%d:%d], s[32:33], v[%d:%d] op_sel_hi:[1,1,0] neg_lo:[0,0,1] neg_hi:[0,0,1]'%(r,r+1,r,r+1,NMC,NMC+1))
    for r in (SX0,SX0+2,SX1,SX1+2): pkf(r)
    for r in range(SX0,SX0+8): e('v_exp_f32 v%d, v%d'%(r,r))
    PX=ACCK
    pkf(SM); pkf(SM+2)
    e('v_cvt_pk_bf16_f32 v%d, v%d, v%d'%(PX,SX0,SX0+1))
    e('v_cvt_pk_bf16_f32 v%d, v%d, v%d'%(PX+1,SX0+2,SX0+3))
    e('v_cvt_pk_bf16_f32 v%d, v%d, v%d'%(PX+2,SX1,SX1+1))
    e('v_cvt_pk_bf16_f32 v%d, v%d, v%d'%(PX+3,SX1+2,SX1+3))
    TS('expx')
    e('s_waitcnt vmcnt(%d)'%(5 if sync else 3))
    T1=SX0; T2=SX1; L_=VX2
    e('v_exp_f32 v%d, v%d'%(SM,SM))
    e('v_mfma_f32_16x16x32_bf16 %s, %s, %s, 0'%(v(T2,4),v(VX2,4),v(PX,4)))
    fill()
    e('v_exp_f32 v%d, v%d'%(SM+1,SM+1))
    e('v_mfma_f32_16x16x32_bf16 %s, %s, %s, 0'%(v(T1,4),v(VX1,4),v(PX,4)))
    fill()
    e('v_exp_f32 v%d, v%d'%(SM+2,SM+2))
    e('v_mfma_f32_16x16x32_bf16 %s, %s, %s, 0'%(v(L_,4),v(ONES,4),v(PX,4)))
    fill()
    e('v_exp_f32 v%d, v%d'%(SM+3,SM+3))
    VP=ACCV
    e('v_cvt_pk_bf16_f32 v%d, v%d, v%d'%(VP,ACCV,ACCV+1))
    PM1=ACCQ; PM2=ACCQ+2
    e('v_cvt_pk_bf16_f32 v%d, v%d, v%d'%(PM2,SM,SM+1))
    e('v_cvt_pk_bf16_f32 v%d, v%d, v%d'%(PM2+1,SM+2,SM+3))
    e('v_cvt_pk_bf16_f32 v%d, v%d, v%d'%(VP+1,ACCV+2,ACCV+3))
    e('v_cndmask_b32 v%d, 0, v%d, s[34:35]'%(PM1,PM2))
    e('v_cndmask_b32 v%d, 0, v%d, s[34:35]'%(PM1+1,PM2+1))
    e('v_mfma_f32_16x16x16_bf16 %s, %s, %s, %s'%(v(L_,4),v(ONES,2),v(PM1,2),v(L_,4)))
    e('v_cndmask_b32 v%d, 0, v%d, s[36:37]'%(PM2,PM2))
    e('v_cndmask_b32 v%d, 0, v%d, s[36:37]'%(PM2+1,PM2+1))
    e('v_mfma_f32_16x16x16_bf16 %s, %s, %s, %s'%(v(T1,4),v(VP,2),v(PM1,2),v(T1,4)))
    fill(1)
    WA=[ACCQ,ACCK,ACCV,VX1]
    e('v_mfma_f32_16x16x16_bf16 %s, %s, %s, %s'%(v(T2,4),v(VP,2),v(PM2,2),v(T2,4)))
    fill(1)
    e('global_store_dwordx2 %s, %s, s[26:27] sc1'%(v(gVM),v(VP,2)))
    e('v_mov_b64 v[%d:%d], 0\nv_mov_b64 v[%d:%d], 0'%(WA[1],WA[1]+1,WA[1]+2,WA[1]+3))
    TS('pv')
    e('s_cmp_eq_u32 s28, %d\ns_cbranch_scc1 L_c_done'%(nsteps-1))
    fill(16)
    for t in (3,0):
        e('v_mov_b64 v[%d:%d], 0\nv_mov_b64 v[%d:%d], 0'%(WA[t],WA[t]+1,WA[t]+2,WA[t]+3))
    e('v_rcp_f32 v%d, v%d'%(L_,L_))
    e('v_mov_b64 v[%d:%d], 0\nv_mov_b64 v[%d:%d], 0'%(WA[2],WA[2]+1,WA[2]+2,WA[2]+3))
    for r in (T1,T1+2,T2,T2+2):
        e('v_pk_mul_f32 v[%d:%d], v[%d:%d], v[%d:%d] op_sel_hi:[1,0]'%(r,r+1,r,r+1,L_,L_+1))
    O4=SM
    for r in range(4):
        e('v_cvt_pk_bf16_f32 v%d, v%d, v%d'%(O4+r,T1+r,T2+r))
    if ob64:
        e('v_cndmask_b32 v%d, v%d, v%d, s[80:81]'%(T1,O4,O4+2))
        e('v_cndmask_b32 v%d, v%d, v%d, s[80:81]'%(T1+1,O4+1,O4+3))
        e('ds_write_b64 v%d, %s offset:%d'%(16+0, v(T1,2), L_M)) if False else None
        e('v_add_u32 v%d, %s, v%d'%(T1+2,v(aMb[0]),T1+3)) if False else None
        e('ds_write_b64 %s, %s offset:%d'%(v(aOw8),v(T1,2),L_M)); lg.issue('ow')
    else:
        e('ds_write_b128 %s, %s offset:%d'%(v(aMb[0]),v(O4,4),L_M)); lg.issue('ow')
    TS('SMX')
    def Wm(i,areg):
        t,b=seq[i]
        if i in LSET:
            lg.wait(('W',i,1))
            SMF(WA[t],v(areg,4),v(bslot[i],8))
        else: SMF(WA[t],v(areg,4),WOR(i))
    Wm(0,O4); Wm(1,O4); Wm(2,O4)
    lg.wait('ow')
    TS('ow')
    e('s_barrier')
    OF={1:SX0,2:SX1,3:OF3}
    for b in (1,2,3):
        e('ds_read_b128 %s, %s offset:%d'%(v(OF[b],4),v(aMb[b]),L_M)); lg.issue(('o',b))
    Wm(3,O4)
    if 14 in LSET: rdB(14,QF); rdB(15,QF+8)
    G0=KXR; G1=KXR+4
    for i in range(4,16):
        t,b=seq[i]
        lg.wait(('o',b))
        Wm(i,OF[b])
        if early:
            if i==10:
                e('v_cvt_pk_bf16_f32 v%d, v%d, v%d'%(G0,WA[0],WA[0]+1))
                e('v_cvt_pk_bf16_f32 v%d, v%d, v%d'%(G0+1,WA[0]+2,WA[0]+3))
            if i==11:
                e('v_cvt_pk_bf16_f32 v%d, v%d, v%d'%(G0+2,WA[1],WA[1]+1))
                e('v_cvt_pk_bf16_f32 v%d, v%d, v%d'%(G0+3,WA[1]+2,WA[1]+3))
                e('v_and_or_b32 v%d, v%d, -2, s29'%(G0,G0))
                e('global_store_dwordx4 %s, %s, s[16:17]%s'%(v(gA0),v(G0,4),st))
            continue
        if i==11:
            e('v_cvt_pk_bf16_f32 v%d, v%d, v%d'%(G0,WA[0],WA[0]+1))
        if i==12:
            e('v_cvt_pk_bf16_f32 v%d, v%d, v%d'%(G0+1,WA[0]+2,WA[0]+3))
        if i==13:
            e('v_cvt_pk_bf16_f32 v%d, v%d, v%d'%(G0+2,WA[1],WA[1]+1))
            e('v_cvt_pk_bf16_f32 v%d, v%d, v%d'%(G0+3,WA[1]+2,WA[1]+3))
        if i==14:
            e('v_and_or_b32 v%d, v%d, -2, s29'%(G0,G0))
            e('global_store_dwordx4 %s, %s, s[16:17]%s'%(v(gA0),v(G0,4),st))
    a.label('L_c_stub')
    if stub:
        e('v_and_or_b32 v%d, v%d, -2, s29'%(G0,G0))
        e('global_store_dwordx4 %s, %s, s[16:17]%s'%(v(gA0),v(G0,4),st))
        delay(64)
    e('v_cvt_pk_bf16_f32 v%d, v%d, v%d'%(G1,WA[2],WA[2]+1))
    e('v_cvt_pk_bf16_f32 v%d, v%d, v%d'%(G1+1,WA[2]+2,WA[2]+3))
    e('v_cvt_pk_bf16_f32 v%d, v%d, v%d'%(G1+2,WA[3],WA[3]+1))
    e('v_cvt_pk_bf16_f32 v%d, v%d, v%d'%(G1+3,WA[3]+2,WA[3]+3))
    e('v_and_or_b32 v%d, v%d, -2, s29'%(G1,G1))
    e('global_store_dwordx4 %s, %s, s[46:47]%s'%(v(gA0),v(G1,4),st))
    TS('WO')
    if XB: e('s_memtime s[90:91]')
    assert (not ts) or tsn[0]==NST, tsn[0]
    a.tsnames=a.tsnames+hop_names
    e('s_branch L_c_hops')
    a.label('L_c_failA'); a.hist=[]
    e('s_nop 3')
    for i,(r0,r1) in enumerate(preA[1:]):
        rem=2*(len(preA)-2-i)
        redA(r0,r1,rem+1,rem,'L_c_okA')
        a.fence()
    a.label('L_c_pollA')
    ldA(R0,R1)
    redA(R0,R1,1,0,'L_c_okA')
    e('s_add_u32 s44, s44, 1\ns_cmp_gt_u32 s44, 200000\ns_cbranch_scc1 L_c_done\ns_branch L_c_pollA')
    a.label('L_c_failB'); a.hist=[]
    e('global_load_lds_dwordx4 %s, s[92:93] sc1'%v(gB0))
    e('global_load_lds_dwordx4 %s, s[92:93] offset:1024 sc1'%v(gB0))
    e('s_add_u32 s44, s44, 1\ns_cmp_gt_u32 s44, 200000\ns_cbranch_scc1 L_c_done\ns_branch L_c_loopB')
    if sync:
        a.label('L_c_kvspin'); a.hist=[]
        e('s_add_u32 s41, s28, 1\ns_lshr_b32 s41, s41, 2\ns_min_u32 s41, s41, 15\ns_lshl_b32 s41, s41, 7\ns_add_u32 s82, s84, s41\ns_addc_u32 s83, s85, 0')
        e('s_mov_b64 exec, 1\nglobal_load_dword v%d, %s, s[82:83] sc1\ns_mov_b64 exec, -1\ns_waitcnt vmcnt(0)\nv_readfirstlane_b32 s40, v%d'%(KVF,v(gB0),KVF))
        e('s_add_u32 s44, s44, 1\ns_cmp_gt_u32 s44, 200000\ns_cbranch_scc1 L_c_done\ns_cmp_ge_u32 s40, 128\ns_cbranch_scc0 L_c_kvspin\ns_branch L_c_kvgo')
    a.label('L_c_done'); a.hist=[]
    e('s_waitcnt vmcnt(0)')
    if sync:
        e('s_barrier')
        e('s_lshl_b32 s41, s5, 7\ns_add_u32 s41, s41, %d\nv_mov_b32 v34, s41\nv_mov_b32 v35, 64'%FL_PROG)
        e('s_mov_b64 exec, 1\nglobal_store_dword v34, v35, s[8:9] sc1\ns_mov_b64 exec, -1\ns_waitcnt vmcnt(0)')
    if trace:
        e('s_lshl_b32 s40, s5, 2\ns_add_u32 s40, s40, s4\ns_mul_i32 s40, s40, 768\ns_add_u32 s40, s40, %d'%(WS_O))
        e('v_mbcnt_lo_u32_b32 v64, -1, 0\nv_mbcnt_hi_u32_b32 v64, -1, v64\nv_lshlrev_b32 v64, 2, v64\nv_add_u32 v64, s40, v64')
        e('global_store_dword v64, v7, s[8:9]\nglobal_store_dword v64, v11, s[8:9] offset:256\nglobal_store_dword v64, v15, s[8:9] offset:512\ns_waitcnt vmcnt(0)')
    if cnt:
        e('s_lshl_b32 s40, s5, 2\ns_add_u32 s40, s40, s4\ns_lshl_b32 s40, s40, 3\ns_add_u32 s40, s40, %d'%(WS_G))
        e('v_mov_b32 v64, s40\nv_mov_b32 v66, s48\nv_mov_b32 v67, s49\ns_mov_b64 exec, 1\nglobal_store_dwordx2 v64, v[66:67], s[8:9]\ns_mov_b64 exec, -1\ns_waitcnt vmcnt(0)')
```
